```python
import torch

def _softmax(x, axis=-1):
    return torch.softmax(x, dim=axis)
def _gelu(x):
    return torch.nn.functional.gelu(x, approximate="tanh")
def _silu(x):
    return torch.nn.functional.silu(x)
def _sigmoid(x):
    return torch.sigmoid(x)
def _layernorm(x, axis=-1, eps=1e-5):
    m = x.mean(dim=axis, keepdim=True)
    v = x.var(dim=axis, keepdim=True, unbiased=False)
    return (x - m) / torch.sqrt(v + eps)
def _scatter_add(tgt, idx, src, axis=0):
    return tgt.clone().index_add_(axis, idx, src)
def _segment_sum(src, seg, n):
    out = torch.zeros((n,) + src.shape[1:], dtype=src.dtype)
    return out.index_add_(0, seg, src)
def _pad(x, pw):
    flat = tuple(v for pair in reversed(pw) for v in pair)
    return torch.nn.functional.pad(x, flat)

kernel_name = 'recurrent_scan__mha_block_cached__mixer_s_mlp__prompt'

def setup_inputs():

    _w = (lambda a: (lambda t: t.to(torch.bfloat16) if t.is_floating_point() else t)(torch.as_tensor(a)))
    def _A_setup():
        B, Sq, D = 1, 2048, 512
        H, Sk, Dh = 32, 2048, 128
        return {
            "x": _w((lambda *s: torch.randn(*s, dtype=torch.bfloat16) * 0.05)(B, Sq, D)),
            "k_cache": _w((lambda *s: torch.randn(*s, dtype=torch.bfloat16) * 0.8)(B, H, Sk, Dh)),
            "v_cache": _w((lambda *s: torch.randn(*s, dtype=torch.bfloat16) * 0.8)(B, H, Sk, Dh)),
            "wq": _w((lambda *s: torch.randn(*s, dtype=torch.bfloat16) * 0.8)(D, H * Dh) * (D ** -0.5)),
            "wo": _w((lambda *s: torch.randn(*s, dtype=torch.bfloat16) * 0.8)(H * Dh, D) * ((H * Dh) ** -0.5)),
        }
    _A_in = _A_setup()

    def _B_setup():
        B, S, D, F = 1, 2048, 512, 1792
        return {
            "x":  _w((lambda *s: torch.randn(*s, dtype=torch.bfloat16) * 0.05)(B, S, D)),
            "w1": _w((lambda *s: torch.randn(*s, dtype=torch.bfloat16) * 3.2)(D, D) * (D ** -0.5)),
            "w2": _w((lambda *s: torch.randn(*s, dtype=torch.bfloat16) * 3.2)(D, D) * (D ** -0.5)),
            "w3": _w((lambda *s: torch.randn(*s, dtype=torch.bfloat16) * 3.2)(D, F) * (D ** -0.5)),
            "w4": _w((lambda *s: torch.randn(*s, dtype=torch.bfloat16) * 3.2)(F, D) * (F ** -0.5)),
        }
    _B_in = _B_setup()

    return {
        "A_x": _A_in["x"],
        "A_k_cache": _A_in["k_cache"],
        "A_v_cache": _A_in["v_cache"],
        "A_wq": _A_in["wq"],
        "A_wo": _A_in["wo"],
        "B_x": _B_in["x"],
        "B_w1": _B_in["w1"],
        "B_w2": _B_in["w2"],
        "B_w3": _B_in["w3"],
        "B_w4": _B_in["w4"],
    }

def reference(A_x, A_k_cache, A_v_cache, A_wq, A_wo, B_x, B_w1, B_w2, B_w3, B_w4):
    def _A_ref(x, k_cache, v_cache, wq, wo):
        B, Sq, D = x.shape
        H, Dh = 32, 128
        q = (lambda x, *d: x.permute(*d))((x @ wq).reshape(B, Sq, H, Dh), 0, 2, 1, 3)
        scores = torch.einsum("bhqd,bhkd->bhqk", q, k_cache) * (Dh ** -0.5)
        p = _softmax(scores, axis=-1)
        o = torch.einsum("bhqk,bhkd->bhqd", p, v_cache)
        return (lambda x, *d: x.permute(*d))(o, 0, 2, 1, 3).reshape(B, Sq, H * Dh) @ wo

    def _B_ref(x, w1, w2, w3, w4):
        B, S, D = x.shape
        h = _gelu(_layernorm(x, axis=-1) @ w1)
        c = D // 4
        g0 = _pad(h[:, :, 0*c:1*c], ((0, 0), (1, 0), (0, 0)))[:, :S, :]
        g1 = _pad(h[:, :, 1*c:2*c], ((0, 0), (0, 1), (0, 0)))[:, 1:, :]
        g2 = _pad(h[:, :, 2*c:3*c], ((0, 0), (2, 0), (0, 0)))[:, :S, :]
        g3 = _pad(h[:, :, 3*c:   ], ((0, 0), (0, 2), (0, 0)))[:, 2:, :]
        hs = torch.concatenate([g0, g1, g2, g3], axis=-1) @ w2
        x1 = x + hs
        h2 = _gelu(_layernorm(x1, axis=-1) @ w3) @ w4
        return x1 + h2

    x = A_x
    xn = _layernorm(x, axis=-1)
    s = _A_ref(xn, A_k_cache, A_v_cache, A_wq, A_wo)
    g = _silu(_B_ref(xn, B_w1, B_w2, B_w3, B_w4))
    return x + s * g
```

```python
import re

def R(kind, lo, n=1):
    if n == 1: return f"{kind}{lo}"
    return f"{kind}[{lo}:{lo+n-1}]"
def v(lo, n=1): return R('v', lo, n)
def a(lo, n=1): return R('a', lo, n)
def s(lo, n=1): return R('s', lo, n)

_reg_re = re.compile(r'^(-|\|)?(abs\()?([vas])(\d+|\[(\d+):(\d+)\])\)?\|?$')
def parse_regs(tok):
    tok = tok.strip()
    if tok.startswith('-') and not tok[1:2].isdigit(): tok = tok[1:]
    if tok.startswith('abs(') and tok.endswith(')'): tok = tok[4:-1]
    if tok.startswith('|') and tok.endswith('|'): tok = tok[1:-1]
    if tok == 'vcc': return [('s', 106), ('s', 107)]
    if tok == 'vcc_lo': return [('s', 106)]
    if tok == 'vcc_hi': return [('s', 107)]
    if tok == 'exec': return [('s', 126), ('s', 127)]
    if tok == 'm0': return [('s', 124)]
    m = re.match(r'^([vas])(\d+)$', tok)
    if m: return [(m.group(1), int(m.group(2)))]
    m = re.match(r'^([vas])\[(\d+):(\d+)\]$', tok)
    if m: return [(m.group(1), i) for i in range(int(m.group(2)), int(m.group(3)) + 1)]
    return []

TRANS = ('v_exp_f32', 'v_log_f32', 'v_rcp_f32', 'v_rsq_f32', 'v_sqrt_f32', 'v_sin_f32', 'v_cos_f32')

class Ins:
    __slots__ = ('text', 'op', 'defs', 'uses', 'kind', 'tag', 'passes', 'srcC', 'srcAB', 'comment', 'lds_r', 'lds_w', 'nowarn')
    def __init__(self, text, tag=None, lds_r=None, lds_w=None):
        self.text = text.strip()
        self.tag = tag; self.lds_r = lds_r; self.lds_w = lds_w
        self.comment = None; self.nowarn = False
        body = self.text.split(';')[0].strip()
        parts = body.split(None, 1)
        self.op = op = parts[0]
        rest = parts[1] if len(parts) > 1 else ''
        ops = [o.strip() for o in rest.split(',')] if rest else []
        mods = []
        if ops:
            last = ops[-1].split()
            if last:
                ops[-1] = last[0]; mods = last[1:]
        self.defs = []; self.uses = []; self.passes = 0; self.srcC = []; self.srcAB = []
        P = [parse_regs(o) for o in ops]
        flat = lambda l: [r for x in l for r in x]
        if op.startswith('v_mfma'):
            self.kind = 'mfma'
            self.defs = P[0]; self.uses = flat(P[1:]); self.srcC = P[3]; self.srcAB = P[1] + P[2]
            self.passes = 8 if '32x32x16' in op else 4 if '16x16x32' in op else 16
        elif op.startswith('ds_'):
            self.kind = 'ds'
            if op.startswith('ds_read') or op.startswith('ds_bpermute') or op.startswith('ds_permute') or op.startswith('ds_swizzle'):
                self.defs = P[0]; self.uses = flat(P[1:])
            else:
                self.uses = flat(P)
        elif op.startswith('buffer_') or op.startswith('global_'):
            self.kind = 'vmem'
            allm = mods + ops
            if op.startswith('buffer_load') and 'lds' in mods:
                self.uses = flat(P) + [('s', 124)]
            elif op.startswith('global_load_lds'):
                self.uses = flat(P) + [('s', 124)]
            elif op.startswith('buffer_load') or op.startswith('global_load'):
                self.defs = P[0]; self.uses = flat(P[1:])
            elif 'atomic' in op:
                self.uses = flat(P)
                if 'sc0' in mods: self.defs = P[0]
            elif op in ('buffer_wbl2', 'buffer_inv'):
                pass
            else:
                self.uses = flat(P)
        elif op.startswith('s_load') or op.startswith('s_buffer_load') or op in ('s_memtime', 's_memrealtime'):
            self.kind = 'smem'; self.defs = P[0]; self.uses = flat(P[1:])
        elif op.startswith('s_'):
            self.kind = 'salu'
            if op in ('s_waitcnt', 's_barrier', 's_nop', 's_endpgm', 's_setprio', 's_sleep', 's_branch') or op.startswith('s_cbranch'):
                if op in ('s_cbranch_vccnz', 's_cbranch_vccz'): self.uses = [('s', 106), ('s', 107)]
                if op in ('s_cbranch_execz', 's_cbranch_execnz'): self.uses = [('s', 126), ('s', 127)]
                if op in ('s_cbranch_scc0', 's_cbranch_scc1'): self.uses = [('scc', 0)]
            elif op.startswith('s_cmp') or op.startswith('s_bitcmp'):
                self.uses = flat(P); self.defs = [('scc', 0)]
            elif op in ('s_setpc_b64',):
                self.uses = flat(P)
            elif op in ('s_call_b64', 's_getpc_b64'):
                self.defs = P[0]
            elif op in ('s_swappc_b64',):
                self.defs = P[0]; self.uses = P[1]
            else:
                self.defs = P[0] + [('scc', 0)]; self.uses = flat(P[1:])
                if op in ('s_mov_b32', 's_mov_b64', 's_movk_i32', 's_mul_i32', 's_mul_hi_u32'): self.defs = P[0]
                if op in ('s_cselect_b32', 's_cselect_b64', 's_addc_u32', 's_subb_u32'): self.uses += [('scc', 0)]
                if op in ('s_cselect_b32', 's_cselect_b64'): self.defs = P[0]
                if op in ('s_addk_i32', 's_mulk_i32'): self.uses += P[0]
                if 'saveexec' in op:
                    self.defs += [('s', 126), ('s', 127)]; self.uses += [('s', 126), ('s', 127)]
        elif op.startswith('v_'):
            self.kind = 'valu'
            base = op.replace('_e32', '').replace('_e64', '').replace('_dpp', '').replace('_sdwa', '')
            if base.startswith('v_cmp'):
                self.defs = P[0]; self.uses = flat(P[1:])
                if base.startswith('v_cmpx'): self.defs = self.defs + [('s', 126), ('s', 127)]
            elif base.startswith('v_permlane') and 'swap' in base:
                self.defs = P[0] + P[1]; self.uses = P[0] + P[1]
            elif base in ('v_add_co_u32', 'v_sub_co_u32', 'v_addc_co_u32', 'v_subb_co_u32', 'v_subrev_co_u32', 'v_div_scale_f32', 'v_mad_u64_u32'):
                self.defs = P[0] + P[1]; self.uses = flat(P[2:])
            elif base == 'v_nop':
                pass
            else:
                self.defs = P[0]; self.uses = flat(P[1:])
                if base in ('v_fmac_f32', 'v_dot2c_f32_bf16', 'v_dot2c_f32_f16', 'v_pk_fmac_f16', 'v_writelane_b32', 'v_mac_f32', 'v_fmamk_f32x'):
                    self.uses = self.uses + P[0]
                if any(m.startswith('row_') or m.startswith('quad_perm') or m.startswith('wave_') for m in mods):
                    self.kind = 'valu'; self.tag = (self.tag or '')
                    self.uses = self.uses + P[0]
        else:
            raise ValueError("unknown op " + op)
    def is_dpp(self):
        t = self.text
        return self.kind == 'valu' and ('row_' in t or 'quad_perm' in t or 'wave_' in t)
    def is_trans(self):
        return self.op.replace('_e32', '').replace('_e64', '') in TRANS
    def __repr__(self): return self.text

class Label:
    def __init__(self, name): self.name = name; self.text = name + ':'
class Raw:
    def __init__(self, text): self.text = text

def nstates(ins):
    if ins.op == 's_nop':
        return int(ins.text.split()[1], 0) + 1
    return 1

class HazardError(Exception): pass

def required_gap(p, c):
    need = 0; why = None
    def upd(n, w):
        nonlocal need, why
        if n > need: need, why = n, w
    pd = set(p.defs); cu = set(c.uses); cd = set(c.defs)
    if p.kind == 'mfma':
        ps = p.passes
        raw_n = {4: 8, 8: 12, 16: 20}[ps]; ovl = {4: 6, 8: 10, 16: 18}[ps]; war = {4: 3, 8: 7, 16: 15}[ps]
        if c.kind == 'mfma':
            if pd & set(c.srcAB): upd(raw_n, 'mfma D->AB')
            if pd & set(c.srcC):
                if not (p.defs == c.srcC and p.passes == c.passes): upd(ovl, 'mfma D->C overlap')
            if (pd & cd) and not (pd & set(c.srcC)): upd(ovl, 'mfma D->D WAW')
        elif c.kind in ('valu',):
            if pd & (cu | cd): upd(raw_n, 'mfma D->valu')
            if set(p.srcC) & cd: upd(war, 'mfma C WAR valu')
        elif c.kind in ('ds', 'vmem'):
            if pd & (cu | cd): upd(raw_n, 'mfma D->mem')
    if p.kind == 'valu':
        vd = {r for r in pd if r[0] in 'va'}
        sd = {r for r in pd if r[0] == 's'}
        if c.kind == 'mfma' and (vd & cu): upd(2, 'valu->mfma')
        if c.kind == 'mfma' and (('s', 126) in pd): upd(4, 'valu exec->mfma')
        if c.kind == 'valu':
            if c.is_dpp() and (vd & cu): upd(2, 'valu->dpp')
            if c.op.startswith('v_permlane') and (vd & cu): upd(2, 'valu->permlane')
            if (c.op.startswith('v_readlane') or c.op.startswith('v_readfirstlane')) and (vd & cu): upd(1, 'valu->readlane')
            if p.is_trans() and not c.is_trans() and (vd & cu): upd(1, 'trans->valu')
            if sd & cu: upd(2, 'valu sgpr->valu')
            if (c.op.startswith('v_readlane') or c.op.startswith('v_writelane')) and (sd & cu): upd(4, 'valu sgpr->lane sel')
            if ('op_sel' in p.text or 'sdwa' in p.text or 'dst_sel' in p.text) and (vd & (cu | cd)): upd(1, 'opsel->valu')
        if c.kind in ('vmem',) and (sd & cu): upd(5, 'valu sgpr->vmem')
    if p.kind == 'salu' and ('s', 124) in pd:
        if c.kind == 'vmem' and ('s', 124) in cu: upd(1, 'm0->ldsdma')
    if p.kind == 'vmem' and ('store' in p.op) and ('x4' in p.op or 'x3' in p.op):
        data = set(r for r in p.uses if r[0] in 'va')
        if c.kind == 'valu' and (data & cd): upd(2, 'store data WAR')
        elif (data & cd): upd(1, 'store data WAR')
    return need, why

class Prog:
    def __init__(self):
        self.items = []
        self.nlabel = 0
    def I(self, text, **kw):
        ins = Ins(text, **kw); self.items.append(ins); return ins
    def add(self, ins): self.items.append(ins); return ins
    def L(self, name): self.items.append(Label(name))
    def raw(self, text): self.items.append(Raw(text))
    def newlabel(self, base='L'):
        self.nlabel += 1; return f"{base}_{self.nlabel}"
    def extend(self, seq):
        for x in seq: self.items.append(x)
    def text(self):
        out = []
        for it in self.items:
            if isinstance(it, Ins): out.append("    " + it.text)
            else: out.append(it.text)
        return "\n".join(out)

def fix_hazards(seq, window=24, verbose=False, name=''):
    out = []; hist = []
    ninserted = 0
    for it in seq:
        if not isinstance(it, Ins):
            out.append(it); continue
        pad = 0; dist = 0
        for p in reversed(hist):
            need, why = required_gap(p, it)
            if need > dist and need - dist > pad:
                pad = need - dist; pw = (p, why)
            dist += nstates(p)
            if dist >= window: break
        while pad > 0:
            n = min(pad, 16)
            nop = Ins(f"s_nop {n-1}")
            out.append(nop); hist.append(nop); pad -= n; ninserted += n
            if verbose: print(f"  [{name}] pad {n} before '{it.text}' due to '{pw[0].text}' ({pw[1]})")
        out.append(it); hist.append(it)
        if len(hist) > 64: hist = hist[-64:]
    return out, ninserted

def check_hazards(trace, name=''):
    errs = []
    hist = []
    for it in trace:
        if not isinstance(it, Ins): continue
        dist = 0
        for p in reversed(hist):
            need, why = required_gap(p, it)
            if need > dist: errs.append(f"[{name}] hazard {why}: need {need} have {dist}: '{p.text}' -> '{it.text}'")
            dist += nstates(p)
            if dist >= 24: break
        hist.append(it)
        if len(hist) > 64: hist = hist[-64:]
    return errs

_wc_re = re.compile(r'(vmcnt|lgkmcnt|expcnt)\((\d+)\)')
def check_waitcnt(trace, name='', init_vm=None, init_lg=None):
    errs = []
    vm = list(init_vm or []); lg = list(init_lg or [])
    pend = {}
    w_state = {}
    w_ins = {}
    r_state = {}
    r_cnt = {}
    def retire(q, n):
        while len(q) > n:
            x = q.pop(0)
            for r in x.defs:
                if pend.get(r) is x: del pend[r]
            if x.lds_w is not None:
                w_ins[x.lds_w].remove(x)
                if not w_ins[x.lds_w]: w_state[x.lds_w] = 'landed'
            if x.lds_r is not None:
                r_cnt[x.lds_r] -= 1
                if r_cnt[x.lds_r] == 0: r_state[x.lds_r] = 'done'
    for it in trace:
        if not isinstance(it, Ins): continue
        if it.op == 's_waitcnt':
            for k, n in _wc_re.findall(it.text):
                if k == 'vmcnt': retire(vm, int(n))
                elif k == 'lgkmcnt':
                    if any(x.kind == 'smem' for x in lg) and int(n) != 0:
                        errs.append(f"[{name}] counted lgkmcnt with smem outstanding: {it.text}")
                    retire(lg, int(n))
            continue
        if it.op == 's_barrier':
            for r, st in list(w_state.items()):
                if st == 'landed': w_state[r] = 'visible'
            for r, st in list(r_state.items()):
                if st == 'done': r_state[r] = 'free'
            continue
        if it.op == 's_endpgm': continue
        for r in list(it.uses) + list(it.defs):
            if r in pend:
                if r in it.defs and r not in it.uses and it.kind == pend[r].kind and it.kind in ('ds',):
                    continue
                errs.append(f"[{name}] reg {r} pending from '{pend[r].text}' touched by '{it.text}'")
        if it.lds_r is not None:
            st = w_state.get(it.lds_r, 'visible')
            if st != 'visible': errs.append(f"[{name}] LDS RAW: read of {it.lds_r} while {st}: '{it.text}'")
            r_state[it.lds_r] = 'inflight'; r_cnt[it.lds_r] = r_cnt.get(it.lds_r, 0) + 1
        if it.lds_w is not None:
            st = r_state.get(it.lds_w, 'free')
            if st != 'free': errs.append(f"[{name}] LDS WAR: write to {it.lds_w} while reads {st}: '{it.text}'")
            w_state[it.lds_w] = 'inflight'; w_ins.setdefault(it.lds_w, []).append(it)
        if it.kind == 'vmem' and it.op not in ('buffer_wbl2', 'buffer_inv'):
            vm.append(it)
            if len(vm) > 63: errs.append(f"[{name}] vmcnt overflow at '{it.text}'")
            for r in it.defs: pend[r] = it
        elif it.kind in ('ds', 'smem'):
            lg.append(it)
            for r in it.defs: pend[r] = it
    return errs

def kernel_header(name):
    return f""".globl {name}
.p2align 8
.type {name},@function
{name}:"""

def kernel_desc(name, vgpr, sgpr, accum, kernarg=104):
    return f""".section .rodata,"a"
.p2align 6
.amdhsa_kernel {name}
  .amdhsa_next_free_vgpr {vgpr}
  .amdhsa_next_free_sgpr {sgpr}
  .amdhsa_accum_offset {accum}
  .amdhsa_group_segment_fixed_size 0
  .amdhsa_kernarg_size {kernarg}
  .amdhsa_user_sgpr_count 2
  .amdhsa_user_sgpr_kernarg_segment_ptr 1
  .amdhsa_system_sgpr_workgroup_id_x 1
  .amdhsa_float_denorm_mode_32 3
  .amdhsa_ieee_mode 0
  .amdhsa_dx10_clamp 0
.end_amdhsa_kernel
.text"""
```

```python
from asmgen import *
from layout import *

V_S    = 16
V_NEGM = 80
V_P    = 96
V_QACC = 16
V_Q    = 144
V_T    = 208
V_TS   = 216
V_L    = 224
V_U    = 228
V_THR  = 229
V_TMP  = 230
V_AK   = 238
V_AV   = 242
V_DK   = 250
V_DV   = 254
V_L16  = 14
V_AW   = 208
V_AWV  = 212
V_DW   = 216
A_O    = 0
A_XF   = 0
A_KF   = 128
A_VF   = 160
A_WF   = 128
S_K, S_V, S_WQ, S_XN, S_O = 4, 8, 12, 16, 20
S_W, S_HEAD, S_QB, S_CNT, S_KOFF, S_VOFF, S_RET, S_THR = 24, 25, 26, 27, 28, 29, 30, 32
S_M0K, S_M0V, S_T0, S_T1, S_XOFF, S_WOFF, S_OOFF, S_SCALE = 33, 34, 35, 36, 37, 38, 39, 40
LDS_K, LDS_V, SLOT = 0, 65536, 16384
LDS_BYTES = 131072
MFMA = "v_mfma_f32_16x16x32_bf16"
NG = 64
CVT_DELAY = 3

def Sreg(b, X, kb2=0, r=0): return V_S + b*32 + X*8 + kb2*4 + r
def Preg(b, X): return V_P + b*16 + X*4
def Oreg(X, db): return A_O + (X*8+db)*4
def Qreg(X, s_): return V_Q + (X*4+s_)*4

def mfma_qk(step, g):
    X, kb2, s_ = g >> 3, (g >> 2) & 1, g & 3
    b = step & 1
    d = v(Sreg(b, X, kb2), 4)
    c = v(V_NEGM + X*4, 4) if s_ == 0 else d
    return Ins(f"{MFMA} {d}, {a(A_KF + (kb2*4+s_)*4, 4)}, {v(Qreg(X, s_), 4)}, {c}")
def mfma_pv(step, g):
    db, X = g >> 2, g & 3
    d = a(Oreg(X, db), 4)
    return Ins(f"{MFMA} {d}, {a(A_VF + 4*db, 4)}, {v(Preg(step & 1, X), 4)}, {d}")
def kread(step, f):
    T, kb = step >> 1, step & 1
    slot = T & 3; kb2, s_ = f >> 2, f & 3
    return Ins(f"ds_read_b128 {a(A_KF + 4*f, 4)}, {v(V_AK + s_)} offset:{slot*SLOT + kb*8192 + kb2*4096}", lds_r=('K', slot))
def vread(step, idx):
    T, kb = step >> 1, step & 1
    slot = T & 3; db, t = idx >> 1, idx & 1
    return Ins(f"ds_read_b64_tr_b16 {a(A_VF + 4*db + 2*t, 2)}, {v(V_AV + db)} offset:{slot*SLOT + kb*8192 + t*4096}", lds_r=('V', slot))

def chunk_ops(tile, X):
    b = tile & 1; t = V_TS + b*4 + X
    ops = []
    for j in range(8):
        ops.append((2*j, Ins(f"v_exp_f32 {v(V_T+j)}, {v(Sreg(b, X, j >> 2, j & 3))}"), 'exp', j))
    ops.append((5, Ins(f"v_add_f32 {v(t)}, {v(V_T)}, {v(V_T+1)}"), 'add', 1))
    for j in range(2, 8):
        ops.append((2*j + 3, Ins(f"v_add_f32 {v(t)}, {v(t)}, {v(V_T+j)}"), 'add', j))
    for jj in range(4):
        ops.append((4*jj + CVT_DELAY, Ins(f"v_cvt_pk_bf16_f32 {v(Preg(b, X) + jj)}, {v(V_T+2*jj)}, {v(V_T+2*jj+1)}"), 'cvt', jj))
    return ops

class AttnGen:
    def __init__(self, stamps=False, opts=None):
        self.o = dict(cvt_delay=3, nodma=0, nobar=0, novread=0, nokread=0, nocheck=0, noexp=0, noadd=0, nocvt=0, dmag=(49,53,57,61), pvorder=0)
        if opts: self.o.update(opts)
        global CVT_DELAY; CVT_DELAY = self.o['cvt_delay']
        self.stamps = stamps; self.nst = 0
        self.p = Prog()
        self.rare = {}; self.tramps = []; self.replay = []
    def emit(self, ins): self.p.add(ins); return ins
    def I(self, text, **kw): return self.emit(Ins(text, **kw))
    def stamp(self, real=False):
        if not self.stamps: return
        r = 44 + 2*self.nst; self.nst += 1
        self.I(f"{'s_memrealtime' if real else 's_memtime'} {s(r,2)}")
        self.I("s_waitcnt lgkmcnt(0)")
    def stamp_store(self):
        if not self.stamps: return
        I = self.I
        I("s_waitcnt vmcnt(0)")
        self.stamp(); self.stamp(real=True)
        I(f"s_load_dwordx2 s[70:71], s[0:1], {ARG_WS}")
        I("s_waitcnt lgkmcnt(0)")
        I(f"s_add_u32 s76, s70, {40*MB}"); I("s_addc_u32 s77, s71, 0")
        I("s_mov_b32 s78, 0x100000"); I("s_mov_b32 s79, 0x20000")
        I(f"s_lshl_b32 s74, s2, 2"); I(f"s_add_u32 s74, s74, {s(S_W)}"); I("s_lshl_b32 s74, s74, 6")
        for k in range(self.nst):
            I(f"v_mov_b32 v1, {s(44+2*k)}")
            I("v_mov_b32 v2, 0")
            I(f"buffer_store_dword v1, v2, s[76:79], s74 offen offset:{4*k}")

    G0 = 12
    HOLE = 63
    def build_valu(self):
        sched = {}
        for n in range(0, 64):
            for X in range(4):
                G0 = (n-1)*NG + self.G0 + 16*X
                for (j, ins, kind, idx) in chunk_ops(n, X):
                    G = G0 + j
                    st, g = divmod(G, NG)
                    if (st & 1) == 1 and g == self.HOLE:
                        G += 1
                    sched.setdefault(G, []).append((n, X, ins, kind))
        for G in sched:
            sched[G].sort(key=lambda x: (x[3] == 'exp', x[0], x[1]))
        return sched

    def check_site(self, tile, started):
        replay = [ins for (n, X, ins, kind) in self.replay]
        b1 = tile & 1; b2 = b1 ^ 1
        key = (b1, tuple(started), tuple(i.text for i in replay))
        if key not in self.rare:
            lab = f"L_rare_{len(self.rare)}"
            q = Prog(); q.L(lab)
            q.I("s_nop 15")
            for X in range(4):
                mx, t2, dl, f = V_TMP, V_TMP+1, V_TMP+2, V_TMP+3
                S0 = Sreg(b1, X)
                q.I(f"v_max3_f32 {v(mx)}, {v(S0)}, {v(S0+1)}, {v(S0+2)}")
                q.I(f"v_max3_f32 {v(mx)}, {v(mx)}, {v(S0+3)}, {v(S0+4)}")
                q.I(f"v_max3_f32 {v(mx)}, {v(mx)}, {v(S0+5)}, {v(S0+6)}")
                q.I(f"v_max_f32 {v(mx)}, {v(mx)}, {v(S0+7)}")
                for sw in ('16', '32'):
                    q.I(f"v_mov_b32 {v(t2)}, {v(mx)}")
                    q.I("s_nop 1")
                    q.I(f"v_permlane{sw}_swap_b32 {v(mx)}, {v(t2)}")
                    q.I("s_nop 0")
                    q.I(f"v_max_f32 {v(mx)}, {v(mx)}, {v(t2)}")
                q.I(f"v_max_f32 {v(dl)}, 0, {v(mx)}")
                q.I(f"v_exp_f32 {v(f)}, -{v(dl)}")
                for r in range(8): q.I(f"v_sub_f32 {v(S0+r)}, {v(S0+r)}, {v(dl)}")
                for r in range(4): q.I(f"v_sub_f32 {v(V_NEGM+X*4+r)}, {v(V_NEGM+X*4+r)}, {v(dl)}")
                if X in started:
                    for r in range(8): q.I(f"v_sub_f32 {v(Sreg(b2, X)+r)}, {v(Sreg(b2, X)+r)}, {v(dl)}")
                q.I(f"v_mul_f32 {v(V_L+X)}, {v(V_L+X)}, {v(f)}")
                for db in range(8):
                    o = Oreg(X, db)
                    for i in range(4): q.I(f"v_accvgpr_read_b32 {v(V_TMP+4+i)}, {a(o+i)}")
                    for i in range(4): q.I(f"v_mul_f32 {v(V_TMP+4+i)}, {v(V_TMP+4+i)}, {v(f)}")
                    for i in range(4): q.I(f"v_accvgpr_write_b32 {a(o+i)}, {v(V_TMP+4+i)}")
            for i in replay: q.add(Ins(i.text))
            q.I("s_nop 1")
            q.I(f"s_setpc_b64 {s(S_RET, 2)}")
            items, n = fix_hazards(q.items, name=lab)
            self.rare[key] = (lab, items)
        lab = self.rare[key][0]
        tr = self.p.newlabel("L_tramp"); back = self.p.newlabel("L_back")
        self.I(f"s_cbranch_vccnz {tr}")
        self.p.L(back)
        self.tramps.append((tr, lab, back))

    def gap_valu(self, G, sched):
        for item in sched.get(G, []):
            n, X, ins, kind = item
            if self.o['no' + kind] and G >= 0: continue
            self.emit(Ins(ins.text)); self.replay.append(item)

    def step(self, i, sched, dma_k=None, dma_v=None, last=False, barrier=False, vmw=None):
        more_k = (i + 2 <= 63)
        DMAG = {g_: k_ for k_, g_ in enumerate(self.o['dmag'])}
        if self.o['nodma']: dma_k = dma_v = None
        for g in range(NG):
            G = i*NG + g
            if g < 32:
                if not last: self.emit(mfma_qk(i+1, g))
                if g % 2 == 1 and not self.o['novread']: self.emit(vread(i, g >> 1))
            else:
                self.emit(mfma_pv(i, g - 32))
                if g % 2 == 1 and g < 48 and more_k and not self.o['nokread']: self.emit(kread(i+2, (g - 33) >> 1))
                if g in DMAG:
                    if dma_k is not None: self.emit_dma('K', dma_k, DMAG[g])
                    if dma_v is not None: self.emit_dma('V', dma_v, DMAG[g])
            if g == self.HOLE and barrier:
                self.I(f"s_waitcnt vmcnt({vmw}) lgkmcnt(0)")
                if not self.o['nobar']: self.I("s_barrier")
                assert not sched.get(G), sched.get(G)
                continue
            if g == 63: self.I("s_waitcnt lgkmcnt(0)")
            if g == 31: self.I("s_waitcnt lgkmcnt(8)")
            if g == 47: self.I(f"s_waitcnt lgkmcnt({8 if more_k else 0})")
            if g == self.o['dmag'][0] - 1 and dma_k is not None: self.I(f"s_add_u32 m0, {s(S_M0K)}, {(dma_k & 3)*SLOT}")
            if g == self.o['dmag'][0] - 1 and dma_v is not None: self.I(f"s_add_u32 m0, {s(S_M0V)}, {(dma_v & 3)*SLOT}")
            if g == self.o['dmag'][3] + 1 and dma_k is not None: self.I(f"s_add_u32 {s(S_KOFF)}, {s(S_KOFF)}, {SLOT}")
            if g == self.o['dmag'][3] + 1 and dma_v is not None: self.I(f"s_add_u32 {s(S_VOFF)}, {s(S_VOFF)}, {SLOT}")
            self.gap_valu(G, sched)
            if g == 14:
                tb = V_TS + (i & 1)*4
                self.I(f"v_max3_f32 {v(V_U)}, {v(tb)}, {v(tb+1)}, {v(tb+2)}")
            if g == 15:
                self.I(f"v_max_f32 {v(V_U)}, {v(V_U)}, {v(V_TS + (i & 1)*4 + 3)}")
            if g == 17:
                self.I(f"v_cmp_nle_f32 vcc, {v(V_U)}, {v(V_THR)}")
            if g == 23:
                self.check_site(i, [] if last else [0, 1, 2])
                self.replay = [x for x in self.replay if x[0] != i]
            if g == 16: pass
            if g in (25, 27, 29, 31):
                X = (g - 25) >> 1
                self.I(f"v_add_f32 {v(V_L+X)}, {v(V_L+X)}, {v(V_TS + (i & 1)*4 + X)}")

    def emit_dma(self, which, tile, jj):
        slot = tile & 3
        if which == 'K':
            self.I(f"buffer_load_dwordx4 {v(V_DK+jj)}, {s(S_K,4)}, {s(S_KOFF)} offen offset:{jj*1024} lds", lds_w=('K', slot))
        else:
            self.I(f"buffer_load_dwordx4 {v(V_DV+(jj&1))}, {s(S_V,4)}, {s(S_VOFF)} offen offset:{jj*1024} lds", lds_w=('V', slot))

    def prologue_setup(self):
        I = self.I
        I("s_cmp_ge_u32 s2, 256")
        I("s_cbranch_scc1 L_attn_end")
        I(f"s_load_dwordx2 {s(S_K,2)}, s[0:1], {ARG_K}")
        I(f"s_load_dwordx2 {s(S_V,2)}, s[0:1], {ARG_V}")
        I(f"s_load_dwordx2 {s(S_WQ,2)}, s[0:1], {ARG_WQ}")
        I(f"s_load_dwordx2 {s(S_XN,2)}, s[0:1], {ARG_WS}")
        I(f"v_lshrrev_b32 v1, 6, v0")
        I(f"s_and_b32 {s(S_T0)}, s2, 7")
        I(f"v_readfirstlane_b32 {s(S_W)}, v1")
        I(f"s_lshr_b32 {s(S_T1)}, s2, 3")
        I(f"s_and_b32 {s(S_HEAD)}, {s(S_T1)}, 3")
        I(f"s_lshl_b32 {s(S_T0)}, {s(S_T0)}, 2")
        I(f"s_add_u32 {s(S_HEAD)}, {s(S_HEAD)}, {s(S_T0)}")
        I(f"s_lshr_b32 {s(S_QB)}, s2, 5")
        I("v_and_b32 v1, 63, v0")
        I(f"v_lshlrev_b32 {v(V_L16)}, 4, v1")
        I("v_and_b32 v2, 15, v1")
        I("v_lshrrev_b32 v5, 4, v1")
        I("v_xor_b32 v4, v5, v2"); I("v_lshlrev_b32 v4, 4, v4"); I("v_lshl_add_u32 v4, v2, 8, v4")
        for s_ in range(4): I(f"v_xor_b32 {v(V_AK+s_)}, {s_ << 6}, v4")
        I("v_lshrrev_b32 v6, 2, v1"); I("v_and_b32 v6, 3, v6")
        I("v_lshl_add_u32 v7, v5, 2, v6")
        I("v_and_b32 v8, 7, v7")
        I("v_and_b32 v9, 3, v1")
        I("v_lshlrev_b32 v10, 8, v7")
        I("v_lshl_add_u32 v11, v8, 5, v10"); I("v_lshl_add_u32 v11, v9, 3, v11")
        I(f"v_add_u32 v11, {LDS_V}, v11")
        for db in range(8): I(f"v_xor_b32 {v(V_AV+db)}, {db << 5}, v11")
        I("v_lshlrev_b32 v12, 1, v8"); I("v_xor_b32 v12, v12, v9"); I("v_lshl_add_u32 v12, v12, 4, v10")
        for e in range(4):
            I(f"v_xor_b32 {v(V_AW+e)}, {e << 6}, v12")
            I(f"v_add_u32 {v(V_AWV+e)}, {LDS_V}, {v(V_AW+e)}")
        for jj in range(4):
            I(f"v_add_u32 v8, {4*jj}, v5"); I("v_xor_b32 v8, v8, v2"); I("v_lshlrev_b32 v8, 4, v8")
            I(f"v_lshl_add_u32 {v(V_DK+jj)}, v5, 8, v8")
        for pj in range(2):
            I(f"v_add_u32 v8, {4*pj}, v5"); I("v_lshlrev_b32 v8, 1, v8"); I("v_xor_b32 v8, v8, v2"); I("v_lshlrev_b32 v8, 4, v8")
            I(f"v_lshl_add_u32 {v(V_DV+pj)}, v5, 8, v8")
            I(f"v_lshl_add_u32 {v(V_DW+pj)}, v5, 13, v8")
        I("s_waitcnt lgkmcnt(0)")
        I(f"s_lshl_b32 {s(S_T0)}, {s(S_HEAD)}, 19")
        for S_ in (S_K, S_V):
            I(f"s_add_u32 {s(S_)}, {s(S_)}, {s(S_T0)}"); I(f"s_addc_u32 {s(S_+1)}, {s(S_+1)}, 0")
            I(f"s_mov_b32 {s(S_+2)}, 0x80000"); I(f"s_mov_b32 {s(S_+3)}, 0x20000")
        I(f"s_add_u32 {s(S_O)}, {s(S_XN)}, {WS_O}"); I(f"s_addc_u32 {s(S_O+1)}, {s(S_XN+1)}, 0")
        I(f"s_mov_b32 {s(S_O+2)}, 0x1000000"); I(f"s_mov_b32 {s(S_O+3)}, 0x20000")
        I(f"s_mov_b32 {s(S_XN+2)}, 0x200000"); I(f"s_mov_b32 {s(S_XN+3)}, 0x20000")
        I(f"s_lshl_b32 {s(S_T0)}, {s(S_HEAD)}, 8")
        I(f"s_add_u32 {s(S_WQ)}, {s(S_WQ)}, {s(S_T0)}"); I(f"s_addc_u32 {s(S_WQ+1)}, {s(S_WQ+1)}, 0")
        I(f"s_sub_u32 {s(S_WQ+2)}, 0x400000, {s(S_T0)}"); I(f"s_mov_b32 {s(S_WQ+3)}, 0x20000")
        I(f"s_lshl_b32 {s(S_T0)}, {s(S_W)}, 12")
        I(f"s_mov_b32 {s(S_M0K)}, {s(S_T0)}")
        I(f"s_add_u32 {s(S_M0V)}, {s(S_T0)}, {LDS_V}")
        I(f"s_mov_b32 {s(S_KOFF)}, {s(S_T0)}")
        I(f"s_mov_b32 {s(S_VOFF)}, {s(S_T0)}")
        I(f"s_lshl_b32 {s(S_T1)}, {s(S_QB)}, 4"); I(f"s_lshl_b32 {s(S_XOFF)}, {s(S_W)}, 2")
        I(f"s_add_u32 {s(S_T1)}, {s(S_T1)}, {s(S_XOFF)}")
        I(f"s_lshl_b32 {s(S_XOFF)}, {s(S_T1)}, 14")
        I(f"s_lshl_b32 {s(S_OOFF)}, {s(S_T1)}, 17"); I(f"s_lshl_b32 {s(S_T0)}, {s(S_HEAD)}, 12")
        I(f"s_add_u32 {s(S_OOFF)}, {s(S_OOFF)}, {s(S_T0)}")
        I(f"s_lshl_b32 {s(S_WOFF)}, {s(S_W)}, 17")
        I(f"s_mov_b32 {s(S_THR)}, 0x46000000")
        I(f"v_mov_b32 {v(V_THR)}, {s(S_THR)}")
        I(f"s_mov_b32 {s(S_SCALE)}, 0x3e0293ee")
        I(f"s_mov_b32 {s(S_SCALE+1)}, 0x3e0293ee")

    WSLOT = [('K', 0), ('K', 1), ('V', 0), ('K', 2), ('V', 1), ('V', 2), ('K', 3), ('V', 3)]
    def wq_dma(self, c):
        reg, slot = self.WSLOT[c]
        base = S_M0K if reg == 'K' else S_M0V
        self.I(f"s_add_u32 m0, {s(base)}, {slot*SLOT}")
        for jj in range(4):
            self.I(f"s_add_u32 {s(S_T0)}, {s(S_WOFF)}, {(64*c + 4*jj)*8192 - jj*1024}")
            self.I(f"buffer_load_dwordx4 {v(V_DW+(jj&1))}, {s(S_WQ,4)}, {s(S_T0)} offen offset:{jj*1024} lds", lds_w=(reg, slot))
    def xn_loads(self, c):
        for X in range(4):
            self.I(f"s_add_u32 {s(S_T1)}, {s(S_XOFF)}, {X*16384 + c*2048}")
            for e2 in range(2):
                r = A_XF + (c & 3)*32 + (e2*4 + X)*4
                self.I(f"buffer_load_dwordx4 {a(r,4)}, {v(V_L16)}, {s(S_XN,4)}, {s(S_T1)} offen offset:{e2*1024}")
    def wread(self, rho):
        phi, t = rho >> 1, rho & 1
        c, e2, nb = phi >> 4, (phi >> 3) & 1, phi & 7
        ep, b = nb >> 1, nb & 1
        reg, slot = self.WSLOT[c]
        ar = (V_AW if reg == 'K' else V_AWV) + ep
        f = phi & 15
        return Ins(f"ds_read_b64_tr_b16 {a(A_WF + 4*f + 2*t, 2)}, {v(ar)} offset:{slot*SLOT + e2*8192 + t*4096 + 8*b}", lds_r=(reg, slot))
    def kv_tile_dma(self, which, tile):
        base = S_M0K if which == 'K' else S_M0V
        self.I(f"s_add_u32 m0, {s(base)}, {(tile & 3)*SLOT}")
        self.I("s_nop 0")
        for jj in range(4): self.emit_dma(which, tile, jj)
        off = S_KOFF if which == 'K' else S_VOFF
        self.I(f"s_add_u32 {s(off)}, {s(off)}, {SLOT}")

    def qproj(self):
        I = self.I
        for c in range(4):
            self.wq_dma(c); self.xn_loads(c)
        for c in range(4, 7): self.wq_dma(c)
        LAGF = 8
        NM = 512
        after_chunk = {0: ('K', 0), 1: ('K', 1), 2: ('V', 0), 3: ('K', 2), 4: ('V', 1), 5: ('V', 2)}
        vmq = []
        for c in range(4): vmq += [('w', c)]*4 + [('x', c)]*8
        for c in range(4, 7): vmq += [('w', c)]*4
        def wait_for(kind, c):
            idx = max(i for i, e in enumerate(vmq) if e == (kind, c))
            return len(vmq) - 1 - idx
        I(f"s_waitcnt vmcnt({wait_for('w', 0)})")
        I("s_barrier")
        for rho in range(2*LAGF): self.emit(self.wread(rho))
        I(f"s_waitcnt vmcnt({wait_for('x', 0)})")
        nread = 2*LAGF
        for mu in range(NM):
            phi, X = mu >> 2, mu & 3
            c, e2, nb = phi >> 4, (phi >> 3) & 1, phi & 7
            g = mu & 63
            if mu % 16 == 0:
                I(f"s_waitcnt lgkmcnt({min(15, nread - 2*(phi+4))})")
            d = v(V_QACC + (X*8+nb)*4, 4)
            cc = "0" if (c == 0 and e2 == 0) else d
            xf = A_XF + (c & 3)*32 + (e2*4 + X)*4
            I(f"{MFMA} {d}, {a(A_WF + 4*(phi & 15), 4)}, {a(xf, 4)}, {cc}")
            if mu % 2 == 1 and nread < 256:
                if nread % 32 == 0:
                    I(f"s_waitcnt vmcnt({wait_for('w', nread >> 5)})")
                    I("s_barrier")
                self.emit(self.wread(nread)); nread += 1
            if g == 63 and c + 1 < 8:
                I(f"s_waitcnt vmcnt({wait_for('x', c+1)})")
            if g == 36 and c >= 1 and (c - 1) in after_chunk:
                w_, t_ = after_chunk[c - 1]
                self.kv_tile_dma(w_, t_); vmq += [('kv', (w_, t_))]*4
            if g == 2 and c >= 1 and c + 3 < 8:
                self.xn_loads(c + 3); vmq += [('x', c + 3)]*8
            if g == 6 and c == 0:
                self.wq_dma(7); vmq += [('w', 7)]*4
        self.vmq = vmq

    def q_convert_and_first_tile(self, sched):
        I = self.I
        I("s_nop 7")
        vmq = self.vmq
        idx = max(max(i for i, e in enumerate(vmq) if e == ('kv', kk)) for kk in (('K', 0), ('K', 1), ('V', 0)))
        I(f"s_waitcnt vmcnt({len(vmq) - 1 - idx})")
        I("s_barrier")
        for f in range(8): self.emit(kread(0, f))
        for X in range(4):
            for nb in range(8):
                base = V_QACC + (X*8+nb)*4
                for r in range(0, 4, 2): I(f"v_pk_mul_f32 {v(base+r,2)}, {v(base+r,2)}, {s(S_SCALE,2)}")
            for s_ in range(4):
                for b in range(2):
                    base = V_QACC + (X*8+2*s_+b)*4
                    for jj in range(2):
                        I(f"v_cvt_pk_bf16_f32 {v(Qreg(X, s_) + 2*b + jj)}, {v(base+2*jj)}, {v(base+2*jj+1)}")
        I("s_waitcnt lgkmcnt(0)")
        zi = 0
        for g in range(32):
            X, kb2, s_ = g >> 3, (g >> 2) & 1, g & 3
            d = v(Sreg(0, X, kb2), 4)
            I(f"{MFMA} {d}, {a(A_KF + (kb2*4+s_)*4, 4)}, {v(Qreg(X, s_), 4)}, {'0' if s_ == 0 else d}")
            for z in range(4):
                I(f"v_accvgpr_write_b32 {a(A_O + zi)}, 0"); zi += 1
        for f in range(8): self.emit(kread(1, f))
        for X in range(4): I(f"v_mov_b32 {v(V_L+X)}, 0")
        I("s_nop 3")
        for X in range(4):
            mx, t2 = V_TMP, V_TMP+1
            S0 = Sreg(0, X)
            I(f"v_max3_f32 {v(mx)}, {v(S0)}, {v(S0+1)}, {v(S0+2)}")
            I(f"v_max3_f32 {v(mx)}, {v(mx)}, {v(S0+3)}, {v(S0+4)}")
            I(f"v_max3_f32 {v(mx)}, {v(mx)}, {v(S0+5)}, {v(S0+6)}")
            I(f"v_max_f32 {v(mx)}, {v(mx)}, {v(S0+7)}")
            for sw in ('16', '32'):
                I(f"v_mov_b32 {v(t2)}, {v(mx)}")
                I("s_nop 1")
                I(f"v_permlane{sw}_swap_b32 {v(mx)}, {v(t2)}")
                I("s_nop 0")
                I(f"v_max_f32 {v(mx)}, {v(mx)}, {v(t2)}")
            for r in range(8): I(f"v_sub_f32 {v(S0+r)}, {v(S0+r)}, {v(mx)}")
            for r in range(4): I(f"v_sub_f32 {v(V_NEGM+X*4+r)}, 0, {v(mx)}")
        for g in range(self.G0, NG):
            self.gap_valu(-NG + g, sched)
        I("s_waitcnt lgkmcnt(0)")

    def epilogue(self):
        I = self.I
        I("s_nop 7")
        for X in range(4):
            l, t2 = V_L + X, V_TMP
            for sw in ('16', '32'):
                I(f"v_mov_b32 {v(t2)}, {v(l)}")
                I("s_nop 1")
                I(f"v_permlane{sw}_swap_b32 {v(l)}, {v(t2)}")
                I("s_nop 0")
                I(f"v_add_f32 {v(l)}, {v(l)}, {v(t2)}")
            I(f"v_rcp_f32 {v(l)}, {v(l)}")
        stage = 16; n = 0
        for X in range(4):
            if X > 0: I(f"s_add_u32 {s(S_OOFF)}, {s(S_OOFF)}, 131072")
            for e in range(4):
                f = stage + (n % 4)*12; n += 1
                for j in range(8): I(f"v_accvgpr_read_b32 {v(f+j)}, {a(Oreg(X, 2*e + (j >> 2)) + (j & 3))}")
                for j in range(8): I(f"v_mul_f32 {v(f+j)}, {v(f+j)}, {v(V_L+X)}")
                for jj in range(4): I(f"v_cvt_pk_bf16_f32 {v(f+8+jj)}, {v(f+2*jj)}, {v(f+2*jj+1)}")
                I(f"buffer_store_dwordx4 {v(f+8,4)}, {v(V_L16)}, {s(S_O,4)}, {s(S_OOFF)} offen offset:{e*1024}")

    def gen(self, name="attn_kernel"):
        p = self.p
        p.raw(kernel_header(name))
        sched = self.build_valu()
        n0 = len(p.items)
        self.stamp(real=True); self.stamp()
        self.prologue_setup()
        self.stamp()
        self.qproj()
        self.stamp()
        self.q_convert_and_first_tile(sched)
        self.stamp()
        pro, npad = fix_hazards(p.items[n0:], name='pro')
        p.items[n0:] = pro
        self.I(f"s_mov_b32 {s(S_CNT)}, 7")
        p.raw(".p2align 6")
        p.L("L_attn_loop")
        loop_start = len(p.items)
        replay_at_entry = list(self.replay)
        for T in range(4):
            self.step(2*T, sched, dma_k=T+3)
            self.step(2*T+1, sched, dma_v=T+3, barrier=True, vmw=8)
        self.I(f"s_sub_u32 {s(S_CNT)}, {s(S_CNT)}, 1")
        self.I(f"s_cmp_lg_u32 {s(S_CNT)}, 0")
        self.I("s_cbranch_scc1 L_attn_loop")
        loop_end = len(p.items)
        ent = [(n, k, ins.text) for (n, k, ins, kind) in replay_at_entry]
        ext = [(n - 8, k, ins.text) for (n, k, ins, kind) in self.replay]
        assert ent == ext or any(self.o[x] for x in ('noexp', 'noadd', 'nocvt')), (ent, ext)
        self.replay = [(n - 8 + 56, k, ins, kind) for (n, k, ins, kind) in self.replay]
        tail_start = len(p.items)
        for T in range(28, 32):
            dk = T + 3 if T + 3 <= 31 else None
            lastT = (T == 31)
            vmw = 8 if dk is not None else 0
            self.step(2*T, sched, dma_k=dk)
            self.step(2*T+1, sched, dma_v=dk, barrier=not lastT, vmw=vmw, last=lastT)
        self.stamp()
        self.epilogue()
        self.stamp_store()
        tail, npad2 = fix_hazards(p.items[tail_start:], name='tail', verbose=True)
        p.items[tail_start:] = tail
        p.L("L_attn_end")
        self.I("s_endpgm")
        for (tr, lab, back) in self.tramps:
            p.L(tr); self.I(f"s_call_b64 {s(S_RET,2)}, {lab}"); self.I(f"s_branch {back}")
        for key, (lab, items) in self.rare.items(): p.extend(items)
        ins = lambda seq: [i for i in seq if isinstance(i, Ins)]
        body = ins(p.items[loop_start:loop_end])
        trace = ins(p.items[n0:loop_start]) + body + body + ins(p.items[loop_end:loop_end + len(tail) + 2])
        e1 = check_hazards(trace, name); e2 = check_waitcnt(trace, name)
        self.stats = dict(pro=len(ins(pro)), loop=len(body), tail=len(ins(tail)), npad=npad, npad2=npad2, rare=len(self.rare))
        return p.text(), kernel_desc(name, 512, 96, 256), e1 + e2

if __name__ == "__main__":
    g = AttnGen(); t, d, errs = g.gen()
    print(g.stats)
    for e in errs[:40]: print(e)
    print(len(errs), "errors")
```

```python
from asmgen import *
from layout import *
import math
from k_gemm import f2u
MFMA = "v_mfma_f32_16x16x32_bf16"
D = 6
def gen_final(name="final_kernel", with_b=True, lds_bytes=131072):
    p = Prog(); I = p.I
    p.raw(kernel_header(name))
    end = f"L_{name}_end"
    SW, SX = 4, 8
    SW2, SX2 = 12, 16
    SX1, SXIN, SOUT = 20, 24, 28
    sw, sT0, sT1, sWOFF, sXOFF, sM0, sPF, sCNT, sWOFF2, sXOFF2, sRT, sCT = 32, 33, 34, 35, 36, 37, 38, 39, 40, 41, 42, 43
    VAA = 16
    VAB = 18
    VDW = 19
    VL16 = 14
    VA = 32
    VB = 64
    ACCB, ACCS = 96, 112
    I("s_cmp_ge_u32 s2, 256"); I(f"s_cbranch_scc1 {end}")
    I(f"s_load_dwordx2 {s(SW,2)}, s[0:1], {ARG_W4}")
    I(f"s_load_dwordx2 {s(SW2,2)}, s[0:1], {ARG_WO}")
    I(f"s_load_dwordx2 {s(SX,2)}, s[0:1], {ARG_WS}")
    I(f"s_load_dwordx2 {s(SXIN,2)}, s[0:1], {ARG_X}")
    I(f"s_load_dwordx2 {s(SOUT,2)}, s[0:1], {ARG_OUT}")
    I("v_lshrrev_b32 v1, 6, v0"); I("s_nop 0"); I(f"v_readfirstlane_b32 {s(sw)}, v1")
    I("v_and_b32 v1, 63, v0"); I(f"v_lshlrev_b32 {v(VL16)}, 4, v1")
    I(f"s_and_b32 {s(sT0)}, s2, 7"); I(f"s_lshr_b32 {s(sT1)}, s2, 3")
    I(f"s_and_b32 {s(sCT)}, {s(sT1)}, 7"); I(f"s_lshr_b32 {s(sT1)}, {s(sT1)}, 3")
    I(f"s_lshl_b32 {s(sT0)}, {s(sT0)}, 2"); I(f"s_add_u32 {s(sRT)}, {s(sT0)}, {s(sT1)}")
    I("v_and_b32 v2, 15, v1"); I("v_lshrrev_b32 v5, 4, v1")
    I("v_lshrrev_b32 v6, 2, v1"); I("v_and_b32 v6, 3, v6")
    I("v_lshl_add_u32 v7, v5, 2, v6")
    I("v_lshrrev_b32 v8, 1, v7"); I("v_and_b32 v8, 3, v8")
    I("v_and_b32 v9, 3, v1")
    I("v_lshlrev_b32 v10, 7, v7"); I("v_lshl_add_u32 v10, v8, 5, v10"); I("v_lshl_add_u32 v10, v9, 3, v10")
    I(f"s_and_b32 {s(sT0)}, {s(sw)}, 1"); I(f"s_lshl_b32 {s(sT0)}, {s(sT0)}, 1")
    for cb in range(2):
        I(f"s_add_u32 {s(sT1)}, {s(sT0)}, {cb}"); I(f"s_lshl_b32 {s(sT1)}, {s(sT1)}, 5"); I(f"v_xor_b32 {v(VAA+cb)}, {s(sT1)}, v10")
    I(f"s_lshr_b32 {s(sT0)}, {s(sw)}, 1"); I(f"s_lshl_b32 {s(sT0)}, {s(sT0)}, 12"); I(f"s_add_u32 {s(sT0)}, {s(sT0)}, 8192")
    I(f"v_add_u32 {v(VAB)}, {s(sT0)}, {v(VL16)}")
    I("v_lshrrev_b32 v6, 3, v1"); I("v_and_b32 v7, 7, v1"); I("v_lshrrev_b32 v8, 1, v6"); I("v_lshlrev_b32 v8, 1, v8"); I("v_xor_b32 v8, v8, v7")
    I("v_lshlrev_b32 v8, 4, v8"); I(f"v_lshl_add_u32 {v(VDW)}, v6, 10, v8")
    I("s_waitcnt lgkmcnt(0)")
    def srd(dst, lo, off, size):
        if off is not None:
            I(f"s_add_u32 {s(dst)}, {s(lo)}, {off}"); I(f"s_addc_u32 {s(dst+1)}, {s(lo+1)}, 0")
        I(f"s_mov_b32 {s(dst+2)}, {size}"); I(f"s_mov_b32 {s(dst+3)}, 0x20000")
    srd(SX2, SX, WS_O, 16*MB); srd(SX1, SX, WS_X1, 2*MB); srd(SX, SX, WS_H2, 2048*1792*2)
    srd(SW, SW, None, 1792*1024); srd(SW2, SW2, None, 4096*1024); srd(SXIN, SXIN, None, 2*MB); srd(SOUT, SOUT, None, 2*MB)
    I(f"s_lshl_b32 {s(sWOFF)}, {s(sw)}, 14"); I(f"s_lshl_b32 {s(sT0)}, {s(sCT)}, 7"); I(f"s_add_u32 {s(sWOFF)}, {s(sWOFF)}, {s(sT0)}")
    I(f"s_mov_b32 {s(sWOFF2)}, {s(sWOFF)}")
    I(f"s_lshl_b32 {s(sT0)}, {s(sRT)}, 2"); I(f"s_add_u32 {s(sT0)}, {s(sT0)}, {s(sw)}")
    I(f"s_mul_i32 {s(sXOFF)}, {s(sT0)}, {56*1024}"); I(f"s_lshl_b32 {s(sXOFF2)}, {s(sT0)}, 17")
    I(f"s_lshl_b32 {s(sM0)}, {s(sw)}, 11")
    I(f"s_mov_b32 {s(sPF)}, 0")
    if not with_b:
        for k in range(4): I(f"s_mov_b32 {s(SW+k)}, {s(SW2+k)}"); I(f"s_mov_b32 {s(SX+k)}, {s(SX2+k)}")
        I(f"s_mov_b32 {s(sXOFF)}, {s(sXOFF2)}")
    nsw = [0]
    def dma(slot, static_switch=None):
        o = (slot & 3)*16384
        I(f"s_add_u32 m0, {s(sM0)}, {o}")
        I(f"s_add_u32 {s(sT0)}, {s(sWOFF)}, {8192 - 1024}")
        I(f"buffer_load_dwordx4 {v(VDW)}, {s(SW,4)}, {s(sWOFF)} offen lds", lds_w=('R', slot))
        I(f"buffer_load_dwordx4 {v(VDW)}, {s(SW,4)}, {s(sT0)} offen offset:1024 lds", lds_w=('R', slot))
        I(f"s_add_u32 m0, {s(sM0)}, {o + 8192}")
        I(f"s_add_u32 {s(sWOFF)}, {s(sWOFF)}, 65536")
        I(f"buffer_load_dwordx4 {v(VL16)}, {s(SX,4)}, {s(sXOFF)} offen lds", lds_w=('R', slot))
        I(f"buffer_load_dwordx4 {v(VL16)}, {s(SX,4)}, {s(sXOFF)} offen offset:1024 lds", lds_w=('R', slot))
        I(f"s_add_u32 {s(sXOFF)}, {s(sXOFF)}, 2048")
        if with_b:
            I(f"s_add_u32 {s(sPF)}, {s(sPF)}, 1"); I(f"s_cmp_eq_u32 {s(sPF)}, 28")
            lab = f"L_{name}_sw{nsw[0]}"; nsw[0] += 1
            I(f"s_cbranch_scc0 {lab}")
            for k in range(4): I(f"s_mov_b32 {s(SW+k)}, {s(SW2+k)}"); I(f"s_mov_b32 {s(SX+k)}, {s(SX2+k)}")
            I(f"s_mov_b32 {s(sWOFF)}, {s(sWOFF2)}"); I(f"s_mov_b32 {s(sXOFF)}, {s(sXOFF2)}")
            p.L(lab)
    for c in range(D):
        if c == 4: I(f"s_xor_b32 {s(sM0)}, {s(sM0)}, 0x10000")
        dma(c)
    def body(acc, first, base_slot):
        for k in range(4):
            slot = base_slot + k
            I(f"s_waitcnt vmcnt({4*(D-1)})"); I("s_barrier")
            pslot = (slot + D) & 7
            if (pslot & 3) == 0: I(f"s_xor_b32 {s(sM0)}, {s(sM0)}, 0x10000")
            dma(pslot)
            o = k*16384; buf = (k & 1)
            for e2 in range(2):
                for cb in range(2):
                    for t in range(2):
                        I(f"ds_read_b64_tr_b16 {v(VA + buf*16 + (e2*2+cb)*4 + 2*t, 2)}, {v(VAA+cb)} offset:{o + e2*4096 + t*2048}", lds_r=('R', slot & 7))
                for rb2 in range(2):
                    I(f"ds_read_b128 {v(VB + buf*16 + (e2*2+rb2)*4, 4)}, {v(VAB)} offset:{o + rb2*2048 + e2*1024}", lds_r=('R', slot & 7))
            for e2 in range(2):
                I(f"s_waitcnt lgkmcnt({6 if e2 == 0 else 0})")
                for cb in range(2):
                    for rb2 in range(2):
                        d = v(acc + (rb2*2+cb)*4, 4)
                        c_ = '0' if (first and k == 0 and e2 == 0) else d
                        I(f"{MFMA} {d}, {v(VA + buf*16 + (e2*2+cb)*4, 4)}, {v(VB + buf*16 + (e2*2+rb2)*4, 4)}, {c_}")
        for r in (VAA, VAA+1, VAB): I(f"v_xor_b32 {v(r)}, 0x10000, {v(r)}")
    for r in range(ACCB, ACCS + 16): I(f"v_mov_b32 {v(r)}, 0")
    trace_parts = []
    pre_end = len(p.items)
    if with_b:
        I(f"s_mov_b32 {s(sCNT)}, 7")
        p.L(f"L_{name}_loopB"); b0 = len(p.items)
        body(ACCB, False, 0); b1 = len(p.items)
        I(f"s_sub_u32 {s(sCNT)}, {s(sCNT)}, 1"); I(f"s_cmp_lg_u32 {s(sCNT)}, 0"); I(f"s_cbranch_scc1 L_{name}_loopB")
    I(f"s_mov_b32 {s(sCNT)}, 16")
    p.L(f"L_{name}_loopS"); c0 = len(p.items)
    body(ACCS, False, 0); c1 = len(p.items)
    I(f"s_sub_u32 {s(sCNT)}, {s(sCNT)}, 1"); I(f"s_cmp_lg_u32 {s(sCNT)}, 0"); I(f"s_cbranch_scc1 L_{name}_loopS")
    I("s_waitcnt vmcnt(0)")
    I(f"s_lshr_b32 {s(sT0)}, {s(sw)}, 1"); I(f"s_lshl_b32 {s(sT0)}, {s(sT0)}, 1"); I(f"s_lshl_b32 {s(sT1)}, {s(sRT)}, 2"); I(f"s_add_u32 {s(sT0)}, {s(sT0)}, {s(sT1)}")
    I(f"s_and_b32 {s(sT1)}, {s(sw)}, 1"); I(f"s_lshl_b32 s44, {s(sCT)}, 1"); I(f"s_add_u32 {s(sT1)}, {s(sT1)}, s44")
    I(f"s_lshl_b32 s45, {s(sT0)}, 14"); I(f"s_lshl_b32 s46, {s(sT1)}, 10"); I("s_add_u32 s45, s45, s46")
    I(f"buffer_load_dwordx4 v[32:35], {v(VL16)}, {s(SX1,4)}, s45 offen")
    I("s_add_u32 s45, s45, 16384")
    I(f"buffer_load_dwordx4 v[36:39], {v(VL16)}, {s(SX1,4)}, s45 offen")
    I("v_lshlrev_b32 v40, 10, v2"); I("v_lshl_add_u32 v40, v5, 3, v40")
    I(f"s_lshl_b32 s45, {s(sT0)}, 14"); I(f"s_lshl_b32 s46, {s(sT1)}, 6"); I("s_add_u32 s45, s45, s46"); I("s_add_u32 s46, s45, 16384")
    for rb2 in range(2):
        for cb in range(2):
            I(f"buffer_load_dwordx2 {v(44+(rb2*2+cb)*2,2)}, v40, {s(SXIN,4)}, {'s45' if rb2 == 0 else 's46'} offen offset:{cb*32}")
    I(f"s_mov_b32 s47, 0x{f2u(-math.log2(math.e)):x}")
    I("s_waitcnt vmcnt(0)")
    for rb2 in range(2):
        for cb in range(2):
            for r in range(4):
                j = cb*4 + r
                x1src = 32 + rb2*4 + (j >> 1)
                b = ACCB + (rb2*2+cb)*4 + r; sv = ACCS + (rb2*2+cb)*4 + r
                t0, t1 = 56 + 2*r, 57 + 2*r
                I(f"v_lshlrev_b32 {v(t0)}, 16, {v(x1src)}") if (j & 1) == 0 else I(f"v_and_b32 {v(t0)}, 0xffff0000, {v(x1src)}")
                I(f"v_add_f32 {v(b)}, {v(b)}, {v(t0)}")
                I(f"v_mul_f32 {v(t0)}, s47, {v(b)}")
                I(f"v_exp_f32 {v(t0)}, {v(t0)}")
                xs = 44 + (rb2*2+cb)*2 + (r >> 1)
                I(f"v_lshlrev_b32 {v(t1)}, 16, {v(xs)}") if (r & 1) == 0 else I(f"v_and_b32 {v(t1)}, 0xffff0000, {v(xs)}")
                I(f"v_add_f32 {v(t0)}, 1.0, {v(t0)}")
                I(f"v_rcp_f32 {v(t0)}, {v(t0)}")
                I(f"v_mul_f32 {v(sv)}, {v(sv)}, {v(b)}")
                I(f"v_fma_f32 {v(sv)}, {v(sv)}, {v(t0)}, {v(t1)}")
            x = ACCS + (rb2*2+cb)*4
            I(f"v_cvt_pk_bf16_f32 {v(64+(rb2*2+cb)*2)}, {v(x)}, {v(x+1)}"); I(f"v_cvt_pk_bf16_f32 {v(65+(rb2*2+cb)*2)}, {v(x+2)}, {v(x+3)}")
            I(f"buffer_store_dwordx2 {v(64+(rb2*2+cb)*2,2)}, v40, {s(SOUT,4)}, {'s45' if rb2 == 0 else 's46'} offen offset:{cb*32}")
    p.L(end); I("s_endpgm")
    items, n = fix_hazards(p.items, name=name); p.items = items
    ins = [i for i in p.items if isinstance(i, Ins)]
    errs = check_hazards(ins + [], name)
    return p.text(), kernel_desc(name, 128, 64, 128), errs

if __name__ == "__main__":
    t, d, e = gen_final(); print(len(t.splitlines()), e[:10])
```

```python
from asmgen import *
from layout import *
MFMA = "v_mfma_f32_16x16x32_bf16"

def gelu_ops(I, x, t0, t1, SC0, SC1):
    I(f"v_mul_f32 {v(t0)}, {v(x)}, {v(x)}")
    I(f"v_fma_f32 {v(t0)}, {v(t0)}, {SC1}, {SC0}")
    I(f"v_mul_f32 {v(t0)}, {v(t0)}, {v(x)}")
    I(f"v_exp_f32 {v(t0)}, {v(t0)}")
    I(f"v_add_f32 {v(t0)}, 1.0, {v(t0)}")
    I(f"v_rcp_f32 {v(t0)}, {v(t0)}")
    I(f"v_mul_f32 {v(x)}, {v(x)}, {v(t0)}")

def interleave(lists):
    out = []
    for k in range(max(len(l) for l in lists)):
        for l in lists:
            if k < len(l): out.append(l[k])
    return out

import struct, math
def f2u(x): return struct.unpack('<I', struct.pack('<f', x))[0]
GC0 = -2*math.sqrt(2/math.pi)*math.log2(math.e)
GC1 = GC0*0.044715

class Gemm128:
    def __init__(self, name, kind):
        self.name = name; self.kind = kind; self.p = Prog()
    def I(self, t, **kw): return self.p.I(t, **kw)
    def gen(self):
        I = self.I; p = self.p; kind = self.kind
        p.raw(kernel_header(self.name))
        end = f"L_{self.name}_end"
        S_W_, S_X, S_OUT, S_XN, S_ST = 4, 8, 12, 16, 20
        sw, sT0, sT1, sWOFF, sXOFF, sOOFF, sM0 = 24, 25, 26, 27, 28, 29, 30
        VX = 32
        VA = 160
        VACC = 192
        C = 2 if kind in ('j1', 'j2') else 7
        wptr = {'j1': ARG_W1, 'j2': ARG_W2, 'j3': ARG_W3}[kind]
        wstride = 3584 if kind == 'j3' else 1024
        wbytes = 512*wstride
        I("s_cmp_ge_u32 s2, 256"); I(f"s_cbranch_scc1 {end}")
        I(f"s_load_dwordx2 {s(S_W_,2)}, s[0:1], {wptr}")
        I(f"s_load_dwordx2 {s(S_X,2)}, s[0:1], {ARG_WS}")
        I("v_lshrrev_b32 v1, 6, v0"); I("s_nop 0"); I(f"v_readfirstlane_b32 {s(sw)}, v1")
        I("v_and_b32 v1, 63, v0")
        I("v_lshlrev_b32 v14, 4, v1")
        I("v_and_b32 v2, 15, v1"); I("v_lshrrev_b32 v5, 4, v1")
        I("v_lshrrev_b32 v6, 2, v1"); I("v_and_b32 v6, 3, v6")
        I("v_lshl_add_u32 v7, v5, 2, v6"); I("v_and_b32 v8, 7, v7"); I("v_and_b32 v9, 3, v1")
        I("v_lshlrev_b32 v10, 8, v7"); I("v_lshl_add_u32 v11, v8, 5, v10"); I("v_lshl_add_u32 v11, v9, 3, v11")
        VAD = 16
        if kind in ('j1', 'j2'):
            I("s_and_b32 s31, s2, 3")
            I("s_lshr_b32 s32, s2, 2")
            I(f"s_lshl_b32 {s(sT0)}, {s(sw)}, 1")
            for c in range(2):
                I(f"s_add_u32 {s(sT1)}, {s(sT0)}, {c}"); I(f"s_lshl_b32 {s(sT1)}, {s(sT1)}, 5")
                I(f"v_xor_b32 {v(VAD+c)}, {s(sT1)}, v11")
            ndb = 2
        else:
            I("s_and_b32 s31, s2, 15")
            I("s_lshr_b32 s32, s2, 4")
            for c in range(7): I(f"v_xor_b32 {v(VAD+c)}, {c << 5}, v11")
            ndb = 7
        for c in range(8): I(f"v_add_u32 {v(VAD+8+c)}, 65536, {v(VAD+c)}") if c < ndb else None
        if kind == 'j3':
            I(f"s_lshl_b32 {s(sT0)}, {s(sw)}, 1")
            for c in range(2):
                I(f"s_add_u32 {s(sT1)}, {s(sT0)}, {c}"); I(f"s_lshl_b32 {s(sT1)}, {s(sT1)}, 5")
                I(f"v_xor_b32 {v(12+c)}, {s(sT1)}, v11"); I(f"v_add_u32 {v(3+c)}, 65536, {v(12+c)}")
        I(f"s_mov_b32 {s(sT0)}, {wstride}")
        for pj in range(2):
            I(f"v_add_u32 v8, {4*pj}, v5"); I("v_lshlrev_b32 v8, 1, v8"); I("v_xor_b32 v8, v8, v2"); I("v_lshlrev_b32 v8, 4, v8")
            I(f"v_mul_lo_u32 v9, v5, {s(sT0)}"); I(f"v_add_u32 {v(6+pj)}, v9, v8")
        I("s_waitcnt lgkmcnt(0)")
        I(f"s_mul_i32 {s(sT0)}, s31, {256 if kind != 'j3' else 224}")
        I(f"s_add_u32 {s(S_W_)}, {s(S_W_)}, {s(sT0)}"); I(f"s_addc_u32 {s(S_W_+1)}, {s(S_W_+1)}, 0")
        I(f"s_sub_u32 {s(S_W_+2)}, {wbytes}, {s(sT0)}"); I(f"s_mov_b32 {s(S_W_+3)}, 0x20000")
        ws_lo, ws_hi = S_X, S_X+1
        def srd(dst, off, size):
            I(f"s_add_u32 {s(dst)}, {s(ws_lo)}, {off}"); I(f"s_addc_u32 {s(dst+1)}, {s(ws_hi)}, 0")
            I(f"s_mov_b32 {s(dst+2)}, {size}"); I(f"s_mov_b32 {s(dst+3)}, 0x20000")
        xin = {'j1': WS_XN2, 'j2': WS_H, 'j3': WS_X1}[kind]
        xout = {'j1': (WS_H, 2*MB), 'j2': (WS_X1, 2*MB), 'j3': (WS_H2, 2048*1792*2)}[kind]
        srd(S_OUT, *xout); srd(S_XN, WS_XN, 2*MB); srd(S_ST, WS_STAT, 65536)
        srd(S_X, xin, 2*MB)
        I(f"s_lshl_b32 {s(sM0)}, {s(sw)}, 12")
        I(f"s_mul_i32 {s(sWOFF)}, {s(sw)}, {16*wstride}")
        if kind in ('j1', 'j2'): I(f"s_lshl_b32 {s(sXOFF)}, s32, 1")
        else:
            I(f"s_lshl_b32 {s(sXOFF)}, s32, 3"); I(f"s_lshl_b32 {s(sT0)}, {s(sw)}, 1"); I(f"s_add_u32 {s(sXOFF)}, {s(sXOFF)}, {s(sT0)}")
        I(f"s_mov_b32 s33, {s(sXOFF)}")
        I(f"s_lshl_b32 {s(sXOFF)}, {s(sXOFF)}, 14")
        vm = []
        def wdma(c):
            I(f"s_add_u32 m0, {s(sM0)}, {c*16384}")
            for jj in range(4):
                I(f"s_add_u32 {s(sT0)}, {s(sWOFF)}, {(64*c + 4*jj)*wstride - jj*1024}")
                I(f"buffer_load_dwordx4 {v(6+(jj&1))}, {s(S_W_,4)}, {s(sT0)} offen offset:{jj*1024} lds", lds_w=('W', c)); vm.append(('w', c))
        if kind == 'j2':
            VSH = 240
            for rb2 in range(2):
                for cg, dl in enumerate((1, -1, 2, -2)):
                    I(f"s_add_u32 {s(sT0)}, s33, {rb2}"); I(f"s_lshl_b32 {s(sT0)}, {s(sT0)}, 4")
                    I(f"v_add_u32 v8, {s(sT0)}, v2")
                    I(f"v_subrev_u32 v8, {dl}, v8") if dl > 0 else I(f"v_add_u32 v8, {-dl}, v8")
                    I("v_ashrrev_i32 v9, 4, v8"); I("v_lshlrev_b32 v9, 14, v9")
                    I("v_and_b32 v8, 15, v8"); I("v_lshl_add_u32 v8, v5, 4, v8"); I(f"v_lshl_add_u32 {v(VSH+rb2*4+cg)}, v8, 4, v9")
        def xloads(e0, e1):
            for rb2 in range(2):
                for e in range(e0, e1):
                    r = VX + (rb2*16+e)*4
                    if kind == 'j2':
                        I(f"s_mov_b32 {s(sT1)}, {(e & ~3)*1024}") if (e & 3) == 0 or e == e0 else None
                        I(f"buffer_load_dwordx4 {v(r,4)}, {v(240+rb2*4+(e>>2))}, {s(S_X,4)}, {s(sT1)} offen offset:{(e&3)*1024}")
                    else:
                        if (e & 3) == 0 or e == e0: I(f"s_add_u32 {s(sT1)}, {s(sXOFF)}, {rb2*16384 + (e & ~3)*1024}")
                        I(f"buffer_load_dwordx4 {v(r,4)}, v14, {s(S_X,4)}, {s(sT1)} offen offset:{(e&3)*1024}")
                    vm.append(('x', e >> 1))
        for c in range(8):
            wdma(c); xloads(2*c, 2*c+2) if c < 4 else None
        def wait(kind_, c):
            idx = max(i for i, e in enumerate(vm) if e == (kind_, c))
            return len(vm) - 1 - idx
        if kind == 'j3':
            for r_ in range(8, 12): I(f"v_mov_b32 {v(r_)}, 0x3f803f80")
        C_ = C
        acc = lambda rb2, c: VACC + (rb2*C_ + c)*4
        csacc = lambda c: 248 + c*4
        blks = []
        for e in range(16):
            c = e >> 1; hi = (c >= 4); off = (c & 3)*16384 + (e & 1)*8192
            for cb in range(C): blks.append((e, VAD + (8 if hi else 0) + cb, cb, False, off))
            if kind == 'j3':
                for cb in range(2): blks.append((e, (3 if hi else 12) + cb, cb, True, off))
        LA = 4
        nread = 0
        def issue_read(n):
            e, ar, cb, iscs, off = blks[n]
            c = e >> 1
            if n == 0 or (blks[n-1][0] >> 1) != c:
                if c == 1: xloads(8, 12)
                if c == 2: xloads(12, 16)
                I(f"s_waitcnt vmcnt({wait('w', c)})")
                I("s_barrier")
            r = VA + (n % 8)*4
            for t in range(2):
                I(f"ds_read_b64_tr_b16 {v(r+2*t,2)}, {v(ar)} offset:{off + t*4096}", lds_r=('W', c))
        for n in range(LA): issue_read(n)
        nread = LA
        for n, (e, ar, cb, iscs, off) in enumerate(blks):
            if n == 0 or blks[n-1][0] != e:
                if (e & 1) == 0: I(f"s_waitcnt vmcnt({wait('x', e >> 1)})")
            I(f"s_waitcnt lgkmcnt({2*(nread - n - 1)})")
            r = VA + (n % 8)*4
            if iscs:
                d = v(csacc(cb), 4)
                I(f"{MFMA} {d}, {v(r,4)}, v[8:11], {'0' if e == 0 else d}")
            else:
                for rb2 in range(2):
                    d = v(acc(rb2, cb), 4)
                    I(f"{MFMA} {d}, {v(r,4)}, {v(VX+(rb2*16+e)*4,4)}, {'0' if e == 0 else d}")
            if nread < len(blks):
                issue_read(nread); nread += 1
        I("s_nop 7")
        I(f"s_mov_b32 s34, 0x{f2u(GC0):x}"); I(f"v_mov_b32 v15, 0x{f2u(GC1):x}")
        if kind == 'j1':
            I(f"s_lshl_b32 {s(sT0)}, s31, 2"); I(f"s_add_u32 {s(sT0)}, {s(sT0)}, {s(sw)}"); I(f"s_lshl_b32 {s(sT0)}, {s(sT0)}, 10")
            I(f"s_add_u32 {s(sOOFF)}, {s(sXOFF)}, {s(sT0)}")
            seqs = []
            for rb2 in range(2):
                for j in range(8):
                    q = Prog(); gelu_ops(q.I, acc(rb2, j >> 2) + (j & 3), 32 + rb2*8 + j, None, "s34", "v15"); seqs.append(q.items)
            p.extend(interleave(seqs))
            for rb2 in range(2):
                for jj in range(4):
                    x0 = acc(rb2, jj >> 1) + 2*(jj & 1)
                    I(f"v_cvt_pk_bf16_f32 {v(64+rb2*4+jj)}, {v(x0)}, {v(x0+1)}")
                I(f"buffer_store_dwordx4 {v(64+rb2*4,4)}, v14, {s(S_OUT,4)}, {s(sOOFF)} offen")
                if rb2 == 0: I(f"s_add_u32 {s(sOOFF)}, {s(sOOFF)}, 16384")
        elif kind == 'j2':
            I(f"s_lshl_b32 {s(sT0)}, s31, 2"); I(f"s_add_u32 {s(sT0)}, {s(sT0)}, {s(sw)}"); I(f"s_lshl_b32 {s(sT0)}, {s(sT0)}, 10")
            I(f"s_add_u32 {s(sOOFF)}, {s(sXOFF)}, {s(sT0)}")
            I(f"s_add_u32 {s(sT1)}, {s(sOOFF)}, 16384")
            I(f"buffer_load_dwordx4 v[32:35], v14, {s(S_XN,4)}, {s(sOOFF)} offen")
            I(f"buffer_load_dwordx4 v[36:39], v14, {s(S_XN,4)}, {s(sT1)} offen")
            I("s_waitcnt vmcnt(0)")
            for rb2 in range(2):
                src = 32 + rb2*4
                for jj in range(4):
                    x0 = acc(rb2, jj >> 1) + 2*(jj & 1)
                    I(f"v_lshlrev_b32 v40, 16, {v(src+jj)}"); I(f"v_and_b32 v41, 0xffff0000, {v(src+jj)}")
                    I(f"v_add_f32 {v(x0)}, {v(x0)}, v40"); I(f"v_add_f32 {v(x0+1)}, {v(x0+1)}, v41")
                    I(f"v_cvt_pk_bf16_f32 {v(64+rb2*4+jj)}, {v(x0)}, {v(x0+1)}")
                I(f"buffer_store_dwordx4 {v(64+rb2*4,4)}, v14, {s(S_OUT,4)}, {s(sOOFF if rb2 == 0 else sT1)} offen")
                sm, sq = 48 + rb2*2, 49 + rb2*2
                for jj in range(4):
                    I(f"v_lshlrev_b32 v40, 16, {v(64+rb2*4+jj)}"); I(f"v_and_b32 v41, 0xffff0000, {v(64+rb2*4+jj)}")
                    if jj == 0:
                        I(f"v_add_f32 {v(sm)}, v40, v41"); I(f"v_mul_f32 {v(sq)}, v40, v40")
                    else:
                        I(f"v_add_f32 {v(sm)}, {v(sm)}, v40"); I(f"v_add_f32 {v(sm)}, {v(sm)}, v41"); I(f"v_fmac_f32 {v(sq)}, v40, v40")
                    I(f"v_fmac_f32 {v(sq)}, v41, v41")
            for r_ in range(48, 52):
                for sw_ in ('16', '32'):
                    I(f"v_mov_b32 v40, {v(r_)}"); I("s_nop 1"); I(f"v_permlane{sw_}_swap_b32 {v(r_)}, v40"); I("s_nop 0"); I(f"v_add_f32 {v(r_)}, {v(r_)}, v40")
            I("s_barrier")
            I(f"s_lshl_b32 {s(sT0)}, {s(sw)}, 8")
            I("v_lshlrev_b32 v40, 3, v2"); I(f"v_add_u32 v40, {s(sT0)}, v40")
            I("ds_write_b64 v40, v[48:49]"); I("ds_write_b64 v40, v[50:51] offset:128")
            I("s_waitcnt lgkmcnt(0)"); I("s_barrier")
            I("v_lshlrev_b32 v40, 3, v1")
            for w_ in range(4): I(f"ds_read_b64 v[{52+2*w_}:{53+2*w_}], v40 offset:{w_*256}")
            I("s_waitcnt lgkmcnt(0)")
            for k_ in range(2):
                I(f"v_add_f32 {v(52+k_)}, {v(52+k_)}, {v(54+k_)}"); I(f"v_add_f32 {v(56+k_)}, {v(56+k_)}, {v(58+k_)}"); I(f"v_add_f32 {v(52+k_)}, {v(52+k_)}, {v(56+k_)}")
            I(f"s_lshl_b32 {s(sT0)}, s33, 9"); I(f"s_lshl_b32 {s(sT1)}, s31, 3"); I(f"s_add_u32 {s(sT0)}, {s(sT0)}, {s(sT1)}")
            I("v_lshlrev_b32 v40, 5, v1")
            I(f"s_cmp_lg_u32 {s(sw)}, 0"); I(f"s_cbranch_scc1 {end}")
            I("v_cmp_gt_u32 vcc, 32, v1"); I("s_and_saveexec_b64 s[36:37], vcc")
            I(f"buffer_store_dwordx2 v[52:53], v40, {s(S_ST,4)}, {s(sT0)} offen")
        else:
            I(f"s_lshl_b32 {s(sT0)}, s33, 9")
            I("v_lshlrev_b32 v40, 5, v2")
            for rb2 in range(2):
                I(f"buffer_load_dwordx4 {v(44+rb2*8,4)}, v40, {s(S_ST,4)}, {s(sT0)} offen offset:{rb2*512}")
                I(f"buffer_load_dwordx4 {v(48+rb2*8,4)}, v40, {s(S_ST,4)}, {s(sT0)} offen offset:{rb2*512+16}")
            I("s_barrier")
            I(f"s_lshl_b32 {s(sT1)}, {s(sw)}, 11")
            I(f"v_add_u32 v41, {s(sT1)}, v14")
            I(f"ds_write_b128 v41, {v(csacc(0),4)}"); I(f"ds_write_b128 v41, {v(csacc(1),4)} offset:1024")
            I("s_waitcnt lgkmcnt(0)"); I("s_barrier")
            for cb in range(7): I(f"ds_read_b128 {v(64+cb*4,4)}, v14 offset:{cb*1024}")
            I("s_waitcnt vmcnt(0)")
            I("s_mov_b32 s35, 0x3b000000"); I("v_mov_b32 v42, 0x3727c5ac")
            for rb2 in range(2):
                b = 44 + rb2*8
                I(f"v_add_f32 {v(b)}, {v(b)}, {v(b+2)}"); I(f"v_add_f32 {v(b+4)}, {v(b+4)}, {v(b+6)}"); I(f"v_add_f32 {v(b)}, {v(b)}, {v(b+4)}")
                I(f"v_add_f32 {v(b+1)}, {v(b+1)}, {v(b+3)}"); I(f"v_add_f32 {v(b+5)}, {v(b+5)}, {v(b+7)}"); I(f"v_add_f32 {v(b+1)}, {v(b+1)}, {v(b+5)}")
                I(f"v_mul_f32 {v(b)}, s35, {v(b)}")
                I(f"v_mul_f32 {v(b+1)}, s35, {v(b+1)}")
                I(f"v_fma_f32 {v(b+1)}, -{v(b)}, {v(b)}, {v(b+1)}")
                I(f"v_max_f32 {v(b+1)}, 0, {v(b+1)}")
                I(f"v_add_f32 {v(b+1)}, {v(b+1)}, v42")
                I(f"v_rsq_f32 {v(b+1)}, {v(b+1)}")
            I("s_waitcnt lgkmcnt(0)")
            I(f"s_mul_i32 {s(sOOFF)}, s33, {56*1024}")
            I("s_mul_i32 s36, s31, 7")
            for rb2 in range(2):
                b = 44 + rb2*8
                seqs = []
                for cb in range(7):
                    for r_ in range(4):
                        x = acc(rb2, cb) + r_
                        q = Prog()
                        q.I(f"v_fma_f32 {v(x)}, -{v(b)}, {v(64+cb*4+r_)}, {v(x)}")
                        q.I(f"v_mul_f32 {v(x)}, {v(x)}, {v(b+1)}")
                        gelu_ops(q.I, x, 96 + cb*4 + r_, None, "s34", "v15"); seqs.append(q.items)
                p.extend(interleave(seqs))
                for cb in range(7):
                    x = acc(rb2, cb)
                    I(f"v_cvt_pk_bf16_f32 {v(128+cb*2)}, {v(x)}, {v(x+1)}"); I(f"v_cvt_pk_bf16_f32 {v(129+cb*2)}, {v(x+2)}, {v(x+3)}")
                    I(f"s_add_u32 s37, s36, {cb}"); I("s_lshr_b32 s38, s37, 1"); I("s_lshl_b32 s38, s38, 10"); I("s_and_b32 s37, s37, 1"); I("s_lshl_b32 s37, s37, 3")
                    I("s_add_u32 s38, s38, s37"); I(f"s_add_u32 s38, s38, {s(sOOFF)}")
                    I(f"buffer_store_dwordx2 {v(128+cb*2,2)}, v14, {s(S_OUT,4)}, s38 offen")
                if rb2 == 0: I(f"s_add_u32 {s(sOOFF)}, {s(sOOFF)}, {56*1024}")
        p.L(end); I("s_endpgm")
        items, n = fix_hazards(p.items, name=self.name); p.items = items
        tr = [i for i in p.items if isinstance(i, Ins)]
        errs = check_waitcnt(tr, self.name) + check_hazards(tr, self.name)
        return p.text(), kernel_desc(self.name, 256, 64, 256), errs

if __name__ == "__main__":
    for k in ('j1', 'j2', 'j3'):
        t, d, e = Gemm128(k + "_kernel", k).gen()
        print(k, len(t.splitlines()), e[:10])
```

```python
from asmgen import *
from layout import *

def allreduce_add(p, reg, tmp):
    for ror in (8, 4, 2, 1):
        p.I(f"s_nop 1")
        p.I(f"v_add_f32_dpp {v(reg)}, {v(reg)}, {v(reg)} row_ror:{ror} row_mask:0xf bank_mask:0xf")
    p.I(f"v_mov_b32 {v(tmp)}, {v(reg)}")
    p.I("s_nop 1")
    p.I(f"v_permlane16_swap_b32 {v(reg)}, {v(tmp)}")
    p.I("s_nop 0")
    p.I(f"v_add_f32 {v(reg)}, {v(reg)}, {v(tmp)}")
    p.I(f"v_mov_b32 {v(tmp)}, {v(reg)}")
    p.I("s_nop 1")
    p.I(f"v_permlane32_swap_b32 {v(reg)}, {v(tmp)}")
    p.I("s_nop 0")
    p.I(f"v_add_f32 {v(reg)}, {v(reg)}, {v(tmp)}")

def ln_rows(p, F, nrows, S0, T0, EPS):
    inv = "0x3b000000"
    for r in range(nrows):
        f = F[r]; sm = S0 + r
        p.I(f"v_add_f32 {v(sm)}, {v(f)}, {v(f+1)}")
        for j in range(2, 8): p.I(f"v_add_f32 {v(sm)}, {v(sm)}, {v(f+j)}")
    subs = []
    for r in range(nrows):
        q = Prog(); allreduce_add(q, S0 + r, T0 + r); subs.append([i for i in q.items if i.op != 's_nop'])
    for k in range(len(subs[0])):
        for r in range(nrows): p.add(subs[r][k])
    for r in range(nrows):
        p.I(f"v_mul_f32 {v(S0+r)}, {inv}, {v(S0+r)}")
    for r in range(nrows):
        for j in range(8): p.I(f"v_sub_f32 {v(F[r]+j)}, {v(F[r]+j)}, {v(S0+r)}")
    for r in range(nrows):
        f = F[r]; sm = S0 + r
        p.I(f"v_mul_f32 {v(sm)}, {v(f)}, {v(f)}")
        for j in range(1, 8): p.I(f"v_fmac_f32 {v(sm)}, {v(f+j)}, {v(f+j)}")
    subs = []
    for r in range(nrows):
        q = Prog(); allreduce_add(q, S0 + r, T0 + r); subs.append([i for i in q.items if i.op != 's_nop'])
    for k in range(len(subs[0])):
        for r in range(nrows): p.add(subs[r][k])
    for r in range(nrows):
        p.I(f"v_fma_f32 {v(S0+r)}, {v(S0+r)}, {s(EPS+1)}, {s(EPS)}".replace(f"{s(EPS+1)}, {s(EPS)}", f"{s(EPS+1)}, {v(T0+4)}"))
    for r in range(nrows):
        p.I(f"v_rsq_f32 {v(S0+r)}, {v(S0+r)}")
    for r in range(nrows):
        for j in range(8): p.I(f"v_mul_f32 {v(F[r]+j)}, {v(F[r]+j)}, {v(S0+r)}")

def gen_ln(name="ln_kernel"):
    p = Prog()
    p.raw(kernel_header(name))
    p.I("s_cmp_ge_u32 s2, 256")
    p.I("s_cbranch_scc1 L_ln_end")
    p.I(f"s_load_dwordx2 s[4:5], s[0:1], {ARG_X}")
    p.I(f"s_load_dwordx2 s[8:9], s[0:1], {ARG_WS}")
    p.I("v_and_b32 v1, 63, v0")
    p.I("v_lshrrev_b32 v2, 6, v0")
    p.I("s_lshl_b32 s3, s2, 3")
    p.I("v_lshlrev_b32 v2, 1, v2")
    p.I("v_add_u32 v2, s3, v2")
    p.I("v_lshrrev_b32 v5, 2, v1")
    p.I("v_and_b32 v6, 3, v1")
    p.I("v_lshlrev_b32 v3, 10, v2")
    p.I("v_lshl_add_u32 v3, v5, 6, v3")
    p.I("v_lshl_add_u32 v3, v6, 3, v3")
    p.I("v_lshrrev_b32 v4, 4, v2")
    p.I("v_lshlrev_b32 v4, 14, v4")
    p.I("v_lshl_add_u32 v4, v5, 10, v4")
    p.I("v_lshlrev_b32 v6, 4, v6")
    p.I("v_and_b32 v7, 15, v2")
    p.I("v_add_u32 v6, v6, v7")
    p.I("v_lshl_add_u32 v4, v6, 4, v4")
    p.I("s_waitcnt lgkmcnt(0)")
    p.I("s_mov_b32 s6, 0x200000"); p.I("s_mov_b32 s7, 0x20000")
    p.I("s_mov_b32 s10, 0x400000"); p.I("s_mov_b32 s11, 0x20000")
    p.I("buffer_load_dwordx2 v[8:9], v3, s[4:7], 0 offen")
    p.I("buffer_load_dwordx2 v[10:11], v3, s[4:7], 0 offen offset:32")
    p.I("buffer_load_dwordx2 v[12:13], v3, s[4:7], 0 offen offset:1024")
    p.I("buffer_load_dwordx2 v[14:15], v3, s[4:7], 0 offen offset:1056")
    p.I("s_mov_b32 s12, 0x3727c5ac")
    p.I("s_mov_b32 s13, 0x3b000000")
    p.I("s_mov_b32 s14, 0x200000")
    p.I("v_mov_b32 v44, s12")
    F = [16, 24]
    def unpack(src, dst):
        for j in range(4):
            p.I(f"v_lshlrev_b32 {v(dst+2*j)}, 16, {v(src+j)}")
            p.I(f"v_and_b32 {v(dst+2*j+1)}, 0xffff0000, {v(src+j)}")
    def pack(src, dst):
        for j in range(4):
            p.I(f"v_cvt_pk_bf16_f32 {v(dst+j)}, {v(src+2*j)}, {v(src+2*j+1)}")
    p.I("s_waitcnt vmcnt(2)")
    unpack(8, 16)
    p.I("s_waitcnt vmcnt(0)")
    unpack(12, 24)
    ln_rows(p, F, 2, 32, 40, 12)
    pack(16, 8); pack(24, 12)
    p.I("buffer_store_dwordx4 v[8:11], v4, s[8:11], 0 offen")
    p.I("buffer_store_dwordx4 v[12:15], v4, s[8:11], 0 offen offset:16")
    unpack(8, 16); unpack(12, 24)
    ln_rows(p, F, 2, 32, 40, 12)
    pack(16, 48); pack(24, 52)
    p.I("buffer_store_dwordx4 v[48:51], v4, s[8:11], s14 offen")
    p.I("buffer_store_dwordx4 v[52:55], v4, s[8:11], s14 offen offset:16")
    p.L("L_ln_end")
    p.I("s_endpgm")
    items, n = fix_hazards(p.items, name=name)
    p.items = items
    errs = check_waitcnt([i for i in p.items if isinstance(i, Ins)], name)
    assert not errs, errs
    return p.text(), kernel_desc(name, 64, 32, 64)
```

```python
ARG_X, ARG_K, ARG_V, ARG_WQ, ARG_WO, ARG_BX, ARG_W1, ARG_W2, ARG_W3, ARG_W4, ARG_OUT, ARG_DBG, ARG_WS = [8*i for i in range(13)]
MB = 1 << 20
WS_XN, WS_XN2, WS_H, WS_X1, WS_H2, WS_O = 0, 2*MB, 4*MB, 6*MB, 8*MB, 16*MB
WS_STAT = 35*MB
WS_WP = 36*MB
WS_RST = WS_STAT + 0x80000
```

```python
import sys
from asmgen import *
from layout import *
import k_ln, k_attn16 as k_attn, k_gemm, k_final

HEADER = open('recurrent_scan__mha_block_cached__mixer_s_mlp__prompt.s.ref').read().split('; Override launch')[0]

def build(kernels, launches, path):
    out = [HEADER.rstrip()]
    for (k, g, b, lds) in launches:
        out.append(f"; @launch kernel={k} grid=({g},1,1) block=({b},1,1) lds={lds}")
    out.append('.amdgcn_target "amdgcn-amd-amdhsa--gfx950"')
    out.append(".text")
    for (t, d) in kernels: out.append(t)
    for (t, d) in kernels: out.append(d)
    open(path, 'w').write("\n".join(out) + "\n")

if __name__ == "__main__":
    path = sys.argv[1] if len(sys.argv) > 1 else 't_attn.s'
    opts = dict(eval(a[2:]) for a in sys.argv if a.startswith('o:'))
    ln = k_ln.gen_ln()
    g = k_attn.AttnGen(stamps=('stamps' in sys.argv), opts=opts); t, d, errs = g.gen()
    for e in errs[:20]: print(e)
    assert not errs or 'force' in sys.argv
    ks = [ln, (t, d)]
    launches = [("ln_kernel", 256, 256, 0)]
    if 'full' in sys.argv:
        for k in ('j1', 'j2', 'j3'):
            tt, dd, ee = k_gemm.Gemm128(k + "_kernel", k).gen(); assert not ee, ee
            ks.append((tt, dd)); launches.append((k + "_kernel", 256, 256, 131072))
    launches.append(("attn_kernel", 256, 256, k_attn.LDS_BYTES))
    if 'full' in sys.argv:
        tt, dd, ee = k_final.gen_final(); assert not ee, ee
        ks.append((tt, dd)); launches.append(("final_kernel", 256, 256, 131072))
    build(ks, launches, path)
    print(g.stats)
```

```python
import sys
from asmgen import *
from layout import *
import k_ln, k_attn16 as k_attn, k_gemm, k_final

HEADER = open('recurrent_scan__mha_block_cached__mixer_s_mlp__prompt.s.ref').read().split('; Override launch')[0]

def build(kernels, launches, path):
    out = [HEADER.rstrip()]
    for (k, g, b, lds) in launches:
        out.append(f"; @launch kernel={k} grid=({g},1,1) block=({b},1,1) lds={lds}")
    out.append('.amdgcn_target "amdgcn-amd-amdhsa--gfx950"')
    out.append(".text")
    for (t, d) in kernels: out.append(t)
    for (t, d) in kernels: out.append(d)
    open(path, 'w').write("\n".join(out) + "\n")

if __name__ == "__main__":
    path = sys.argv[1] if len(sys.argv) > 1 else 't_attn.s'
    opts = dict(eval(a[2:]) for a in sys.argv if a.startswith('o:'))
    ln = k_ln.gen_ln()
    g = k_attn.AttnGen(stamps=('stamps' in sys.argv), opts=opts); t, d, errs = g.gen()
    for e in errs[:20]: print(e)
    assert not errs or 'force' in sys.argv
    ks = [ln, (t, d)]
    launches = [("ln_kernel", 256, 256, 0)]
    if 'full' in sys.argv:
        for k in ('j1', 'j2', 'j3'):
            tt, dd, ee = k_gemm.Gemm128(k + "_kernel", k).gen(); assert not ee, ee
            ks.append((tt, dd)); launches.append((k + "_kernel", 256, 256, 131072))
    launches.append(("attn_kernel", 256, 256, k_attn.LDS_BYTES))
    if 'full' in sys.argv:
        tt, dd, ee = k_final.gen_final(); assert not ee, ee
        ks.append((tt, dd)); launches.append(("final_kernel", 256, 256, 131072))
    nn = [int(a[5:]) for a in sys.argv if a.startswith('noop=')]
    if nn:
        p = Prog(); p.raw(kernel_header("noop_kernel")); p.I("s_endpgm")
        ks.append((p.text(), kernel_desc("noop_kernel", 8, 16, 8)))
        launches = launches[:1] + [("noop_kernel", 256, 256, 0)]*nn[0] + launches[1:]
    build(ks, launches, path)
    print(g.stats)
```

```python
import re

def R(kind, lo, n=1):
    if n == 1: return f"{kind}{lo}"
    return f"{kind}[{lo}:{lo+n-1}]"
def v(lo, n=1): return R('v', lo, n)
def a(lo, n=1): return R('a', lo, n)
def s(lo, n=1): return R('s', lo, n)

_reg_re = re.compile(r'^(-|\|)?(abs\()?([vas])(\d+|\[(\d+):(\d+)\])\)?\|?$')
def parse_regs(tok):
    tok = tok.strip()
    if tok.startswith('-') and not tok[1:2].isdigit(): tok = tok[1:]
    if tok.startswith('abs(') and tok.endswith(')'): tok = tok[4:-1]
    if tok.startswith('|') and tok.endswith('|'): tok = tok[1:-1]
    if tok == 'vcc': return [('s', 106), ('s', 107)]
    if tok == 'vcc_lo': return [('s', 106)]
    if tok == 'vcc_hi': return [('s', 107)]
    if tok == 'exec': return [('s', 126), ('s', 127)]
    if tok == 'm0': return [('s', 124)]
    m = re.match(r'^([vas])(\d+)$', tok)
    if m: return [(m.group(1), int(m.group(2)))]
    m = re.match(r'^([vas])\[(\d+):(\d+)\]$', tok)
    if m: return [(m.group(1), i) for i in range(int(m.group(2)), int(m.group(3)) + 1)]
    return []

TRANS = ('v_exp_f32', 'v_log_f32', 'v_rcp_f32', 'v_rsq_f32', 'v_sqrt_f32', 'v_sin_f32', 'v_cos_f32')

class Ins:
    __slots__ = ('text', 'op', 'defs', 'uses', 'kind', 'tag', 'passes', 'srcC', 'srcAB', 'comment', 'lds_r', 'lds_w', 'nowarn')
    def __init__(self, text, tag=None, lds_r=None, lds_w=None):
        self.text = text.strip()
        self.tag = tag; self.lds_r = lds_r; self.lds_w = lds_w
        self.comment = None; self.nowarn = False
        body = self.text.split(';')[0].strip()
        parts = body.split(None, 1)
        self.op = op = parts[0]
        rest = parts[1] if len(parts) > 1 else ''
        if 'op_sel' in rest: rest = re.sub(r'\s+op_sel(_hi)?:\[[^\]]*\]', '', rest)
        ops = [o.strip() for o in rest.split(',')] if rest else []
        mods = []
        if ops:
            last = ops[-1].split()
            if last:
                ops[-1] = last[0]; mods = last[1:]
        self.defs = []; self.uses = []; self.passes = 0; self.srcC = []; self.srcAB = []
        P = [parse_regs(o) for o in ops]
        flat = lambda l: [r for x in l for r in x]
        if op.startswith('v_mfma'):
            self.kind = 'mfma'
            self.defs = P[0]; self.uses = flat(P[1:]); self.srcC = P[3]; self.srcAB = P[1] + P[2]
            self.passes = 8 if '32x32x16' in op else 4 if '16x16x32' in op else 16
        elif op.startswith('ds_'):
            self.kind = 'ds'
            if op.startswith('ds_read') or op.startswith('ds_bpermute') or op.startswith('ds_permute') or op.startswith('ds_swizzle'):
                self.defs = P[0]; self.uses = flat(P[1:])
            else:
                self.uses = flat(P)
        elif op.startswith('buffer_') or op.startswith('global_'):
            self.kind = 'vmem'
            allm = mods + ops
            if op.startswith('buffer_load') and 'lds' in mods:
                self.uses = flat(P) + [('s', 124)]
            elif op.startswith('global_load_lds'):
                self.uses = flat(P) + [('s', 124)]
            elif op.startswith('buffer_load') or op.startswith('global_load'):
                self.defs = P[0]; self.uses = flat(P[1:])
            elif 'atomic' in op:
                self.uses = flat(P)
                if 'sc0' in mods: self.defs = P[0]
            elif op in ('buffer_wbl2', 'buffer_inv'):
                pass
            else:
                self.uses = flat(P)
        elif op.startswith('s_load') or op.startswith('s_buffer_load') or op in ('s_memtime', 's_memrealtime'):
            self.kind = 'smem'; self.defs = P[0]; self.uses = flat(P[1:])
        elif op.startswith('s_'):
            self.kind = 'salu'
            if op in ('s_waitcnt', 's_barrier', 's_nop', 's_endpgm', 's_setprio', 's_sleep', 's_branch') or op.startswith('s_cbranch'):
                if op in ('s_cbranch_vccnz', 's_cbranch_vccz'): self.uses = [('s', 106), ('s', 107)]
                if op in ('s_cbranch_execz', 's_cbranch_execnz'): self.uses = [('s', 126), ('s', 127)]
                if op in ('s_cbranch_scc0', 's_cbranch_scc1'): self.uses = [('scc', 0)]
            elif op.startswith('s_cmp') or op.startswith('s_bitcmp'):
                self.uses = flat(P); self.defs = [('scc', 0)]
            elif op in ('s_setpc_b64',):
                self.uses = flat(P)
            elif op in ('s_call_b64', 's_getpc_b64'):
                self.defs = P[0]
            elif op in ('s_swappc_b64',):
                self.defs = P[0]; self.uses = P[1]
            else:
                self.defs = P[0] + [('scc', 0)]; self.uses = flat(P[1:])
                if op in ('s_mov_b32', 's_mov_b64', 's_movk_i32', 's_mul_i32', 's_mul_hi_u32'): self.defs = P[0]
                if op in ('s_cselect_b32', 's_cselect_b64', 's_addc_u32', 's_subb_u32'): self.uses += [('scc', 0)]
                if op in ('s_cselect_b32', 's_cselect_b64'): self.defs = P[0]
                if op in ('s_addk_i32', 's_mulk_i32'): self.uses += P[0]
                if 'saveexec' in op:
                    self.defs += [('s', 126), ('s', 127)]; self.uses += [('s', 126), ('s', 127)]
        elif op.startswith('v_'):
            self.kind = 'valu'
            base = op.replace('_e32', '').replace('_e64', '').replace('_dpp', '').replace('_sdwa', '')
            if base.startswith('v_cmp'):
                self.defs = P[0]; self.uses = flat(P[1:])
                if base.startswith('v_cmpx'): self.defs = self.defs + [('s', 126), ('s', 127)]
            elif base.startswith('v_permlane') and 'swap' in base:
                self.defs = P[0] + P[1]; self.uses = P[0] + P[1]
            elif base in ('v_add_co_u32', 'v_sub_co_u32', 'v_addc_co_u32', 'v_subb_co_u32', 'v_subrev_co_u32', 'v_div_scale_f32', 'v_mad_u64_u32'):
                self.defs = P[0] + P[1]; self.uses = flat(P[2:])
            elif base == 'v_nop':
                pass
            else:
                self.defs = P[0]; self.uses = flat(P[1:])
                if base in ('v_fmac_f32', 'v_dot2c_f32_bf16', 'v_dot2c_f32_f16', 'v_pk_fmac_f16', 'v_writelane_b32', 'v_mac_f32', 'v_fmamk_f32x'):
                    self.uses = self.uses + P[0]
                if any(m.startswith('row_') or m.startswith('quad_perm') or m.startswith('wave_') for m in mods):
                    self.kind = 'valu'; self.tag = (self.tag or '')
                    self.uses = self.uses + P[0]
        else:
            raise ValueError("unknown op " + op)
    def is_dpp(self):
        t = self.text
        return self.kind == 'valu' and ('row_' in t or 'quad_perm' in t or 'wave_' in t)
    def is_trans(self):
        return self.op.replace('_e32', '').replace('_e64', '') in TRANS
    def __repr__(self): return self.text

class Label:
    def __init__(self, name): self.name = name; self.text = name + ':'
class Raw:
    def __init__(self, text): self.text = text

def nstates(ins):
    if ins.op == 's_nop':
        return int(ins.text.split()[1], 0) + 1
    return 1

class HazardError(Exception): pass

def required_gap(p, c):
    need = 0; why = None
    def upd(n, w):
        nonlocal need, why
        if n > need: need, why = n, w
    pd = set(p.defs); cu = set(c.uses); cd = set(c.defs)
    if p.kind == 'mfma':
        ps = p.passes
        raw_n = {4: 8, 8: 12, 16: 20}[ps]; ovl = {4: 6, 8: 10, 16: 18}[ps]; war = {4: 3, 8: 7, 16: 15}[ps]
        if c.kind == 'mfma':
            if pd & set(c.srcAB): upd(raw_n, 'mfma D->AB')
            if pd & set(c.srcC):
                if not (p.defs == c.srcC and p.passes == c.passes): upd(ovl, 'mfma D->C overlap')
            if (pd & cd) and not (pd & set(c.srcC)): upd(ovl, 'mfma D->D WAW')
        elif c.kind in ('valu',):
            if pd & (cu | cd): upd(raw_n, 'mfma D->valu')
            if set(p.srcC) & cd: upd(war, 'mfma C WAR valu')
        elif c.kind in ('ds', 'vmem'):
            if pd & (cu | cd): upd(raw_n, 'mfma D->mem')
    if p.kind == 'valu':
        vd = {r for r in pd if r[0] in 'va'}
        sd = {r for r in pd if r[0] == 's'}
        if c.kind == 'mfma' and (vd & cu): upd(2, 'valu->mfma')
        if c.kind == 'mfma' and (('s', 126) in pd): upd(4, 'valu exec->mfma')
        if c.kind == 'valu':
            if c.is_dpp() and (vd & cu): upd(2, 'valu->dpp')
            if c.op.startswith('v_permlane') and (vd & cu): upd(2, 'valu->permlane')
            if (c.op.startswith('v_readlane') or c.op.startswith('v_readfirstlane')) and (vd & cu): upd(1, 'valu->readlane')
            if p.is_trans() and not c.is_trans() and (vd & cu): upd(1, 'trans->valu')
            if sd & cu: upd(2, 'valu sgpr->valu')
            if (c.op.startswith('v_readlane') or c.op.startswith('v_writelane')) and (sd & cu): upd(4, 'valu sgpr->lane sel')
            if ('op_sel' in p.text or 'sdwa' in p.text or 'dst_sel' in p.text) and (vd & (cu | cd)): upd(1, 'opsel->valu')
        if c.kind in ('vmem',) and (sd & cu): upd(5, 'valu sgpr->vmem')
    if p.kind == 'salu' and ('s', 124) in pd:
        if c.kind == 'vmem' and ('s', 124) in cu: upd(1, 'm0->ldsdma')
    if p.kind == 'vmem' and ('store' in p.op) and ('x4' in p.op or 'x3' in p.op):
        data = set(r for r in p.uses if r[0] in 'va')
        if c.kind == 'valu' and (data & cd): upd(2, 'store data WAR')
        elif (data & cd): upd(1, 'store data WAR')
    return need, why

class Prog:
    def __init__(self):
        self.items = []
        self.nlabel = 0
    def I(self, text, **kw):
        ins = Ins(text, **kw); self.items.append(ins); return ins
    def add(self, ins): self.items.append(ins); return ins
    def L(self, name): self.items.append(Label(name))
    def raw(self, text): self.items.append(Raw(text))
    def newlabel(self, base='L'):
        self.nlabel += 1; return f"{base}_{self.nlabel}"
    def extend(self, seq):
        for x in seq: self.items.append(x)
    def text(self):
        out = []
        for it in self.items:
            if isinstance(it, Ins): out.append("    " + it.text)
            else: out.append(it.text)
        return "\n".join(out)

def fix_hazards(seq, window=24, verbose=False, name=''):
    out = []; hist = []
    ninserted = 0
    for it in seq:
        if not isinstance(it, Ins):
            out.append(it); continue
        pad = 0; dist = 0
        for p in reversed(hist):
            need, why = required_gap(p, it)
            if need > dist and need - dist > pad:
                pad = need - dist; pw = (p, why)
            dist += nstates(p)
            if dist >= window: break
        while pad > 0:
            n = min(pad, 16)
            nop = Ins(f"s_nop {n-1}")
            out.append(nop); hist.append(nop); pad -= n; ninserted += n
            if verbose: print(f"  [{name}] pad {n} before '{it.text}' due to '{pw[0].text}' ({pw[1]})")
        out.append(it); hist.append(it)
        if len(hist) > 64: hist = hist[-64:]
    return out, ninserted

def check_hazards(trace, name=''):
    errs = []
    hist = []
    for it in trace:
        if not isinstance(it, Ins): continue
        dist = 0
        for p in reversed(hist):
            need, why = required_gap(p, it)
            if need > dist: errs.append(f"[{name}] hazard {why}: need {need} have {dist}: '{p.text}' -> '{it.text}'")
            dist += nstates(p)
            if dist >= 24: break
        hist.append(it)
        if len(hist) > 64: hist = hist[-64:]
    return errs

_wc_re = re.compile(r'(vmcnt|lgkmcnt|expcnt)\((\d+)\)')
def check_waitcnt(trace, name='', init_vm=None, init_lg=None):
    errs = []
    vm = list(init_vm or []); lg = list(init_lg or [])
    pend = {}
    w_state = {}
    w_ins = {}
    r_state = {}
    r_cnt = {}
    def retire(q, n):
        while len(q) > n:
            x = q.pop(0)
            for r in x.defs:
                if pend.get(r) is x: del pend[r]
            if x.lds_w is not None:
                w_ins[x.lds_w].remove(x)
                if not w_ins[x.lds_w]: w_state[x.lds_w] = 'landed'
            if x.lds_r is not None:
                r_cnt[x.lds_r] -= 1
                if r_cnt[x.lds_r] == 0: r_state[x.lds_r] = 'done'
    for it in trace:
        if not isinstance(it, Ins): continue
        if it.op == 's_waitcnt':
            for k, n in _wc_re.findall(it.text):
                if k == 'vmcnt': retire(vm, int(n))
                elif k == 'lgkmcnt':
                    if any(x.kind == 'smem' for x in lg) and int(n) != 0:
                        errs.append(f"[{name}] counted lgkmcnt with smem outstanding: {it.text}")
                    retire(lg, int(n))
            continue
        if it.op == 's_barrier':
            for r, st in list(w_state.items()):
                if st == 'landed': w_state[r] = 'visible'
            for r, st in list(r_state.items()):
                if st == 'done': r_state[r] = 'free'
            continue
        if it.op == 's_endpgm': continue
        for r in list(it.uses) + list(it.defs):
            if r in pend:
                if r in it.defs and r not in it.uses and it.kind == pend[r].kind and it.kind in ('ds',):
                    continue
                errs.append(f"[{name}] reg {r} pending from '{pend[r].text}' touched by '{it.text}'")
        if it.lds_r is not None:
            st = w_state.get(it.lds_r, 'visible')
            if st != 'visible': errs.append(f"[{name}] LDS RAW: read of {it.lds_r} while {st}: '{it.text}'")
            r_state[it.lds_r] = 'inflight'; r_cnt[it.lds_r] = r_cnt.get(it.lds_r, 0) + 1
        if it.lds_w is not None:
            st = r_state.get(it.lds_w, 'free')
            if st != 'free': errs.append(f"[{name}] LDS WAR: write to {it.lds_w} while reads {st}: '{it.text}'")
            w_state[it.lds_w] = 'inflight'; w_ins.setdefault(it.lds_w, []).append(it)
        if it.kind == 'vmem' and it.op not in ('buffer_wbl2', 'buffer_inv'):
            vm.append(it)
            if len(vm) > 63: errs.append(f"[{name}] vmcnt overflow at '{it.text}'")
            for r in it.defs: pend[r] = it
        elif it.kind in ('ds', 'smem'):
            lg.append(it)
            for r in it.defs: pend[r] = it
    return errs

def kernel_header(name):
    return f""".globl {name}
.p2align 8
.type {name},@function
{name}:"""

def kernel_desc(name, vgpr, sgpr, accum, kernarg=104):
    if DIAG['on']: sgpr = 102
    return f""".section .rodata,"a"
.p2align 6
.amdhsa_kernel {name}
  .amdhsa_next_free_vgpr {vgpr}
  .amdhsa_next_free_sgpr {sgpr}
  .amdhsa_accum_offset {accum}
  .amdhsa_group_segment_fixed_size 0
  .amdhsa_kernarg_size {kernarg}
  .amdhsa_user_sgpr_count 2
  .amdhsa_user_sgpr_kernarg_segment_ptr 1
  .amdhsa_system_sgpr_workgroup_id_x 1
  .amdhsa_float_denorm_mode_32 3
  .amdhsa_ieee_mode 0
  .amdhsa_dx10_clamp 0
.end_amdhsa_kernel
.text"""


DIAG = {'on': False}
def diag_wrap(text, name, idx, endlabel):
    if not DIAG['on']: return text
    from layout import ARG_WS, MB
    head = f"{name}:\n"
    pre = "    s_memrealtime s[96:97]\n    s_waitcnt lgkmcnt(0)\n"
    text = text.replace(head, head + pre, 1)
    post = f"""    s_waitcnt vmcnt(0) lgkmcnt(0)
    s_memrealtime s[98:99]
    s_load_dwordx2 s[92:93], s[0:1], {ARG_WS}
    s_waitcnt lgkmcnt(0)
    s_add_u32 s92, s92, {48*MB + idx*65536}
    s_addc_u32 s93, s93, 0
    s_mov_b32 s94, 0x10000
    s_mov_b32 s95, 0x20000
    s_lshl_b32 s91, s2, 4
    s_mov_b64 exec, -1
    v_mov_b32 v1, s96
    v_mov_b32 v2, s98
    v_mov_b32 v3, 0
    v_lshrrev_b32 v4, 6, v0
    v_lshlrev_b32 v4, 3, v4
"""
    post = f"""    s_waitcnt vmcnt(0) lgkmcnt(0)
    s_memrealtime s[98:99]
    s_load_dwordx2 s[92:93], s[0:1], {ARG_WS}
    s_waitcnt lgkmcnt(0)
    s_add_u32 s92, s92, {48*MB + idx*65536}
    s_addc_u32 s93, s93, 0
    s_mov_b32 s94, 0x10000
    s_mov_b32 s95, 0x20000
    s_lshl_b32 s91, s2, 3
    s_mov_b64 exec, 1
    v_mov_b32 v2, s96
    v_mov_b32 v3, s98
    v_mov_b32 v4, 0
    buffer_store_dwordx2 v[2:3], v4, s[92:95], s91 offen
    s_lshl_b32 s91, s2, 5
    s_add_u32 s91, s91, 4096
""" + "".join(f"    v_mov_b32 v2, s{70+2*k}\n    buffer_store_dword v2, v4, s[92:95], s91 offen offset:{4*k}\n" for k in range(8))
    text = text.replace(f"{endlabel}:\n    s_endpgm", f"{endlabel}:\n    s_cmp_ge_u32 s2, 256\n    s_cbranch_scc1 {endlabel}_x\n{post}{endlabel}_x:\n    s_endpgm", 1)
    return text

def mid_stamp(I, k):
    if DIAG['on']:
        I(f"s_memrealtime s[{70+2*k}:{71+2*k}]"); I("s_waitcnt lgkmcnt(0)")
```

```python
from asmgen import *
from layout import *
import math
from k_gemm import f2u
MFMA = "v_mfma_f32_16x16x32_bf16"
def gen_final(name="final_kernel", with_b=True, lds_bytes=131072, helper=True, lead=6, nods=0, nomfma=0, now=0, nox=0, nobar=0, D=7, pf64=0, same=0, map=0):
    p = Prog(); I = p.I
    p.raw(kernel_header(name))
    end = f"L_{name}_end"
    SW, SX = 4, 8
    SW2, SX2 = 12, 16
    SX1, SXIN, SOUT = 20, 24, 28
    sw, sT0, sT1, sWOFF, sXOFF, sM0, sPF, sCNT, sWOFF2, sXOFF2, sRT, sCT = 32, 33, 34, 35, 36, 37, 38, 39, 40, 41, 42, 43
    VAA = 16
    VAB = 18
    VDW = 19
    VL16 = 14
    VA = 32
    VB = 64
    ACCB, ACCS = 96, 112
    I("s_cmp_ge_u32 s2, 256"); I(f"s_cbranch_scc1 {end}")
    I(f"s_load_dwordx2 {s(SW,2)}, s[0:1], {ARG_W4}")
    I(f"s_load_dwordx2 {s(SW2,2)}, s[0:1], {ARG_WO}")
    I(f"s_load_dwordx2 {s(SX,2)}, s[0:1], {ARG_WS}")
    I(f"s_load_dwordx2 {s(SXIN,2)}, s[0:1], {ARG_X}")
    I(f"s_load_dwordx2 {s(SOUT,2)}, s[0:1], {ARG_OUT}")
    I("v_lshrrev_b32 v1, 6, v0"); I("s_nop 0"); I(f"v_readfirstlane_b32 {s(sw)}, v1")
    I("v_and_b32 v1, 63, v0"); I(f"v_lshlrev_b32 {v(VL16)}, 4, v1")
    I(f"s_and_b32 {s(sT0)}, s2, 7"); I(f"s_lshr_b32 {s(sT1)}, s2, 3")
    I(f"s_and_b32 {s(sCT)}, {s(sT1)}, 7"); I(f"s_lshr_b32 {s(sT1)}, {s(sT1)}, 3")
    I(f"s_lshl_b32 {s(sT0)}, {s(sT0)}, 2"); I(f"s_add_u32 {s(sRT)}, {s(sT0)}, {s(sT1)}")
    if map == 1:
        I(f"s_and_b32 {s(sT0)}, s2, 7"); I(f"s_lshr_b32 {s(sT1)}, s2, 3")
        I(f"s_and_b32 {s(sCT)}, {s(sT1)}, 3"); I(f"s_lshr_b32 {s(sT1)}, {s(sT1)}, 2")
        I(f"s_and_b32 s44, {s(sT0)}, 1"); I("s_lshl_b32 s44, s44, 2"); I(f"s_add_u32 {s(sCT)}, {s(sCT)}, s44")
        I(f"s_lshr_b32 {s(sT0)}, {s(sT0)}, 1"); I(f"s_lshl_b32 {s(sT0)}, {s(sT0)}, 3"); I(f"s_add_u32 {s(sRT)}, {s(sT0)}, {s(sT1)}")
    if same == 1: I(f"s_mov_b32 {s(sRT)}, 0"); I(f"s_mov_b32 {s(sCT)}, 0")
    if same == 2: I(f"s_mov_b32 {s(sRT)}, 0")
    if same == 3: I(f"s_mov_b32 {s(sCT)}, 0")
    I("v_and_b32 v2, 15, v1"); I("v_lshrrev_b32 v5, 4, v1")
    I("v_lshrrev_b32 v6, 2, v1"); I("v_and_b32 v6, 3, v6")
    I("v_lshl_add_u32 v7, v5, 2, v6")
    I("v_lshrrev_b32 v8, 1, v7"); I("v_and_b32 v8, 3, v8")
    I("v_and_b32 v9, 3, v1")
    I("v_lshlrev_b32 v10, 7, v7"); I("v_lshl_add_u32 v10, v8, 5, v10"); I("v_lshl_add_u32 v10, v9, 3, v10")
    I(f"s_and_b32 {s(sT0)}, {s(sw)}, 1"); I(f"s_lshl_b32 {s(sT0)}, {s(sT0)}, 1")
    for cb in range(2):
        I(f"s_add_u32 {s(sT1)}, {s(sT0)}, {cb}"); I(f"s_lshl_b32 {s(sT1)}, {s(sT1)}, 5"); I(f"v_xor_b32 {v(VAA+cb)}, {s(sT1)}, v10")
    I(f"s_lshr_b32 {s(sT0)}, {s(sw)}, 1"); I(f"s_lshl_b32 {s(sT0)}, {s(sT0)}, 12"); I(f"s_add_u32 {s(sT0)}, {s(sT0)}, 8192")
    I(f"v_add_u32 {v(VAB)}, {s(sT0)}, {v(VL16)}")
    I("v_lshrrev_b32 v6, 3, v1"); I("v_and_b32 v7, 7, v1"); I("v_lshrrev_b32 v8, 1, v6"); I("v_lshlrev_b32 v8, 1, v8"); I("v_xor_b32 v8, v8, v7")
    I("v_lshlrev_b32 v8, 4, v8"); I(f"v_lshl_add_u32 {v(VDW)}, v6, 10, v8")
    I("s_waitcnt lgkmcnt(0)")
    def srd(dst, lo, off, size):
        if off is not None:
            I(f"s_add_u32 {s(dst)}, {s(lo)}, {off}"); I(f"s_addc_u32 {s(dst+1)}, {s(lo+1)}, 0")
        I(f"s_mov_b32 {s(dst+2)}, {size}"); I(f"s_mov_b32 {s(dst+3)}, 0x20000")
    srd(SX2, SX, WS_O, 16*MB); srd(SX1, SX, WS_X1, 2*MB); srd(SX, SX, WS_H2, 2048*1792*2)
    srd(SW, SW, None, 1792*1024); srd(SW2, SW2, None, 4096*1024); srd(SXIN, SXIN, None, 2*MB); srd(SOUT, SOUT, None, 2*MB)
    I(f"s_lshl_b32 {s(sWOFF)}, {s(sw)}, 14"); I(f"s_lshl_b32 {s(sT0)}, {s(sCT)}, 7"); I(f"s_add_u32 {s(sWOFF)}, {s(sWOFF)}, {s(sT0)}")
    I(f"s_mov_b32 {s(sWOFF2)}, {s(sWOFF)}")
    I(f"s_lshl_b32 {s(sT0)}, {s(sRT)}, 2"); I(f"s_add_u32 {s(sT0)}, {s(sT0)}, {s(sw)}")
    I(f"s_mul_i32 {s(sXOFF)}, {s(sT0)}, {56*1024}"); I(f"s_lshl_b32 {s(sXOFF2)}, {s(sT0)}, 17")
    I(f"s_lshl_b32 {s(sM0)}, {s(sw)}, 11")
    I(f"s_mov_b32 {s(sPF)}, 0")
    if helper:
        I(f"s_cmp_lg_u32 {s(sw)}, 4"); I(f"s_cbranch_scc1 L_{name}_main")
        I(f"s_and_b32 {s(sT0)}, {s(sRT)}, 3"); I(f"s_lshl_b32 {s(sT0)}, {s(sT0)}, 4")
        I(f"v_lshl_add_u32 v20, v5, 6, v2"); I(f"v_add_u32 v20, {s(sT0)}, v20"); I("v_lshlrev_b32 v20, 10, v20")
        I(f"s_lshl_b32 {s(sT1)}, {s(sCT)}, 7"); I(f"v_add_u32 v20, {s(sT1)}, v20")
        I("v_lshrrev_b32 v21, 3, v1"); I("v_lshlrev_b32 v21, 11, v21"); I("v_and_b32 v22, 7, v1"); I("v_lshl_add_u32 v21, v22, 7, v21")
        I(f"s_and_b32 {s(sT0)}, {s(sCT)}, 1"); I(f"s_lshl_b32 {s(sT0)}, {s(sT0)}, 10"); I(f"v_add_u32 v21, {s(sT0)}, v21")
        I("v_cmp_gt_u32 vcc, 32, v1"); I("v_mov_b32 v22, 0x7f000000"); I("s_nop 1"); I("v_cndmask_b32 v21, v22, v21, vcc")
        I(f"s_lshr_b32 {s(sT0)}, {s(sCT)}, 1"); I(f"s_lshl_b32 {s(sT1)}, {s(sRT)}, 2"); I(f"s_add_u32 {s(sT0)}, {s(sT0)}, {s(sT1)}")
        I(f"s_mul_i32 {s(sXOFF)}, {s(sT0)}, {56*1024}"); I(f"s_lshl_b32 {s(sXOFF2)}, {s(sT0)}, 17")
        I(f"s_mov_b32 {s(sWOFF)}, 0")
        nb_tot = 23 if with_b else 16
        if not with_b:
            for k in range(4): I(f"s_mov_b32 {s(SW+k)}, {s(SW2+k)}"); I(f"s_mov_b32 {s(SX+k)}, {s(SX2+k)}")
            I(f"s_mov_b32 {s(sXOFF)}, {s(sXOFF2)}")
        def pf(b):
            if with_b and b == 7:
                for k in range(4): I(f"s_mov_b32 {s(SW+k)}, {s(SW2+k)}"); I(f"s_mov_b32 {s(SX+k)}, {s(SX2+k)}")
                I(f"s_mov_b32 {s(sWOFF)}, 0"); I(f"s_mov_b32 {s(sXOFF)}, {s(sXOFF2)}")
            I(f"buffer_load_dword v24, v20, {s(SW,4)}, {s(sWOFF)} offen")
            I(f"buffer_load_dword v25, v21, {s(SX,4)}, {s(sXOFF)} offen")
            if pf64:
                I(f"buffer_load_dword v24, v20, {s(SW,4)}, {s(sWOFF)} offen offset:64")
                I(f"buffer_load_dword v25, v21, {s(SX,4)}, {s(sXOFF)} offen offset:64")
            I("s_waitcnt vmcnt(40)")
            I(f"s_add_u32 {s(sWOFF)}, {s(sWOFF)}, {4*65536}"); I(f"s_add_u32 {s(sXOFF)}, {s(sXOFF)}, {4*2048}")
        for b in range(lead): pf(b)
        for b in range(lead, nb_tot):
            for k in range(4): I("s_barrier")
            pf(b)
        I("s_waitcnt vmcnt(0)")
        I("s_endpgm")
        p.L(f"L_{name}_main")
    if not with_b:
        for k in range(4): I(f"s_mov_b32 {s(SW+k)}, {s(SW2+k)}"); I(f"s_mov_b32 {s(SX+k)}, {s(SX2+k)}")
        I(f"s_mov_b32 {s(sXOFF)}, {s(sXOFF2)}")
    nsw = [0]
    def dma_ops(slot):
        o = (slot & 3)*16384
        g = []
        g.append([Ins(f"s_add_u32 m0, {s(sM0)}, {o}"), Ins(f"s_add_u32 {s(sT0)}, {s(sWOFF)}, {8192 - 1024}"),
                  Ins(f"buffer_load_dwordx4 {v(VDW)}, {s(SW,4)}, {s(sWOFF)} offen lds")])
        g.append([Ins(f"buffer_load_dwordx4 {v(VDW)}, {s(SW,4)}, {s(sT0)} offen offset:1024 lds"),
                  Ins(f"s_add_u32 m0, {s(sM0)}, {o + 8192}"), Ins(f"s_add_u32 {s(sWOFF)}, {s(sWOFF)}, 65536")])
        g.append([Ins(f"buffer_load_dwordx4 {v(VL16)}, {s(SX,4)}, {s(sXOFF)} offen lds")])
        last = [Ins(f"buffer_load_dwordx4 {v(VL16)}, {s(SX,4)}, {s(sXOFF)} offen offset:1024 lds"), Ins(f"s_add_u32 {s(sXOFF)}, {s(sXOFF)}, 2048")]
        if with_b:
            lab = f"L_{name}_sw{nsw[0]}"; nsw[0] += 1
            last += [Ins(f"s_add_u32 {s(sPF)}, {s(sPF)}, 1"), Ins(f"s_cmp_eq_u32 {s(sPF)}, 28"), Ins(f"s_cbranch_scc0 {lab}")]
            for k in range(4): last += [Ins(f"s_mov_b32 {s(SW+k)}, {s(SW2+k)}"), Ins(f"s_mov_b32 {s(SX+k)}, {s(SX2+k)}")]
            last += [Ins(f"s_mov_b32 {s(sWOFF)}, {s(sWOFF2)}"), Ins(f"s_mov_b32 {s(sXOFF)}, {s(sXOFF2)}"), Label(lab)]
        g.append(last)
        if now: g = [[i for i in x if not (isinstance(i, Ins) and i.op.startswith('buffer') and f"{v(VDW)}," in i.text)] for x in g]
        if nox: g = [[i for i in x if not (isinstance(i, Ins) and i.op.startswith('buffer') and f"{v(VL16)}," in i.text)] for x in g]
        return g
    def read_ops(k, toggled):
        o = k*16384; buf = k & 1; r = []
        for e2 in range(2):
            for cb in range(2):
                for t in range(2):
                    r.append(Ins(f"ds_read_b64_tr_b16 {v(VA + buf*16 + (e2*2+cb)*4 + 2*t, 2)}, {v(VAA+cb)} offset:{o + e2*4096 + t*2048}"))
            for rb2 in range(2):
                r.append(Ins(f"ds_read_b128 {v(VB + buf*16 + (e2*2+rb2)*4, 4)}, {v(VAB)} offset:{o + rb2*2048 + e2*1024}"))
        return r if not nods else []
    mid_stamp(I, 0)
    for c in range(D):
        if c == 4 or c == 8: I(f"s_xor_b32 {s(sM0)}, {s(sM0)}, 0x10000")
        for g in dma_ops(c): p.extend(g)
    nper = 4 - 2*now - 2*nox
    I(f"s_waitcnt vmcnt({nper*(D-1)})"); I("s_barrier")
    p.extend(read_ops(0, False))
    def body(acc):
        for k in range(4):
            I(f"s_waitcnt vmcnt({nper*(D-2)}) lgkmcnt(0)")
            if not nobar: I("s_barrier")
            pslot = (k + D) & 7
            pre = []
            if (pslot & 3) == 0: pre = [Ins(f"s_xor_b32 {s(sM0)}, {s(sM0)}, 0x10000")]
            dg = dma_ops(pslot); dg[0] = pre + dg[0]
            if k == 3:
                tog = [Ins(f"v_xor_b32 {v(r)}, 0x10000, {v(r)}") for r in (VAA, VAA+1, VAB)]
            else: tog = []
            rd = read_ops((k + 1) & 3, k == 3)
            p.extend(tog)
            buf = k & 1
            mf = []
            for e2 in range(2):
                for cb in range(2):
                    for rb2 in range(2):
                        d = v(acc + (rb2*2+cb)*4, 4)
                        mf.append(Ins(f"{MFMA} {d}, {v(VA + buf*16 + (e2*2+cb)*4, 4)}, {v(VB + buf*16 + (e2*2+rb2)*4, 4)}, {d}"))
            if nomfma: mf = [Ins("s_nop 0") for _ in mf]
            ri = 0
            for m in range(8):
                p.add(mf[m])
                nr = 2 if m % 2 == 0 else 1
                for _ in range(nr):
                    if ri < len(rd): p.add(rd[ri]); ri += 1
                if m % 2 == 1: p.extend(dg[m >> 1])
            assert ri == len(rd)
    for r in range(ACCB, ACCS + 16): I(f"v_mov_b32 {v(r)}, 0")
    trace_parts = []
    pre_end = len(p.items)
    if with_b:
        I(f"s_mov_b32 {s(sCNT)}, 7")
        p.L(f"L_{name}_loopB"); b0 = len(p.items)
        body(ACCB); b1 = len(p.items)
        I(f"s_sub_u32 {s(sCNT)}, {s(sCNT)}, 1"); I(f"s_cmp_lg_u32 {s(sCNT)}, 0"); I(f"s_cbranch_scc1 L_{name}_loopB")
    mid_stamp(I, 1)
    I(f"s_mov_b32 {s(sCNT)}, 16")
    p.L(f"L_{name}_loopS"); c0 = len(p.items)
    body(ACCS); c1 = len(p.items)
    I(f"s_sub_u32 {s(sCNT)}, {s(sCNT)}, 1"); I(f"s_cmp_lg_u32 {s(sCNT)}, 0"); I(f"s_cbranch_scc1 L_{name}_loopS")
    I("s_waitcnt vmcnt(0) lgkmcnt(0)")
    mid_stamp(I, 2)
    I(f"s_lshr_b32 {s(sT0)}, {s(sw)}, 1"); I(f"s_lshl_b32 {s(sT0)}, {s(sT0)}, 1"); I(f"s_lshl_b32 {s(sT1)}, {s(sRT)}, 2"); I(f"s_add_u32 {s(sT0)}, {s(sT0)}, {s(sT1)}")
    I(f"s_and_b32 {s(sT1)}, {s(sw)}, 1"); I(f"s_lshl_b32 s44, {s(sCT)}, 1"); I(f"s_add_u32 {s(sT1)}, {s(sT1)}, s44")
    I(f"s_lshl_b32 s45, {s(sT0)}, 14"); I(f"s_lshl_b32 s46, {s(sT1)}, 10"); I("s_add_u32 s45, s45, s46")
    I(f"buffer_load_dwordx4 v[32:35], {v(VL16)}, {s(SX1,4)}, s45 offen")
    I("s_add_u32 s45, s45, 16384")
    I(f"buffer_load_dwordx4 v[36:39], {v(VL16)}, {s(SX1,4)}, s45 offen")
    I("v_lshlrev_b32 v40, 10, v2"); I("v_lshl_add_u32 v40, v5, 3, v40")
    I(f"s_lshl_b32 s45, {s(sT0)}, 14"); I(f"s_lshl_b32 s46, {s(sT1)}, 6"); I("s_add_u32 s45, s45, s46"); I("s_add_u32 s46, s45, 16384")
    for rb2 in range(2):
        for cb in range(2):
            I(f"buffer_load_dwordx2 {v(44+(rb2*2+cb)*2,2)}, v40, {s(SXIN,4)}, {'s45' if rb2 == 0 else 's46'} offen offset:{cb*32}")
    I(f"s_mov_b32 s47, 0x{f2u(-math.log2(math.e)):x}")
    I("s_waitcnt vmcnt(0)")
    for rb2 in range(2):
        for cb in range(2):
            for r in range(4):
                j = cb*4 + r
                x1src = 32 + rb2*4 + (j >> 1)
                b = ACCB + (rb2*2+cb)*4 + r; sv = ACCS + (rb2*2+cb)*4 + r
                t0, t1 = 56 + 2*r, 57 + 2*r
                I(f"v_lshlrev_b32 {v(t0)}, 16, {v(x1src)}") if (j & 1) == 0 else I(f"v_and_b32 {v(t0)}, 0xffff0000, {v(x1src)}")
                I(f"v_add_f32 {v(b)}, {v(b)}, {v(t0)}")
                I(f"v_mul_f32 {v(t0)}, s47, {v(b)}")
                I(f"v_exp_f32 {v(t0)}, {v(t0)}")
                xs = 44 + (rb2*2+cb)*2 + (r >> 1)
                I(f"v_lshlrev_b32 {v(t1)}, 16, {v(xs)}") if (r & 1) == 0 else I(f"v_and_b32 {v(t1)}, 0xffff0000, {v(xs)}")
                I(f"v_add_f32 {v(t0)}, 1.0, {v(t0)}")
                I(f"v_rcp_f32 {v(t0)}, {v(t0)}")
                I(f"v_mul_f32 {v(sv)}, {v(sv)}, {v(b)}")
                I(f"v_fma_f32 {v(sv)}, {v(sv)}, {v(t0)}, {v(t1)}")
            x = ACCS + (rb2*2+cb)*4
            I(f"v_cvt_pk_bf16_f32 {v(64+(rb2*2+cb)*2)}, {v(x)}, {v(x+1)}"); I(f"v_cvt_pk_bf16_f32 {v(65+(rb2*2+cb)*2)}, {v(x+2)}, {v(x+3)}")
            I(f"buffer_store_dwordx2 {v(64+(rb2*2+cb)*2,2)}, v40, {s(SOUT,4)}, {'s45' if rb2 == 0 else 's46'} offen offset:{cb*32}")
    p.L(end); I("s_endpgm")
    items, n = fix_hazards(p.items, name=name); p.items = items
    ins = [i for i in p.items if isinstance(i, Ins)]
    errs = check_hazards(ins + [], name)
    return p.text(), kernel_desc(name, 128, 64, 128), errs

if __name__ == "__main__":
    t, d, e = gen_final(); print(len(t.splitlines()), e[:10])
```

```python
import sys
from asmgen import *
from layout import *
import k_ln, k_attn16 as k_attn, k_gemm, k_final

HEADER = open('recurrent_scan__mha_block_cached__mixer_s_mlp__prompt.s.ref').read().split('; Override launch')[0]

def build(kernels, launches, path):
    out = [HEADER.rstrip()]
    for (k, g, b, lds) in launches:
        out.append(f"; @launch kernel={k} grid=({g},1,1) block=({b},1,1) lds={lds}")
    out.append('.amdgcn_target "amdgcn-amd-amdhsa--gfx950"')
    out.append(".text")
    for (t, d) in kernels: out.append(t)
    for (t, d) in kernels: out.append(d)
    open(path, 'w').write("\n".join(out) + "\n")

if __name__ == "__main__":
    path = sys.argv[1] if len(sys.argv) > 1 else 't_attn.s'
    opts = dict(eval(a[2:]) for a in sys.argv if a.startswith('o:'))
    DIAG['on'] = 'diag' in sys.argv
    ln = k_ln.gen_ln()
    g = k_attn.AttnGen(stamps=('stamps' in sys.argv), opts=opts); t, d, errs = g.gen()
    for e in errs[:20]: print(e)
    assert not errs or 'force' in sys.argv
    ks = [ln, (t, d)]
    launches = [("ln_kernel", 256, 256, 0)]
    if 'full' in sys.argv:
        for k in ('j1', 'j2', 'j3'):
            tt, dd, ee = k_gemm.Gemm128(k + "_kernel", k).gen(); assert not ee, ee
            ks.append((tt, dd)); launches.append((k + "_kernel", 256, 256, 131072))
    launches.append(("attn_kernel", 256, 256, k_attn.LDS_BYTES))
    if 'full' in sys.argv:
        fo = dict(eval(a[2:]) for a in sys.argv if a.startswith('f:'))
        tt, dd, ee = k_final.gen_final(**fo); assert not ee, ee
        ks.append((tt, dd)); launches.append(("final_kernel", 256, 320 if fo.get('helper', True) else 256, 131072))
    nn = [int(a[5:]) for a in sys.argv if a.startswith('noop=')]
    if nn:
        p = Prog(); p.raw(kernel_header("noop_kernel")); p.I("s_endpgm")
        ks.append((p.text(), kernel_desc("noop_kernel", 8, 16, 8)))
        launches = launches[:1] + [("noop_kernel", 256, 256, 0)]*nn[0] + launches[1:]
    ends = {'ln_kernel': 'L_ln_end', 'attn_kernel': 'L_attn_end'}
    order = [l[0] for l in launches]
    ks2 = []
    for (t_, d_) in ks:
        nm = t_.split()[1]
        if nm in order and nm != 'noop_kernel':
            t_ = diag_wrap(t_, nm, order.index(nm), ends.get(nm, f'L_{nm}_end'))
        ks2.append((t_, d_))
    build(ks2, launches, path)
    print(g.stats)
```

```python
import re
from asmgen import *
from layout import *
import k_attn16 as KA
from k_attn16 import *
from k_gemm import gelu_ops, f2u, GC0, GC1, interleave

LDS_S0 = 131072
LDS_BYTES_A = 163840
S_X, S_WS = S_XN, S_O
S_W1, S_W2, S_H, S_DBG = 44, 48, 52, 56
S_PAR, S_CT, S_R01 = 41, 42, 43
S_R23, S_X01, S_X23, S_T2, S_T3, S_M0S, S_SPIN, S_C0, S_C1 = 60, 61, 62, 63, 64, 65, 66, 67, 68
V_ONES = 10
V_XR = 2
V_CSQ = 218
V_NMU, V_RS = 230, 234
V_POLL, V_POLLA = 226, 227
V_POLL2, V_POLLA2 = 138, 139
V_D3 = 128
V_A3K = 130
A_J2ACC, A_J2R = 192, 208
A_ST23 = 176
NRQ, LAGQ = 12, 6
def xreg(X, e):
    if e < 8: return a((e*4 + X)*4, 4)
    if e < 12: return a(192 + ((e-8)*4 + X)*4, 4)
    return v(144 + ((e-12)*4 + X)*4, 4)
def hreg(s_, e): return a((s_*16 + e)*4, 4)
J_ACC = lambda s_, nb: 16 + (s_*2 + nb)*4
J_CS = lambda nb: 32 + nb*4
J_SUM = lambda s_: 40 + 4*s_
J_GR = lambda s_: 48 + 4*s_
def ctr_off(kind): return 32*kind

class AGen(AttnGen):
    def __init__(self, opts=None):
        super().__init__(stamps=False, opts=opts)
        for k_, v_ in dict(j3=1, j3v=2, nopoll=0, ph=(1, 56, 66), st=('j1', 'qp', 'j2', 'ft', 'loop', 'epi')).items(): self.o.setdefault(k_, v_)
        self.vmq = []; self.vm_out = 0; self.lgq = []; self.tail = False
    def ms(self, name):
        if name in self.o['st']: mid_stamp(self.I, self.o['st'].index(name))
    def vm(self, tag, n=1): self.vmq += [tag]*n
    def wait_for(self, tag):
        idx = max(i for i, e in enumerate(self.vmq) if e == tag)
        return len(self.vmq) - 1 - idx
    def waitvm(self, tag):
        n = self.wait_for(tag)
        if n < self.vm_out: self.I(f"s_waitcnt vmcnt({n})")
    def emit(self, ins):
        if ins.kind == 'vmem':
            if self.vm_out >= 62: self.p.add(Ins("s_waitcnt vmcnt(54)")); self.vm_out = 54
            self.vm_out += 1
        if ins.op == 's_waitcnt':
            m = re.search(r'vmcnt\((\d+)\)', ins.text)
            if m: self.vm_out = min(self.vm_out, int(m.group(1)))
        self.p.add(ins); return ins

    def prologue_setup(self):
        I = self.I
        I("s_cmp_ge_u32 s2, 256")
        I("s_cbranch_scc1 L_a_end")
        I(f"s_load_dwordx2 {s(S_X,2)}, s[0:1], {ARG_X}")
        I(f"s_load_dwordx2 {s(S_W1,2)}, s[0:1], {ARG_W1}")
        I(f"s_load_dwordx2 {s(S_WQ,2)}, s[0:1], {ARG_WQ}")
        I(f"s_load_dwordx2 {s(S_K,2)}, s[0:1], {ARG_K}")
        I(f"s_load_dwordx2 {s(S_V,2)}, s[0:1], {ARG_V}")
        I(f"s_load_dwordx2 {s(S_W2,2)}, s[0:1], {ARG_W2}")
        I(f"s_load_dwordx2 {s(S_WS,2)}, s[0:1], {ARG_WS}")
        I(f"s_load_dwordx2 {s(S_DBG,2)}, s[0:1], {ARG_DBG}")
        I(f"v_lshrrev_b32 v1, 6, v0")
        I(f"s_and_b32 {s(S_T0)}, s2, 7")
        I(f"v_readfirstlane_b32 {s(S_W)}, v1")
        I(f"s_lshr_b32 {s(S_T1)}, s2, 3")
        I(f"s_and_b32 {s(S_HEAD)}, {s(S_T1)}, 3")
        I(f"s_lshl_b32 {s(S_T0)}, {s(S_T0)}, 2")
        I(f"s_add_u32 {s(S_HEAD)}, {s(S_HEAD)}, {s(S_T0)}")
        I(f"s_lshr_b32 {s(S_QB)}, s2, 5")
        I(f"s_and_b32 {s(S_PAR)}, {s(S_HEAD)}, 1"); I(f"s_lshr_b32 {s(S_CT)}, {s(S_HEAD)}, 1")
        I(f"s_lshl_b32 {s(S_T0)}, {s(S_QB)}, 4"); I(f"s_lshl_b32 {s(S_T1)}, {s(S_W)}, 2"); I(f"s_add_u32 {s(S_T0)}, {s(S_T0)}, {s(S_T1)}")
        I(f"s_lshl_b32 {s(S_T1)}, {s(S_PAR)}, 1"); I(f"s_add_u32 {s(S_R01)}, {s(S_T0)}, {s(S_T1)}")
        I(f"s_add_u32 {s(S_R23)}, {s(S_T0)}, 2"); I(f"s_sub_u32 {s(S_R23)}, {s(S_R23)}, {s(S_T1)}")
        I(f"s_lshl_b32 {s(S_X01)}, {s(S_R01)}, 14"); I(f"s_lshl_b32 {s(S_X23)}, {s(S_R23)}, 14")
        I("v_and_b32 v1, 63, v0")
        I(f"v_lshlrev_b32 {v(V_L16)}, 4, v1")
        I("v_and_b32 v2, 15, v1"); I("v_lshrrev_b32 v5, 4, v1")
        I("v_lshrrev_b32 v8, 3, v1"); I("v_and_b32 v9, 7, v1"); I("v_xor_b32 v9, v9, v8"); I("v_lshlrev_b32 v9, 4, v9"); I("v_lshl_add_u32 v3, v8, 10, v9")
        I("v_lshrrev_b32 v8, 2, v1"); I("v_lshlrev_b32 v8, 10, v8"); I("v_and_b32 v9, 3, v1")
        I("v_lshrrev_b32 v4, 5, v1"); I("v_lshlrev_b32 v4, 1, v4"); I("v_xor_b32 v4, v4, v9"); I("v_lshl_add_u32 v6, v4, 4, v8")
        I("v_bfe_u32 v4, v1, 4, 1"); I("v_lshlrev_b32 v4, 1, v4"); I("v_xor_b32 v4, v4, v9"); I(f"v_lshl_add_u32 {v(15)}, v4, 4, v8")
        I("s_waitcnt lgkmcnt(0)")
        def fin(S_, size):
            I(f"s_mov_b32 {s(S_+2)}, {size}"); I(f"s_mov_b32 {s(S_+3)}, 0x20000")
        fin(S_X, "0x200000")
        I(f"s_lshl_b32 {s(S_T0)}, {s(S_CT)}, 6")
        for S_ in (S_W1, S_W2):
            I(f"s_add_u32 {s(S_)}, {s(S_)}, {s(S_T0)}"); I(f"s_addc_u32 {s(S_+1)}, {s(S_+1)}, 0")
            I(f"s_sub_u32 {s(S_+2)}, 0x80000, {s(S_T0)}"); I(f"s_mov_b32 {s(S_+3)}, 0x20000")
        I(f"s_lshl_b32 {s(S_M0S)}, {s(S_W)}, 13"); I(f"s_add_u32 {s(S_M0S)}, {s(S_M0S)}, {LDS_S0}")
        self.slice_dma(S_W1, 6, 'w1', 'S0')
        I(f"s_lshl_b32 {s(S_T0)}, {s(S_W)}, 12")
        I(f"s_mov_b32 {s(S_M0K)}, {s(S_T0)}")
        I(f"s_add_u32 {s(S_M0V)}, {s(S_T0)}, {LDS_V}")
        for k in range(8): self.x_dma(0, k)
        I("v_and_b32 v1, 63, v0")
        I("v_xor_b32 v4, v5, v2"); I("v_lshlrev_b32 v4, 4, v4"); I("v_lshl_add_u32 v4, v2, 8, v4")
        I(f"s_lshl_b32 {s(S_T2)}, {s(S_W)}, 6"); I(f"v_xor_b32 v4, {s(S_T2)}, v4")
        for s_ in range(4): I(f"v_xor_b32 {v(V_AK+s_)}, {s_ << 6}, v4")
        I("v_lshrrev_b32 v8, 2, v1"); I("v_and_b32 v8, 3, v8")
        I("v_lshl_add_u32 v7, v5, 2, v8")
        I("v_and_b32 v9, 3, v1")
        I("v_and_b32 v4, 7, v7")
        I("v_lshlrev_b32 v10, 8, v7")
        I("v_lshl_add_u32 v11, v4, 5, v10"); I("v_lshl_add_u32 v11, v9, 3, v11")
        I(f"v_add_u32 v11, {LDS_V}, v11")
        for db in range(8): I(f"v_xor_b32 {v(V_AV+db)}, {db << 5}, v11")
        I("v_lshl_add_u32 v10, v5, 3, v8")
        I("v_lshlrev_b32 v12, 1, v4"); I("v_xor_b32 v12, v12, v9"); I("v_lshlrev_b32 v12, 4, v12"); I("v_lshl_add_u32 v12, v10, 8, v12")
        I(f"v_xor_b32 v12, {s(S_T2)}, v12")
        for e in range(4):
            I(f"v_xor_b32 {v(V_AW+e)}, {e << 6}, v12")
            I(f"v_add_u32 {v(V_AWV+e)}, {LDS_V}, {v(V_AW+e)}")
        I("v_and_b32 v12, 1, v5"); I("v_lshlrev_b32 v12, 5, v12"); I("v_lshl_add_u32 v12, v9, 3, v12"); I(f"v_add_u32 v12, {LDS_S0}, v12")
        I(f"v_lshl_add_u32 {v(222)}, v10, 6, v12"); I(f"v_xor_b32 {v(223)}, 32, {v(222)}")
        I(f"v_lshl_add_u32 {v(228)}, v7, 6, v12")
        for jj in range(4):
            I(f"v_add_u32 v8, {4*jj}, v5"); I("v_xor_b32 v8, v8, v2"); I("v_lshlrev_b32 v8, 4, v8")
            I(f"v_lshl_add_u32 {v(V_DK+jj)}, v5, 8, v8")
        for pj in range(2):
            I(f"v_add_u32 v8, {4*pj}, v5"); I("v_lshlrev_b32 v8, 1, v8"); I("v_xor_b32 v8, v8, v2"); I("v_lshlrev_b32 v8, 4, v8")
            I(f"v_lshl_add_u32 {v(V_DV+pj)}, v5, 8, v8")
            I(f"v_lshl_add_u32 {v(V_DW+pj)}, v5, 13, v8")
        I(f"s_lshl_b32 {s(S_T0)}, {s(S_HEAD)}, 19")
        for S_ in (S_K, S_V):
            I(f"s_add_u32 {s(S_)}, {s(S_)}, {s(S_T0)}"); I(f"s_addc_u32 {s(S_+1)}, {s(S_+1)}, 0")
            fin(S_, "0x80000")
        I(f"s_add_u32 {s(S_H)}, {s(S_WS)}, {WS_H}"); I(f"s_addc_u32 {s(S_H+1)}, {s(S_WS+1)}, 0"); fin(S_H, "0x200000")
        fin(S_WS, hex(33*MB)); fin(S_DBG, "0x100")
        I(f"s_lshl_b32 {s(S_T0)}, {s(S_HEAD)}, 8")
        I(f"s_add_u32 {s(S_WQ)}, {s(S_WQ)}, {s(S_T0)}"); I(f"s_addc_u32 {s(S_WQ+1)}, {s(S_WQ+1)}, 0")
        I(f"s_sub_u32 {s(S_WQ+2)}, 0x400000, {s(S_T0)}"); I(f"s_mov_b32 {s(S_WQ+3)}, 0x20000")
        I(f"s_lshl_b32 {s(S_T0)}, {s(S_W)}, 12")
        I(f"s_mov_b32 {s(S_KOFF)}, {s(S_T0)}")
        I(f"s_mov_b32 {s(S_VOFF)}, {s(S_T0)}")
        I(f"s_lshl_b32 {s(S_WOFF)}, {s(S_W)}, 17")
        I(f"s_mov_b32 {s(S_THR)}, 0x46000000")
        I(f"v_mov_b32 {v(V_THR)}, {s(S_THR)}")
        I(f"s_mov_b32 {s(S_SCALE)}, 0x3e0293ee")
        I("v_min_u32 v4, 2, v1"); I(f"v_add_u32 v4, {s(S_QB)}, v4"); I("v_max_u32 v4, 1, v4"); I("v_min_u32 v4, 8, v4"); I("v_subrev_u32 v4, 1, v4")
        I("v_and_b32 v8, 3, v4"); I("v_lshlrev_b32 v8, 6, v8"); I("v_lshrrev_b32 v4, 2, v4"); I(f"v_lshl_add_u32 {v(V_POLLA)}, v4, 2, v8")
        I(f"s_and_b32 {s(S_C0)}, {s(S_QB)}, 3"); I(f"s_lshl_b32 {s(S_C0)}, {s(S_C0)}, 6"); I(f"s_lshr_b32 {s(S_C1)}, {s(S_QB)}, 2"); I(f"s_lshl_b32 {s(S_C1)}, {s(S_C1)}, 2")
        I(f"s_add_u32 {s(S_C0)}, {s(S_C0)}, {s(S_C1)}")
        for k in range(4): I(f"v_mov_b32 {v(V_ONES+k)}, 0x3f803f80")
        I("v_and_b32 v8, 7, v2"); I("v_xor_b32 v8, v8, v5"); I("v_lshlrev_b32 v8, 4, v8"); I("v_lshl_add_u32 v8, v2, 7, v8")
        I(f"v_add_u32 v4, {s(S_M0K)}, v8"); I("v_xor_b32 v5, 64, v4"); I(f"v_add_u32 v6, {LDS_V}, v4"); I(f"v_add_u32 v7, {LDS_V}, v5")

    def x_dma_op(self, half, k, i):
        I = self.I
        reg, slot = self.WSLOT[k]
        s_, j = i >> 1, i & 1
        imm = s_*2048 + j*1024
        I(f"s_add_u32 m0, {s(S_M0K if reg == 'K' else S_M0V)}, {slot*SLOT}")
        I(f"s_add_u32 {s(S_T0)}, {s(S_X01 if half == 0 else S_X23)}, {s_*16384 + j*8192 + k*128 - imm}")
        I(f"buffer_load_dwordx4 v3, {s(S_X,4)}, {s(S_T0)} offen offset:{imm} lds", lds_w=(reg, slot, 'x')); self.vm(('x', half, k))
    def x_dma(self, half, k):
        for i in range(4): self.x_dma_op(half, k, i)
    def x_read(self, half, k):
        reg, slot = self.WSLOT[k]
        for e2 in range(2):
            for s_ in range(2):
                ar = (4 if reg == 'K' else 6) + e2
                self.I(f"ds_read_b128 {xreg(2*half + s_, 2*k + e2)}, {v(ar)} offset:{slot*SLOT + s_*2048}", lds_r=(reg, slot, 'xr')); self.lg(('xr', half, k))
    def x23_stage(self, k0, k1):
        for k in range(k0, k1):
            self.waitvm(('x', 1, k)); self.x_read(1, k)
            if k > k0: self.waitlg(('xr', 1, k-1)); self.wq_dma(k-1)
        self.waitlg(('xr', 1, k1-1)); self.wq_dma(k1-1)
    def lg(self, tag): self.lgq.append(tag)
    def waitlg(self, tag):
        idx = max(i for i, e in enumerate(self.lgq) if e == tag)
        self.I(f"s_waitcnt lgkmcnt({min(15, len(self.lgq) - 1 - idx)})")

    def slice_dma_op(self, srd, vo, tag, region, i):
        I = self.I
        h, jj = i >> 2, i & 3
        I(f"s_add_u32 m0, {s(S_M0S)}, {h*4096}")
        I(f"s_lshl_b32 {s(S_T0)}, {s(S_W)}, 17")
        I(f"s_add_u32 {s(S_T0)}, {s(S_T0)}, {(4*h + jj)*16384 - jj*1024}")
        I(f"buffer_load_dwordx4 {v(vo)}, {s(srd,4)}, {s(S_T0)} offen offset:{jj*1024} lds", lds_w=region); self.vm(tag)
    def slice_dma(self, srd, vo, tag, region):
        for i in range(8): self.slice_dma_op(srd, vo, tag, region, i)
    def kv_op(self, which, tile, jj):
        base = S_M0K if which == 'K' else S_M0V
        self.I(f"s_add_u32 m0, {s(base)}, {(tile & 3)*SLOT}")
        self.I("s_nop 0")
        self.emit_dma(which, tile, jj); self.vm(('kv', (which, tile)))
        if jj == 3:
            off = S_KOFF if which == 'K' else S_VOFF
            self.I(f"s_add_u32 {s(off)}, {s(off)}, {SLOT}")

    def wq_dma(self, c):
        reg, slot = self.WSLOT[c]
        base = S_M0K if reg == 'K' else S_M0V
        self.I(f"s_add_u32 m0, {s(base)}, {slot*SLOT}")
        for jj in range(4):
            self.I(f"s_add_u32 {s(S_T0)}, {s(S_WOFF)}, {(64*c + 4*jj)*8192 - jj*1024}")
            self.I(f"buffer_load_dwordx4 {v(V_DW+(jj>>1))}, {s(S_WQ,4)}, {s(S_T0)} offen offset:{jj*1024} lds", lds_w=(reg, slot)); self.vm(('w', c))
    def wread(self, rho):
        phi, t = rho >> 1, rho & 1
        c, e2, nb = phi >> 4, (phi >> 3) & 1, phi & 7
        ep, b = nb >> 1, nb & 1
        reg, slot = self.WSLOT[c]
        ar = (V_AW if reg == 'K' else V_AWV) + ep
        return Ins(f"ds_read_b64_tr_b16 {a(A_WF + 4*(phi % NRQ) + 2*t, 2)}, {v(ar)} offset:{slot*SLOT + e2*8192 + t*1024 + 8*b}", lds_r=(reg, slot))

    def row_stats(self, s_, sum_txt, gr_regs, t=8, t2=9):
        I = self.I
        I(f"v_mov_b32 {v(t)}, 0")
        for r in range(4):
            I(f"s_mov_b32 vcc_lo, 0x{((1 | (1 << 20)) << r):x}"); I(f"s_mov_b32 vcc_hi, 0x{(((1 << 8) | (1 << 28)) << r) & 0xffffffff:x}")
            I(f"v_cndmask_b32 {v(t)}, {v(t)}, {v(gr_regs[r])}, vcc")
        for sw in ('16', '32'):
            I(f"v_mov_b32 {v(t2)}, {v(t)}"); I("s_nop 1"); I(f"v_permlane{sw}_swap_b32 {v(t)}, {v(t2)}"); I("s_nop 0"); I(f"v_add_f32 {v(t)}, {v(t)}, {v(t2)}")
        nm, rs = V_NMU + s_, V_RS + s_
        I(f"v_mul_f32 {v(nm)}, 0xbb000000, {sum_txt}")
        I(f"v_mul_f32 {v(t)}, 0x3b000000, {v(t)}")
        I(f"v_fma_f32 {v(t)}, -{v(nm)}, {v(nm)}, {v(t)}")
        I(f"v_max_f32 {v(t)}, 0, {v(t)}")
        I(f"v_add_f32 {v(t2)}, 0x3727c5ac, {v(t)}")
        I(f"v_rsq_f32 {v(rs)}, {v(t2)}")
        return t

    def j1(self):
        I = self.I
        NF = 32; LA = 4
        AJ = 222
        def rd(phi):
            e, nb = phi >> 1, phi & 1
            for t in range(2):
                self.emit(Ins(f"ds_read_b64_tr_b16 {a(A_WF + 4*(phi % 8) + 2*t, 2)}, {v(AJ+nb)} offset:{e*2048 + t*256}", lds_r='S0')); self.lg(('w1', phi))
        self.ms('s0')
        self.waitvm(('x', 0, 0)); self.x_read(0, 0)
        self.ms('x0')
        I("s_barrier")
        for phi in range(LA): rd(phi)
        nread = LA
        for e in range(16):
            k = e >> 1
            if e % 2 == 0:
                if k < 7: self.waitvm(('x', 0, k+1)); self.x_read(0, k+1)
                self.waitlg(('xr', 0, k))
            first = (e == 0)
            def M(d, A, B): I(f"{MFMA} {v(d,4)}, {A}, {B}, {'0' if first else v(d,4)}")
            for s_ in range(2):
                M(J_SUM(s_), v(V_ONES, 4), xreg(s_, e)); M(J_GR(s_), xreg(s_, e), xreg(s_, e))
            for nb in range(2):
                phi = 2*e + nb
                self.waitlg(('w1', phi))
                A = a(A_WF + 4*(phi % 8), 4)
                for s_ in range(2): M(J_ACC(s_, nb), A, xreg(s_, e))
                self.x_dma_op(1, k, 2*(e & 1) + nb)
                M(J_CS(nb), A, v(V_ONES, 4))
                if nread < NF: rd(nread); nread += 1
        self.ms('j1m')
        self.x23_stage(0, 2)
        self.ms('j1x')
        I("s_nop 7")
        I(f"s_mov_b32 {s(S_T2)}, 0x{f2u(GC0):x}"); I(f"v_mov_b32 v1, 0x{f2u(GC1):x}")
        for s_ in range(2):
            t = self.row_stats(s_, v(J_SUM(s_)), [J_GR(s_)+r for r in range(4)])
            I(f"v_mul_f32 {v(t)}, {v(t)}, {v(V_RS+s_)}"); I(f"v_mul_f32 {v(t)}, {v(t)}, {v(V_RS+s_)}")
            I(f"v_add_f32 {v(t)}, 0x3727c5ac, {v(t)}"); I(f"v_rsq_f32 {v(t)}, {v(t)}")
            I("s_nop 0")
            I(f"v_mul_f32 {v(60+s_)}, {v(t)}, {v(V_RS+s_)}")
        seqs = []
        for s_ in range(2):
            for nb in range(2):
                for r in range(4):
                    x = J_ACC(s_, nb) + r
                    q = Prog()
                    q.I(f"v_fma_f32 {v(x)}, {v(V_NMU+s_)}, {v(J_CS(nb)+r)}, {v(x)}")
                    q.I(f"v_mul_f32 {v(x)}, {v(x)}, {v(60+s_)}")
                    gelu_ops(q.I, x, 64 + (s_*2+nb)*4 + r, None, s(S_T2), "v1"); seqs.append(q.items)
        self.p.extend(interleave(seqs))
        I(f"s_lshl_b32 {s(S_T0)}, {s(S_CT)}, 10"); I(f"s_add_u32 {s(S_T0)}, {s(S_T0)}, {s(S_X01)}")
        for s_ in range(2):
            for jj in range(4):
                x0 = J_ACC(s_, jj >> 1) + 2*(jj & 1)
                I(f"v_cvt_pk_bf16_f32 {v(80+s_*4+jj)}, {v(x0)}, {v(x0+1)}")
            I(f"buffer_store_dwordx4 {v(80+s_*4,4)}, {v(V_L16)}, {s(S_H,4)}, {s(S_T0)} offen offset:0 sc1" if s_ == 0 else
              f"buffer_store_dwordx4 {v(80+s_*4,4)}, {v(V_L16)}, {s(S_H,4)}, {s(S_T1)} offen offset:0 sc1"); self.vm('hst')
            if s_ == 0: I(f"s_add_u32 {s(S_T1)}, {s(S_T0)}, 16384")
        self.ms('j1s')
        self.x23_stage(2, 8)

    def signal(self, kind, lab):
        I = self.I
        I(f"s_cmp_lg_u32 {s(S_W)}, 0"); I(f"s_cbranch_scc1 {lab}")
        I("s_mov_b64 exec, 1")
        I("v_mov_b32 v8, 1"); I("v_mov_b32 v9, 0")
        I(f"buffer_atomic_add v8, v9, {s(S_DBG,4)}, {s(S_C0)} offen offset:{ctr_off(kind)} sc1")
        I("s_mov_b64 exec, -1")
        self.p.L(lab)
    def poll_issue(self, dst, addr, kind):
        self.I(f"buffer_load_dword {v(dst)}, {v(addr)}, {s(S_DBG,4)}, 0 offen offset:{ctr_off(kind)} sc1")
    def poll_check(self, dst, addr, kind, lab):
        I = self.I
        I(f"v_cmp_gt_u32 vcc, 32, {v(dst)}"); I("s_nop 0")
        I(f"s_cbranch_vccz {lab}_ok")
        save = self.vm_out
        I(f"s_mov_b32 {s(S_SPIN)}, 20000")
        self.p.L(f"{lab}_spin")
        I(f"buffer_load_dword {v(dst)}, {v(addr)}, {s(S_DBG,4)}, 0 offen offset:{ctr_off(kind)} sc1").nowarn = True
        I("s_waitcnt vmcnt(0)")
        I(f"v_cmp_gt_u32 vcc, 32, {v(dst)}"); I("s_nop 0")
        I(f"s_cbranch_vccz {lab}_ok")
        I(f"s_sub_u32 {s(S_SPIN)}, {s(S_SPIN)}, 1"); I(f"s_cmp_lg_u32 {s(S_SPIN)}, 0"); I(f"s_cbranch_scc1 {lab}_spin")
        self.p.L(f"{lab}_ok")
        self.vm_out = save

    def h_ops(self):
        I = self.I
        ops = []
        def setup():
            I(f"v_lshrrev_b32 v0, 4, {v(V_L16)}"); I("v_and_b32 v1, 15, v0"); I("v_and_b32 v8, 48, v0")
        def addr(cg, s_):
            dl = (1, -1, 2, -2)[cg]; dst = 2 + 2*(cg & 1) + s_
            I(f"s_add_u32 {s(S_T2)}, {s(S_R01)}, {s_}"); I(f"s_lshl_b32 {s(S_T2)}, {s(S_T2)}, 4")
            I(f"v_add_u32 v6, {s(S_T2)}, v1")
            I(f"v_subrev_u32 v6, {dl}, v6") if dl > 0 else I(f"v_add_u32 v6, {-dl}, v6")
            I(f"v_ashrrev_i32 v7, 4, v6"); I(f"v_lshlrev_b32 v7, 14, v7")
            I(f"v_and_b32 v6, 15, v6"); I(f"v_add_u32 v6, v6, v8"); I(f"v_lshl_add_u32 {v(dst)}, v6, 4, v7")
        def mk(e, s_):
            def f():
                cg = e >> 2
                if e == 0 and s_ == 0: setup()
                if (e & 3) == 0: addr(cg, s_)
                I(f"s_mov_b32 {s(S_T3)}, {cg*4096}")
                I(f"buffer_load_dwordx4 {hreg(s_, e)}, {v(2 + 2*(cg & 1) + s_)}, {s(S_H,4)}, {s(S_T3)} offen offset:{(e&3)*1024} sc1"); self.vm(('h', e))
            return f
        for e in range(16):
            for s_ in range(2): ops.append(mk(e, s_))
        def mkx(s_, nb):
            def f():
                if s_ == 0 and nb == 0:
                    I("v_lshlrev_b32 v6, 10, v1"); I("v_lshrrev_b32 v7, 1, v8"); I("v_add_u32 v0, v6, v7")
                I(f"s_lshl_b32 {s(S_T2)}, {s(S_CT)}, 6"); I(f"s_add_u32 {s(S_T2)}, {s(S_T2)}, {s(S_X01)}")
                if s_ == 1: I(f"s_add_u32 {s(S_T2)}, {s(S_T2)}, 16384")
                I(f"buffer_load_dwordx2 {v(V_XR + (s_*2+nb)*2, 2)}, v0, {s(S_X,4)}, {s(S_T2)} offen offset:{nb*32}"); self.vm('xr')
            return f
        for s_ in range(2):
            for nb in range(2): ops.append(mkx(s_, nb))
        return ops

    def qproj(self):
        I = self.I; p = self.p
        after_chunk = {0: ('K', 0), 1: ('K', 1), 2: ('V', 0), 3: ('K', 2), 4: ('V', 1), 5: ('V', 2)}
        PH_SIG, PH_POLL, PH_H = self.o['ph']
        qa = []
        for i in range(8): qa.append((1 + i, (lambda i=i: self.slice_dma_op(S_W2, 15, 'w2', 'S0', i))))
        for c_, (w_, t_) in after_chunk.items():
            for jj in range(4): qa.append((16*(c_+1) + 10 + jj, (lambda w_=w_, t_=t_, jj=jj: self.kv_op(w_, t_, jj))))
        qb_ = [(PH_H + i, f) for i, f in enumerate(self.h_ops())]
        self.waitvm(('w', 0)); I("s_barrier")
        for rho in range(2*LAGQ): self.emit(self.wread(rho))
        nread = 2*LAGQ
        for phi in range(128):
            c, e2, nb = phi >> 4, (phi >> 3) & 1, phi & 7
            e = 2*c + e2
            I(f"s_waitcnt lgkmcnt({nread - 2*(phi+1)})")
            A = a(A_WF + 4*(phi % NRQ), 4)
            for X in range(4):
                d = v(V_QACC + (X*8+nb)*4, 4)
                I(f"{MFMA} {d}, {A}, {xreg(X, e)}, {'0' if e == 0 else d}")
                if X in (0, 2) and nread < 256:
                    if nread % 32 == 0:
                        cn = nread >> 5
                        if cn == PH_SIG: self.waitvm('hst')
                        self.waitvm(('w', cn))
                        I("s_barrier")
                        if cn == PH_SIG: self.signal(0, "L_sig1")
                    self.emit(self.wread(nread)); nread += 1
                if X == 1 and qa and qa[0][0] <= phi: qa.pop(0)[1]()
                if X == 3 and qb_ and qb_[0][0] <= phi: qb_.pop(0)[1]()
            if nb < 2:
                d = v(V_CSQ + nb*4, 4)
                I(f"{MFMA} {d}, {A}, {v(V_ONES,4)}, {'0' if e == 0 else d}")
            elif nb < 6:
                k = nb - 2; s_ = k & 1
                d = a(A_ST23 + 4*k, 4)
                Aop = v(V_ONES, 4) if k < 2 else xreg(2+s_, e)
                I(f"{MFMA} {d}, {Aop}, {xreg(2+s_, e)}, {'0' if e == 0 else d}")
            self.ms(f'q{phi}')
            if phi == PH_POLL and not self.o['nopoll']:
                self.poll_issue(V_POLL, V_POLLA, 0); self.vm('poll')
            if phi == PH_H - 1:
                if not self.o['nopoll']:
                    self.waitvm('poll'); self.poll_check(V_POLL, V_POLLA, 0, "L_p1")
                self.ms('pc')
        assert not qa and not qb_, (qa, qb_)
        self.ms('qp')

    def j2(self):
        I = self.I
        I(f"v_xor_b32 {v(229-1+0)}, 0, {v(228)}") if False else None
        I(f"v_xor_b32 v1, 32, {v(228)}")
        NF = 32; LA = 6; NR = 12
        def rd(phi):
            e, nb = phi >> 1, phi & 1
            for t in range(2):
                self.emit(Ins(f"ds_read_b64_tr_b16 {a(A_J2R + 4*(phi % NR) + 2*t, 2)}, {v(228) if nb == 0 else 'v1'} offset:{e*2048 + t*1024}", lds_r='S0'))
        self.waitvm('w2'); I("s_barrier")
        I(f"s_lshl_b32 {s(S_T0)}, {s(S_W)}, 11"); I(f"s_add_u32 {s(S_T0)}, {s(S_T0)}, {3*SLOT}")
        I(f"v_add_u32 v0, {s(S_T0)}, {v(V_L16)}")
        for b in range(2): I(f"ds_write_b128 v0, {v(V_CSQ+4*b,4)} offset:{b*1024}", lds_w=('K', 3))
        for phi in range(LA): rd(phi)
        nread = LA
        for e in range(16):
            if e % 2 == 0: self.waitvm(('h', e + 1))
            for nb in range(2):
                phi = 2*e + nb
                I(f"s_waitcnt lgkmcnt({min(15, 2*(nread - phi - 1))})")
                A = a(A_J2R + 4*(phi % NR), 4)
                for s_ in range(2):
                    d = a(A_J2ACC + (s_*2+nb)*4, 4)
                    I(f"{MFMA} {d}, {A}, {hreg(s_, e)}, {'0' if e == 0 else d}")
                if nread < NF: rd(nread); nread += 1
        for s_ in range(2):
            for r in range(4): I(f"v_accvgpr_read_b32 {v(208+r)}, {a(A_ST23 + 8 + 4*s_ + r)}")
            I(f"v_accvgpr_read_b32 {v(212)}, {a(A_ST23 + 4*s_)}")
            self.row_stats(2+s_, v(212), [208+r for r in range(4)], 213, 214)
        self.waitvm('xr')
        I(f"s_lshl_b32 {s(S_T0)}, {s(S_CT)}, 10"); I(f"s_add_u32 {s(S_T0)}, {s(S_T0)}, {s(S_X01)}"); I(f"s_add_u32 {s(S_T0)}, {s(S_T0)}, {WS_X1}")
        I(f"s_lshl_b32 {s(S_T1)}, {s(S_CT)}, 14"); I(f"s_lshl_b32 {s(S_T2)}, {s(S_R01)}, 7"); I(f"s_add_u32 {s(S_T1)}, {s(S_T1)}, {s(S_T2)}"); I(f"s_add_u32 {s(S_T1)}, {s(S_T1)}, {WS_STAT}")
        for s_ in range(2):
            acc, pk = 208, 216
            for j in range(8): I(f"v_accvgpr_read_b32 {v(acc+j)}, {a(A_J2ACC + s_*8 + j)}")
            if s_ == 0: I("s_waitcnt lgkmcnt(0)")
            for j in range(8):
                src = V_XR + s_*4 + (j >> 1)
                I(f"v_lshlrev_b32 v0, 16, {v(src)}") if (j & 1) == 0 else I(f"v_and_b32 v0, 0xffff0000, {v(src)}")
                I(f"v_add_f32 v0, v0, {v(V_NMU+s_)}")
                I(f"v_fma_f32 {v(acc+j)}, v0, {v(V_RS+s_)}, {v(acc+j)}")
            for jj in range(4): I(f"v_cvt_pk_bf16_f32 {v(pk+4*s_+jj)}, {v(acc+2*jj)}, {v(acc+2*jj+1)}")
            I(f"buffer_store_dwordx4 {v(pk+4*s_,4)}, {v(V_L16)}, {s(S_WS,4)}, {s(S_T0)} offen sc1"); self.vm('x1st')
            if s_ == 0: I(f"s_add_u32 {s(S_T0)}, {s(S_T0)}, 16384")
            sm, sq = 208 + 0, 209
            for jj in range(4):
                I(f"v_lshlrev_b32 v0, 16, {v(pk+4*s_+jj)}"); I(f"v_and_b32 v1, 0xffff0000, {v(pk+4*s_+jj)}")
                if jj == 0:
                    I(f"v_add_f32 {v(sm)}, v0, v1"); I(f"v_mul_f32 {v(sq)}, v0, v0")
                else:
                    I(f"v_add_f32 {v(sm)}, {v(sm)}, v0"); I(f"v_add_f32 {v(sm)}, {v(sm)}, v1"); I(f"v_fmac_f32 {v(sq)}, v0, v0")
                I(f"v_fmac_f32 {v(sq)}, v1, v1")
            for r_ in (sm, sq):
                for sw_ in ('16', '32'):
                    I(f"v_mov_b32 v0, {v(r_)}"); I("s_nop 1"); I(f"v_permlane{sw_}_swap_b32 {v(r_)}, v0"); I("s_nop 0"); I(f"v_add_f32 {v(r_)}, {v(r_)}, v0")
            I(f"v_lshrrev_b32 v0, 1, {v(V_L16)}")
            I("s_mov_b64 exec, 0xffff")
            I(f"buffer_store_dwordx2 {v(sm,2)}, v0, {s(S_WS,4)}, {s(S_T1)} offen offset:{s_*128} sc1"); self.vm('x1st')
            I("s_mov_b64 exec, -1")

    def q_convert_and_first_tile(self, sched):
        I = self.I
        vmq = self.vmq
        idx = max(max(i for i, e in enumerate(vmq) if e == ('kv', kk)) for kk in (('K', 0), ('K', 1), ('V', 0)))
        I(f"s_waitcnt vmcnt({len(vmq) - 1 - idx}) lgkmcnt(0)")
        I("s_barrier")
        for f in range(8): self.emit(kread(0, f))
        for X in range(4): I(f"v_mul_f32 {v(V_RS+X)}, {s(S_SCALE)}, {v(V_RS+X)}")
        CS = 208
        for h in range(2):
            for k in range(2):
                ep = 2*h + k
                I(f"s_xor_b32 {s(S_T0)}, {s(S_W)}, {ep}"); I(f"s_lshl_b32 {s(S_T0)}, {s(S_T0)}, 11"); I(f"s_add_u32 {s(S_T0)}, {s(S_T0)}, {3*SLOT}")
                I(f"v_add_u32 v{k}, {s(S_T0)}, {v(V_L16)}")
                for b in range(2): I(f"ds_read_b128 {v(CS + (k*2+b)*4, 4)}, v{k} offset:{b*1024}", lds_r=('K', 3))
            I("s_waitcnt lgkmcnt(0)")
            for X in range(4):
                pr = lambda base: v(base + (X & ~1), 2)
                hi = X & 1
                for k in range(2):
                    ep = 2*h + k
                    for b in range(2):
                        base = V_QACC + (X*8 + 2*ep + b)*4
                        for r in range(0, 4, 2):
                            I(f"v_pk_fma_f32 {v(base+r,2)}, {v(CS+(k*2+b)*4+r,2)}, {pr(V_NMU)}, {v(base+r,2)} op_sel:[0,{hi},0] op_sel_hi:[1,{hi},1]")
                        for r in range(0, 4, 2):
                            I(f"v_pk_mul_f32 {v(base+r,2)}, {v(base+r,2)}, {pr(V_RS)} op_sel:[0,{hi}] op_sel_hi:[1,{hi}]")
                        for jj in range(2):
                            I(f"v_cvt_pk_bf16_f32 {v(Qreg(X, ep) + 2*b + jj)}, {v(base+2*jj)}, {v(base+2*jj+1)}")
        I("s_waitcnt lgkmcnt(0)")
        zi = 0
        for g in range(32):
            X, kb2, s_ = g >> 3, (g >> 2) & 1, g & 3
            d = v(Sreg(0, X, kb2), 4)
            I(f"{MFMA} {d}, {a(A_KF + (kb2*4+s_)*4, 4)}, {v(Qreg(X, s_), 4)}, {'0' if s_ == 0 else d}")
            for z in range(4):
                I(f"v_accvgpr_write_b32 {a(A_O + zi)}, 0"); zi += 1
        for f in range(8): self.emit(kread(1, f))
        for X in range(4): I(f"v_mov_b32 {v(V_L+X)}, 0")
        I("s_nop 3")
        for X in range(4):
            mx, t2 = V_TMP, V_TMP+1
            S0 = Sreg(0, X)
            I(f"v_max3_f32 {v(mx)}, {v(S0)}, {v(S0+1)}, {v(S0+2)}")
            I(f"v_max3_f32 {v(mx)}, {v(mx)}, {v(S0+3)}, {v(S0+4)}")
            I(f"v_max3_f32 {v(mx)}, {v(mx)}, {v(S0+5)}, {v(S0+6)}")
            I(f"v_max_f32 {v(mx)}, {v(mx)}, {v(S0+7)}")
            for sw in ('16', '32'):
                I(f"v_mov_b32 {v(t2)}, {v(mx)}")
                I("s_nop 1")
                I(f"v_permlane{sw}_swap_b32 {v(mx)}, {v(t2)}")
                I("s_nop 0")
                I(f"v_max_f32 {v(mx)}, {v(mx)}, {v(t2)}")
            for r in range(8): I(f"v_sub_f32 {v(S0+r)}, {v(S0+r)}, {v(mx)}")
            for r in range(4): I(f"v_sub_f32 {v(V_NEGM+X*4+r)}, 0, {v(mx)}")
        for g in range(self.G0, NG):
            self.gap_valu(-NG + g, sched)
        I("s_waitcnt vmcnt(0) lgkmcnt(0)")
        I("s_barrier")
        self.signal(1, "L_sig2")
        I("v_and_b32 v1, 63, v0") if False else None

    W3SLOT = [('K', 0), ('V', 0), ('K', 1), ('V', 1), ('K', 2), ('V', 2), ('K', 3), ('V', 3)]
    def w3_dma_one(self, c, jj):
        reg, slot = self.W3SLOT[c]
        self.I(f"s_add_u32 {s(S_T0)}, {s(S_WOFF)}, {(64*c + 4*jj)*3584 - jj*1024}")
        self.I(f"buffer_load_dwordx4 {v(V_D3+(jj&1))}, {s(S_W1,4)}, {s(S_T0)} offen offset:{jj*1024} lds", lds_w=(reg, slot))
    def emit_dma(self, which, tile, jj):
        if tile >= 32:
            c = 2*(tile - 32) + (0 if which == 'K' else 1)
            self.w3_dma_one(c, jj); self.vm(('w3', c)); return
        super().emit_dma(which, tile, jj)
        if self.tail: self.vm(('t', tile))
    def j3_setup(self):
        I = self.I
        I(f"s_load_dwordx2 {s(S_W1,2)}, s[0:1], {ARG_W3}")
        I(f"v_lshrrev_b32 v1, 4, {v(V_L16)}"); I("v_and_b32 v2, 15, v1"); I("v_lshrrev_b32 v5, 4, v1")
        I("v_mul_u32_u24 v9, 3584, v5")
        for pj in range(2):
            I(f"v_add_u32 v8, {4*pj}, v5"); I("v_lshlrev_b32 v8, 1, v8"); I("v_xor_b32 v8, v8, v2"); I("v_min_u32 v8, 13, v8"); I("v_lshlrev_b32 v8, 4, v8")
            I(f"v_add_u32 {v(V_D3+pj)}, v9, v8")
        I(f"v_mov_b32 {v(V_POLLA2)}, {s(S_C0)}")
        I("s_waitcnt lgkmcnt(0)")
        I(f"s_mul_i32 {s(S_T0)}, {s(S_CT)}, 224")
        I(f"s_add_u32 {s(S_W1)}, {s(S_W1)}, {s(S_T0)}"); I(f"s_addc_u32 {s(S_W1+1)}, {s(S_W1+1)}, 0")
        I(f"s_sub_u32 {s(S_W1+2)}, {512*3584}, {s(S_T0)}"); I(f"s_mov_b32 {s(S_W1+3)}, 0x20000")
        I(f"s_mul_i32 {s(S_WOFF)}, {s(S_W)}, {16*3584}")
        self.poll_issue(V_POLL2, V_POLLA2, 1)

    @staticmethod
    def x1reg(s_, e): return a(192 + (e*2 + s_)*4, 4) if e < 8 else v(16 + ((e-8)*2 + s_)*4, 4)
    def x1_op(self, s_, e):
        I = self.I
        I(f"s_add_u32 {s(S_T3)}, {s(S_X01)}, {WS_X1 + s_*16384 + (e & ~3)*1024}")
        I(f"buffer_load_dwordx4 {self.x1reg(s_, e)}, {v(V_L16)}, {s(S_WS,4)}, {s(S_T3)} offen offset:{(e&3)*1024} sc1"); self.vm(('x1', e))
    def st_op(self, k, s_):
        I = self.I
        if k == 0 and s_ == 0:
            I(f"v_lshrrev_b32 v1, 4, {v(V_L16)}"); I("v_and_b32 v2, 15, v1"); I("v_lshrrev_b32 v5, 4, v1")
            I("v_lshlrev_b32 v2, 3, v2"); I("v_lshl_add_u32 v2, v5, 16, v2")
        I(f"s_lshl_b32 {s(S_T2)}, {s(S_R01)}, 7"); I(f"s_add_u32 {s(S_T2)}, {s(S_T2)}, {WS_STAT + k*16384}")
        I(f"buffer_load_dwordx2 {v(208 + (s_*4+k)*2, 2)}, v2, {s(S_WS,4)}, {s(S_T2)} offen offset:{s_*128} sc1"); self.vm('st')

    def o_epilogue_items(self):
        q = []
        A = lambda t: q.append(Ins(t))
        for X in range(4):
            l, t2 = V_L + X, V_TMP + X
            for sw in ('16', '32'):
                A(f"v_mov_b32 {v(t2)}, {v(l)}"); A("s_nop 1"); A(f"v_permlane{sw}_swap_b32 {v(l)}, {v(t2)}"); A("s_nop 0"); A(f"v_add_f32 {v(l)}, {v(l)}, {v(t2)}")
            A(f"v_rcp_f32 {v(l)}, {v(l)}")
        stage = 80; n = 0
        for X in range(4):
            A(f"s_lshl_b32 {s(S_OOFF)}, {s(S_HEAD)}, 12"); A(f"s_add_u32 {s(S_OOFF)}, {s(S_OOFF)}, {WS_O + (X & 1)*131072}")
            A(f"s_lshl_b32 {s(S_C1)}, {s(S_R01 if X < 2 else S_R23)}, 17"); A(f"s_add_u32 {s(S_OOFF)}, {s(S_OOFF)}, {s(S_C1)}")
            for e in range(4):
                f = stage + (n % 4)*12; n += 1
                for j in range(8): A(f"v_accvgpr_read_b32 {v(f+j)}, {a(Oreg(X, 2*e + (j >> 2)) + (j & 3))}")
                for j in range(8): A(f"v_mul_f32 {v(f+j)}, {v(f+j)}, {v(V_L+X)}")
                for jj in range(4): A(f"v_cvt_pk_bf16_f32 {v(f+8+jj)}, {v(f+2*jj)}, {v(f+2*jj+1)}")
                q.append(('vm', f"buffer_store_dwordx4 {v(f+8,4)}, {v(V_L16)}, {s(S_WS,4)}, {s(S_OOFF)} offen offset:{e*1024}", 'ost'))
        return q

    def j3(self):
        I = self.I; p = self.p
        for c in range(7): I(f"v_subrev_u32 {v(V_A3K+c)}, {LDS_V}, {v(V_AV+c)}")
        I(f"s_lshl_b32 {s(S_T0)}, {s(S_W)}, 6")
        for c in range(2):
            I(f"v_xor_b32 {v(140+c)}, {s(S_T0)}, {v(V_AV+c)}"); I(f"v_subrev_u32 {v(142+c)}, {LDS_V}, {v(140+c)}")
        for k in range(4): I(f"v_mov_b32 {v(V_ONES+k)}, 0x3f803f80")
        ACC = lambda s_, cb: 144 + (s_*7 + cb)*4
        CSA = lambda c: 200 + 4*c
        blks = []
        for e in range(16):
            c = e >> 1; reg, slot = self.W3SLOT[c]; off = slot*SLOT + (e & 1)*8192
            for cb in range(7): blks.append((e, (V_AV if reg == 'V' else V_A3K) + cb, cb, False, off, (reg, slot)))
            for cb in range(2): blks.append((e, (140 if reg == 'V' else 142) + cb, cb, True, off, (reg, slot)))
        LA, NR = 6, 12
        vops = []
        for c in (6, 7):
            for jj in range(4):
                def f(c=c, jj=jj):
                    reg, slot = self.W3SLOT[c]
                    I(f"s_add_u32 m0, {s(S_M0K if reg == 'K' else S_M0V)}, {slot*SLOT}")
                    self.w3_dma_one(c, jj); self.vm(('w3', c))
                vops.append(f)
        for e in range(8, 16):
            for s_ in range(2): vops.append(lambda s_=s_, e=e: self.x1_op(s_, e))
        for k in range(4):
            for s_ in range(2): vops.append(lambda k=k, s_=s_: self.st_op(k, s_))
        side = self.o_epilogue_items()
        side.append(('wait', 'st'))
        for s_ in range(2):
            b = 208 + s_*8
            for j in range(2):
                side += [Ins(f"v_add_f32 {v(b+j)}, {v(b+j)}, {v(b+2+j)}"), Ins(f"v_add_f32 {v(b+4+j)}, {v(b+4+j)}, {v(b+6+j)}"), Ins(f"v_add_f32 {v(b+j)}, {v(b+j)}, {v(b+4+j)}")]
                for sw_ in ('16', '32'):
                    side += [Ins(f"v_mov_b32 v0, {v(b+j)}"), Ins("s_nop 1"), Ins(f"v_permlane{sw_}_swap_b32 {v(b+j)}, v0"), Ins("s_nop 0"), Ins(f"v_add_f32 {v(b+j)}, {v(b+j)}, v0")]
            side += [Ins(f"v_mul_f32 {v(b)}, 0xbb000000, {v(b)}"), Ins(f"v_mul_f32 {v(b+1)}, 0x3b000000, {v(b+1)}"),
                     Ins(f"v_fma_f32 {v(b+1)}, -{v(b)}, {v(b)}, {v(b+1)}"), Ins(f"v_max_f32 {v(b+1)}, 0, {v(b+1)}"),
                     Ins(f"v_add_f32 {v(b+1)}, 0x3727c5ac, {v(b+1)}"), Ins(f"v_rsq_f32 {v(b+1)}, {v(b+1)}")]
        def drain(n):
            k = 0
            while side and k < n:
                it = side.pop(0)
                if isinstance(it, Ins):
                    self.emit(it); k += 0 if it.op.startswith('s_') else 1
                elif it[0] == 'vm': I(it[1]); self.vm(it[2]); k += 1
                else: self.waitvm(it[1])
        def issue_read(n):
            e, ar, cb, iscs, off, region = blks[n]
            c = e >> 1
            if n == 0 or (blks[n-1][0] >> 1) != c:
                if c in (0, 4, 6):
                    self.waitvm(('w3', {0: 3, 4: 5, 6: 7}[c])); I("s_barrier")
            r = A_WF + (n % NR)*4
            for t in range(2): I(f"ds_read_b64_tr_b16 {a(r+2*t,2)}, {v(ar)} offset:{off + t*4096}", lds_r=region)
        for n in range(LA): issue_read(n)
        nread = LA; nm = 0
        for n, (e, ar, cb, iscs, off, region) in enumerate(blks):
            if (n == 0 or blks[n-1][0] != e): self.ms(f'e{e}')
            if (n == 0 or blks[n-1][0] != e) and (e & 1) == 0: self.waitvm(('x1', e + 1)); self.ms(f'w{e}')
            I(f"s_waitcnt lgkmcnt({2*(nread - n - 1)})")
            A = a(A_WF + (n % NR)*4, 4)
            ms_ = [(CSA(cb), v(V_ONES, 4))] if iscs else [(ACC(s_, cb), self.x1reg(s_, e)) for s_ in range(2)]
            for i_, (d, B) in enumerate(ms_):
                I(f"{MFMA} {v(d,4)}, {A}, {B}, {'0' if e == 0 else v(d,4)}"); nm += 1
                if i_ == 0 and nread < len(blks): issue_read(nread); nread += 1
                elif vops and nm % 2 == 0: vops.pop(0)()
                drain(self.o['j3v'] if nm > 4 else 0)
        assert not vops
        drain(10000)
        self.ms('j3m')
        I(f"s_lshl_b32 {s(S_T0)}, {s(S_W)}, 11"); I(f"s_add_u32 {s(S_T0)}, {s(S_T0)}, {LDS_S0}")
        I(f"v_add_u32 v0, {s(S_T0)}, {v(V_L16)}"); I(f"v_add_u32 v1, {LDS_S0}, {v(V_L16)}")
        for c in range(2): I(f"ds_write_b128 v0, {v(CSA(c),4)} offset:{c*1024}", lds_w='S0')
        I("s_waitcnt lgkmcnt(0)"); I("s_barrier")
        CS = 16
        for cb in range(7): I(f"ds_read_b128 {v(CS+cb*4,4)}, v1 offset:{cb*1024}", lds_r='S0')
        I(f"s_mov_b32 {s(S_T2)}, 0x{f2u(GC0):x}"); I(f"v_mov_b32 v15, 0x{f2u(GC1):x}")
        I(f"s_mul_i32 {s(S_OOFF)}, {s(S_R01)}, {56*1024}"); I(f"s_add_u32 {s(S_OOFF)}, {s(S_OOFF)}, {WS_H2}")
        I(f"s_mul_i32 {s(S_T3)}, {s(S_CT)}, 7")
        I("s_waitcnt lgkmcnt(0)")
        for s_ in range(2):
            b = 208 + s_*8
            T0 = 48 + s_*28
            seqs = []
            for cb in range(7):
                for r_ in range(4):
                    x = ACC(s_, cb) + r_
                    q = Prog()
                    q.I(f"v_fma_f32 {v(x)}, {v(b)}, {v(CS+cb*4+r_)}, {v(x)}")
                    q.I(f"v_mul_f32 {v(x)}, {v(x)}, {v(b+1)}")
                    gelu_ops(q.I, x, T0 + cb*4 + r_, None, s(S_T2), "v15"); seqs.append(q.items)
            p.extend(interleave(seqs))
            for cb in range(7):
                x = ACC(s_, cb); o = 104 + (s_*7 + cb)*2
                I(f"v_cvt_pk_bf16_f32 {v(o)}, {v(x)}, {v(x+1)}"); I(f"v_cvt_pk_bf16_f32 {v(o+1)}, {v(x+2)}, {v(x+3)}")
                I(f"s_add_u32 {s(S_T0)}, {s(S_T3)}, {cb}"); I(f"s_lshr_b32 {s(S_T1)}, {s(S_T0)}, 1"); I(f"s_lshl_b32 {s(S_T1)}, {s(S_T1)}, 10")
                I(f"s_and_b32 {s(S_T0)}, {s(S_T0)}, 1"); I(f"s_lshl_b32 {s(S_T0)}, {s(S_T0)}, 3")
                I(f"s_add_u32 {s(S_T1)}, {s(S_T1)}, {s(S_T0)}"); I(f"s_add_u32 {s(S_T1)}, {s(S_T1)}, {s(S_OOFF)}")
                I(f"buffer_store_dwordx2 {v(o,2)}, {v(V_L16)}, {s(S_WS,4)}, {s(S_T1)} offen")
            if s_ == 0: I(f"s_add_u32 {s(S_OOFF)}, {s(S_OOFF)}, {56*1024}")

    def gen(self, name="a_kernel"):
        p = self.p; I = self.I
        p.raw(kernel_header(name))
        sched = self.build_valu()
        n0 = len(p.items)
        self.prologue_setup()
        self.j1()
        self.ms('j1')
        self.qproj()
        self.j2()
        self.ms('j2')
        self.q_convert_and_first_tile(sched)
        self.ms('ft')
        pro, npad = fix_hazards(p.items[n0:], name='pro')
        p.items[n0:] = pro
        self.I(f"s_mov_b32 {s(S_CNT)}, 7")
        p.raw(".p2align 6")
        p.L("L_attn_loop")
        loop_start = len(p.items)
        replay_at_entry = list(self.replay)
        for T in range(4):
            self.step(2*T, sched, dma_k=T+3)
            self.step(2*T+1, sched, dma_v=T+3, barrier=True, vmw=8)
        self.I(f"s_sub_u32 {s(S_CNT)}, {s(S_CNT)}, 1")
        self.I(f"s_cmp_lg_u32 {s(S_CNT)}, 0")
        self.I("s_cbranch_scc1 L_attn_loop")
        loop_end = len(p.items)
        ent = [(n, k, ins.text) for (n, k, ins, kind) in replay_at_entry]
        ext = [(n - 8, k, ins.text) for (n, k, ins, kind) in self.replay]
        assert ent == ext
        self.replay = [(n - 8 + 56, k, ins, kind) for (n, k, ins, kind) in self.replay]
        tail_start = len(p.items)
        self.vmq = [('t', 30)]*8; self.vm_out = 8; self.tail = True
        self.j3_setup(); self.vm('poll2')
        xo = [(s_, e) for e in range(8) for s_ in range(2)]
        for i_, (s_, e) in enumerate(xo):
            self.extra.setdefault((58 + i_ // 4, 34 + 4*(i_ % 4)), []).append(lambda s_=s_, e=e: self.x1_op(s_, e))
        self.extra.setdefault((58, 0), []).append(lambda: self.poll_check(V_POLL2, V_POLLA2, 1, "L_p2"))
        for T in range(28, 32):
            dk = T + 3
            lastT = (T == 31)
            need = {28: 'poll2', 29: ('t', 31), 30: ('w3', 1), 31: None}[T]
            self.step(2*T, sched, dma_k=dk)
            self.step(2*T+1, sched, dma_v=dk, barrier=not lastT, vmw=(lambda need=need: min(self.wait_for(need), self.vm_out)), last=lastT)
        self.ms('loop')
        I("s_waitcnt lgkmcnt(0)")
        self.j3()
        tail, npad2 = fix_hazards(p.items[tail_start:], name='tail', verbose=True)
        p.items[tail_start:] = tail
        p.L("L_a_end")
        self.I("s_endpgm")
        for (tr, lab, back) in self.tramps:
            p.L(tr); self.I(f"s_call_b64 {s(S_RET,2)}, {lab}"); self.I(f"s_branch {back}")
        for key, (lab, items) in self.rare.items(): p.extend(items)
        ins = lambda seq: [i for i in seq if isinstance(i, Ins) and not i.nowarn]
        body = ins(p.items[loop_start:loop_end])
        def strip_spin(seq):
            out = []; skip = False
            for i in seq:
                if isinstance(i, Label) and i.name.endswith('_spin'): skip = True; continue
                if isinstance(i, Label) and i.name.endswith('_ok'): skip = False; continue
                if isinstance(i, Ins) and not skip: out.append(i)
            return out
        trace = strip_spin(p.items[n0:loop_start]) + body + body + strip_spin(p.items[loop_end:loop_end + len(tail) + 2])
        e1 = check_hazards(trace, name); e2 = check_waitcnt(trace, name)
        self.stats = dict(pro=len(ins(pro)), loop=len(body), tail=len(ins(tail)), npad=npad, npad2=npad2, rare=len(self.rare))
        return p.text(), kernel_desc(name, 512, 96, 256), e1 + e2

if __name__ == "__main__":
    g = AGen(); t, d, errs = g.gen()
    print(g.stats)
    for e in errs[:40]: print(e)
    print(len(errs), "errors")
```

```python
from asmgen import *
from layout import *

V_S    = 16
V_NEGM = 80
V_P    = 96
V_QACC = 16
V_Q    = 144
V_T    = 208
V_TS   = 216
V_L    = 224
V_U    = 228
V_THR  = 229
V_TMP  = 230
V_AK   = 238
V_AV   = 242
V_DK   = 250
V_DV   = 254
V_L16  = 14
V_AW   = 208
V_AWV  = 212
V_DW   = 216
A_O    = 0
A_XF   = 0
A_KF   = 128
A_VF   = 160
A_WF   = 128
S_K, S_V, S_WQ, S_XN, S_O = 4, 8, 12, 16, 20
S_W, S_HEAD, S_QB, S_CNT, S_KOFF, S_VOFF, S_RET, S_THR = 24, 25, 26, 27, 28, 29, 30, 32
S_M0K, S_M0V, S_T0, S_T1, S_XOFF, S_WOFF, S_OOFF, S_SCALE = 33, 34, 35, 36, 37, 38, 39, 40
LDS_K, LDS_V, SLOT = 0, 65536, 16384
LDS_BYTES = 131072
MFMA = "v_mfma_f32_16x16x32_bf16"
NG = 64
CVT_DELAY = 3

def Sreg(b, X, kb2=0, r=0): return V_S + b*32 + X*8 + kb2*4 + r
def Preg(b, X): return V_P + b*16 + X*4
def Oreg(X, db): return A_O + (X*8+db)*4
def Qreg(X, s_): return V_Q + (X*4+s_)*4

def mfma_qk(step, g):
    X, kb2, s_ = g >> 3, (g >> 2) & 1, g & 3
    b = step & 1
    d = v(Sreg(b, X, kb2), 4)
    c = v(V_NEGM + X*4, 4) if s_ == 0 else d
    return Ins(f"{MFMA} {d}, {a(A_KF + (kb2*4+s_)*4, 4)}, {v(Qreg(X, s_), 4)}, {c}")
def mfma_pv(step, g):
    db, X = g >> 2, g & 3
    d = a(Oreg(X, db), 4)
    return Ins(f"{MFMA} {d}, {a(A_VF + 4*db, 4)}, {v(Preg(step & 1, X), 4)}, {d}")
def kread(step, f):
    T, kb = step >> 1, step & 1
    slot = T & 3; kb2, s_ = f >> 2, f & 3
    return Ins(f"ds_read_b128 {a(A_KF + 4*f, 4)}, {v(V_AK + s_)} offset:{slot*SLOT + kb*8192 + kb2*4096}", lds_r=('K', slot))
def vread(step, idx):
    T, kb = step >> 1, step & 1
    slot = T & 3; db, t = idx >> 1, idx & 1
    return Ins(f"ds_read_b64_tr_b16 {a(A_VF + 4*db + 2*t, 2)}, {v(V_AV + db)} offset:{slot*SLOT + kb*8192 + t*4096}", lds_r=('V', slot))

def chunk_ops(tile, X):
    b = tile & 1; t = V_TS + b*4 + X
    ops = []
    for j in range(8):
        ops.append((2*j, Ins(f"v_exp_f32 {v(V_T+j)}, {v(Sreg(b, X, j >> 2, j & 3))}"), 'exp', j))
    ops.append((5, Ins(f"v_add_f32 {v(t)}, {v(V_T)}, {v(V_T+1)}"), 'add', 1))
    for j in range(2, 8):
        ops.append((2*j + 3, Ins(f"v_add_f32 {v(t)}, {v(t)}, {v(V_T+j)}"), 'add', j))
    for jj in range(4):
        ops.append((4*jj + CVT_DELAY, Ins(f"v_cvt_pk_bf16_f32 {v(Preg(b, X) + jj)}, {v(V_T+2*jj)}, {v(V_T+2*jj+1)}"), 'cvt', jj))
    return ops

class AttnGen:
    def __init__(self, stamps=False, opts=None):
        self.o = dict(cvt_delay=3, nodma=0, nobar=0, novread=0, nokread=0, nocheck=0, noexp=0, noadd=0, nocvt=0, dmag=(49,53,57,61), pvorder=0)
        if opts: self.o.update(opts)
        global CVT_DELAY; CVT_DELAY = self.o['cvt_delay']
        self.stamps = stamps; self.nst = 0
        self.p = Prog()
        self.rare = {}; self.tramps = []; self.replay = []; self.extra = {}
    def emit(self, ins): self.p.add(ins); return ins
    def I(self, text, **kw): return self.emit(Ins(text, **kw))
    def stamp(self, real=False):
        if not self.stamps: return
        r = 44 + 2*self.nst; self.nst += 1
        self.I(f"{'s_memrealtime' if real else 's_memtime'} {s(r,2)}")
        self.I("s_waitcnt lgkmcnt(0)")
    def stamp_store(self):
        if not self.stamps: return
        I = self.I
        I("s_waitcnt vmcnt(0)")
        self.stamp(); self.stamp(real=True)
        I(f"s_load_dwordx2 s[70:71], s[0:1], {ARG_WS}")
        I("s_waitcnt lgkmcnt(0)")
        I(f"s_add_u32 s76, s70, {40*MB}"); I("s_addc_u32 s77, s71, 0")
        I("s_mov_b32 s78, 0x100000"); I("s_mov_b32 s79, 0x20000")
        I(f"s_lshl_b32 s74, s2, 2"); I(f"s_add_u32 s74, s74, {s(S_W)}"); I("s_lshl_b32 s74, s74, 6")
        for k in range(self.nst):
            I(f"v_mov_b32 v1, {s(44+2*k)}")
            I("v_mov_b32 v2, 0")
            I(f"buffer_store_dword v1, v2, s[76:79], s74 offen offset:{4*k}")

    G0 = 12
    HOLE = 63
    def build_valu(self):
        sched = {}
        for n in range(0, 64):
            for X in range(4):
                G0 = (n-1)*NG + self.G0 + 16*X
                for (j, ins, kind, idx) in chunk_ops(n, X):
                    G = G0 + j
                    st, g = divmod(G, NG)
                    if (st & 1) == 1 and g == self.HOLE:
                        G += 1
                    sched.setdefault(G, []).append((n, X, ins, kind))
        for G in sched:
            sched[G].sort(key=lambda x: (x[3] == 'exp', x[0], x[1]))
        return sched

    def check_site(self, tile, started):
        replay = [ins for (n, X, ins, kind) in self.replay]
        b1 = tile & 1; b2 = b1 ^ 1
        key = (b1, tuple(started), tuple(i.text for i in replay))
        if key not in self.rare:
            lab = f"L_rare_{len(self.rare)}"
            q = Prog(); q.L(lab)
            q.I("s_nop 15")
            for X in range(4):
                mx, t2, dl, f = V_TMP, V_TMP+1, V_TMP+2, V_TMP+3
                S0 = Sreg(b1, X)
                q.I(f"v_max3_f32 {v(mx)}, {v(S0)}, {v(S0+1)}, {v(S0+2)}")
                q.I(f"v_max3_f32 {v(mx)}, {v(mx)}, {v(S0+3)}, {v(S0+4)}")
                q.I(f"v_max3_f32 {v(mx)}, {v(mx)}, {v(S0+5)}, {v(S0+6)}")
                q.I(f"v_max_f32 {v(mx)}, {v(mx)}, {v(S0+7)}")
                for sw in ('16', '32'):
                    q.I(f"v_mov_b32 {v(t2)}, {v(mx)}")
                    q.I("s_nop 1")
                    q.I(f"v_permlane{sw}_swap_b32 {v(mx)}, {v(t2)}")
                    q.I("s_nop 0")
                    q.I(f"v_max_f32 {v(mx)}, {v(mx)}, {v(t2)}")
                q.I(f"v_max_f32 {v(dl)}, 0, {v(mx)}")
                q.I(f"v_exp_f32 {v(f)}, -{v(dl)}")
                for r in range(8): q.I(f"v_sub_f32 {v(S0+r)}, {v(S0+r)}, {v(dl)}")
                for r in range(4): q.I(f"v_sub_f32 {v(V_NEGM+X*4+r)}, {v(V_NEGM+X*4+r)}, {v(dl)}")
                if X in started:
                    for r in range(8): q.I(f"v_sub_f32 {v(Sreg(b2, X)+r)}, {v(Sreg(b2, X)+r)}, {v(dl)}")
                q.I(f"v_mul_f32 {v(V_L+X)}, {v(V_L+X)}, {v(f)}")
                for db in range(8):
                    o = Oreg(X, db)
                    for i in range(4): q.I(f"v_accvgpr_read_b32 {v(V_TMP+4+i)}, {a(o+i)}")
                    for i in range(4): q.I(f"v_mul_f32 {v(V_TMP+4+i)}, {v(V_TMP+4+i)}, {v(f)}")
                    for i in range(4): q.I(f"v_accvgpr_write_b32 {a(o+i)}, {v(V_TMP+4+i)}")
            for i in replay: q.add(Ins(i.text))
            q.I("s_nop 1")
            q.I(f"s_setpc_b64 {s(S_RET, 2)}")
            items, n = fix_hazards(q.items, name=lab)
            self.rare[key] = (lab, items)
        lab = self.rare[key][0]
        tr = self.p.newlabel("L_tramp"); back = self.p.newlabel("L_back")
        self.I(f"s_cbranch_vccnz {tr}")
        self.p.L(back)
        self.tramps.append((tr, lab, back))

    def gap_valu(self, G, sched):
        for item in sched.get(G, []):
            n, X, ins, kind = item
            if self.o['no' + kind] and G >= 0: continue
            self.emit(Ins(ins.text)); self.replay.append(item)

    def step(self, i, sched, dma_k=None, dma_v=None, last=False, barrier=False, vmw=None):
        more_k = (i + 2 <= 63)
        DMAG = {g_: k_ for k_, g_ in enumerate(self.o['dmag'])}
        if self.o['nodma']: dma_k = dma_v = None
        for g in range(NG):
            G = i*NG + g
            if g < 32:
                if not last: self.emit(mfma_qk(i+1, g))
                if g % 2 == 1 and not self.o['novread']: self.emit(vread(i, g >> 1))
            else:
                self.emit(mfma_pv(i, g - 32))
                if g % 2 == 1 and g < 48 and more_k and not self.o['nokread']: self.emit(kread(i+2, (g - 33) >> 1))
                if g in DMAG:
                    if dma_k is not None: self.emit_dma('K', dma_k, DMAG[g])
                    if dma_v is not None: self.emit_dma('V', dma_v, DMAG[g])
            for f_ in self.extra.get((i, g), []): f_()
            if g == self.HOLE and barrier:
                if callable(vmw): vmw = vmw()
                self.I(f"s_waitcnt vmcnt({vmw}) lgkmcnt(0)")
                if not self.o['nobar']: self.I("s_barrier")
                assert not sched.get(G), sched.get(G)
                continue
            if g == 63: self.I("s_waitcnt lgkmcnt(0)")
            if g == 31: self.I("s_waitcnt lgkmcnt(8)")
            if g == 47: self.I(f"s_waitcnt lgkmcnt({8 if more_k else 0})")
            if g == self.o['dmag'][0] - 1 and dma_k is not None: self.I(f"s_add_u32 m0, {s(S_M0K)}, {(dma_k & 3)*SLOT}")
            if g == self.o['dmag'][0] - 1 and dma_v is not None: self.I(f"s_add_u32 m0, {s(S_M0V)}, {(dma_v & 3)*SLOT}")
            if g == self.o['dmag'][3] + 1 and dma_k is not None: self.I(f"s_add_u32 {s(S_KOFF)}, {s(S_KOFF)}, {SLOT}")
            if g == self.o['dmag'][3] + 1 and dma_v is not None: self.I(f"s_add_u32 {s(S_VOFF)}, {s(S_VOFF)}, {SLOT}")
            self.gap_valu(G, sched)
            if g == 14:
                tb = V_TS + (i & 1)*4
                self.I(f"v_max3_f32 {v(V_U)}, {v(tb)}, {v(tb+1)}, {v(tb+2)}")
            if g == 15:
                self.I(f"v_max_f32 {v(V_U)}, {v(V_U)}, {v(V_TS + (i & 1)*4 + 3)}")
            if g == 17:
                self.I(f"v_cmp_nle_f32 vcc, {v(V_U)}, {v(V_THR)}")
            if g == 23:
                self.check_site(i, [] if last else [0, 1, 2])
                self.replay = [x for x in self.replay if x[0] != i]
            if g == 16: pass
            if g in (25, 27, 29, 31):
                X = (g - 25) >> 1
                self.I(f"v_add_f32 {v(V_L+X)}, {v(V_L+X)}, {v(V_TS + (i & 1)*4 + X)}")

    def emit_dma(self, which, tile, jj):
        slot = tile & 3
        if which == 'K':
            self.I(f"buffer_load_dwordx4 {v(V_DK+jj)}, {s(S_K,4)}, {s(S_KOFF)} offen offset:{jj*1024} lds", lds_w=('K', slot))
        else:
            self.I(f"buffer_load_dwordx4 {v(V_DV+(jj&1))}, {s(S_V,4)}, {s(S_VOFF)} offen offset:{jj*1024} lds", lds_w=('V', slot))

    def prologue_setup(self):
        I = self.I
        I("s_cmp_ge_u32 s2, 256")
        I("s_cbranch_scc1 L_attn_end")
        I(f"s_load_dwordx2 {s(S_K,2)}, s[0:1], {ARG_K}")
        I(f"s_load_dwordx2 {s(S_V,2)}, s[0:1], {ARG_V}")
        I(f"s_load_dwordx2 {s(S_WQ,2)}, s[0:1], {ARG_WQ}")
        I(f"s_load_dwordx2 {s(S_XN,2)}, s[0:1], {ARG_WS}")
        I(f"v_lshrrev_b32 v1, 6, v0")
        I(f"s_and_b32 {s(S_T0)}, s2, 7")
        I(f"v_readfirstlane_b32 {s(S_W)}, v1")
        I(f"s_lshr_b32 {s(S_T1)}, s2, 3")
        I(f"s_and_b32 {s(S_HEAD)}, {s(S_T1)}, 3")
        I(f"s_lshl_b32 {s(S_T0)}, {s(S_T0)}, 2")
        I(f"s_add_u32 {s(S_HEAD)}, {s(S_HEAD)}, {s(S_T0)}")
        I(f"s_lshr_b32 {s(S_QB)}, s2, 5")
        I("v_and_b32 v1, 63, v0")
        I(f"v_lshlrev_b32 {v(V_L16)}, 4, v1")
        I("v_and_b32 v2, 15, v1")
        I("v_lshrrev_b32 v5, 4, v1")
        I("v_xor_b32 v4, v5, v2"); I("v_lshlrev_b32 v4, 4, v4"); I("v_lshl_add_u32 v4, v2, 8, v4")
        for s_ in range(4): I(f"v_xor_b32 {v(V_AK+s_)}, {s_ << 6}, v4")
        I("v_lshrrev_b32 v6, 2, v1"); I("v_and_b32 v6, 3, v6")
        I("v_lshl_add_u32 v7, v5, 2, v6")
        I("v_and_b32 v8, 7, v7")
        I("v_and_b32 v9, 3, v1")
        I("v_lshlrev_b32 v10, 8, v7")
        I("v_lshl_add_u32 v11, v8, 5, v10"); I("v_lshl_add_u32 v11, v9, 3, v11")
        I(f"v_add_u32 v11, {LDS_V}, v11")
        for db in range(8): I(f"v_xor_b32 {v(V_AV+db)}, {db << 5}, v11")
        I("v_lshlrev_b32 v12, 1, v8"); I("v_xor_b32 v12, v12, v9"); I("v_lshl_add_u32 v12, v12, 4, v10")
        for e in range(4):
            I(f"v_xor_b32 {v(V_AW+e)}, {e << 6}, v12")
            I(f"v_add_u32 {v(V_AWV+e)}, {LDS_V}, {v(V_AW+e)}")
        for jj in range(4):
            I(f"v_add_u32 v8, {4*jj}, v5"); I("v_xor_b32 v8, v8, v2"); I("v_lshlrev_b32 v8, 4, v8")
            I(f"v_lshl_add_u32 {v(V_DK+jj)}, v5, 8, v8")
        for pj in range(2):
            I(f"v_add_u32 v8, {4*pj}, v5"); I("v_lshlrev_b32 v8, 1, v8"); I("v_xor_b32 v8, v8, v2"); I("v_lshlrev_b32 v8, 4, v8")
            I(f"v_lshl_add_u32 {v(V_DV+pj)}, v5, 8, v8")
            I(f"v_lshl_add_u32 {v(V_DW+pj)}, v5, 13, v8")
        I("s_waitcnt lgkmcnt(0)")
        I(f"s_lshl_b32 {s(S_T0)}, {s(S_HEAD)}, 19")
        for S_ in (S_K, S_V):
            I(f"s_add_u32 {s(S_)}, {s(S_)}, {s(S_T0)}"); I(f"s_addc_u32 {s(S_+1)}, {s(S_+1)}, 0")
            I(f"s_mov_b32 {s(S_+2)}, 0x80000"); I(f"s_mov_b32 {s(S_+3)}, 0x20000")
        I(f"s_add_u32 {s(S_O)}, {s(S_XN)}, {WS_O}"); I(f"s_addc_u32 {s(S_O+1)}, {s(S_XN+1)}, 0")
        I(f"s_mov_b32 {s(S_O+2)}, 0x1000000"); I(f"s_mov_b32 {s(S_O+3)}, 0x20000")
        I(f"s_mov_b32 {s(S_XN+2)}, 0x200000"); I(f"s_mov_b32 {s(S_XN+3)}, 0x20000")
        I(f"s_lshl_b32 {s(S_T0)}, {s(S_HEAD)}, 8")
        I(f"s_add_u32 {s(S_WQ)}, {s(S_WQ)}, {s(S_T0)}"); I(f"s_addc_u32 {s(S_WQ+1)}, {s(S_WQ+1)}, 0")
        I(f"s_sub_u32 {s(S_WQ+2)}, 0x400000, {s(S_T0)}"); I(f"s_mov_b32 {s(S_WQ+3)}, 0x20000")
        I(f"s_lshl_b32 {s(S_T0)}, {s(S_W)}, 12")
        I(f"s_mov_b32 {s(S_M0K)}, {s(S_T0)}")
        I(f"s_add_u32 {s(S_M0V)}, {s(S_T0)}, {LDS_V}")
        I(f"s_mov_b32 {s(S_KOFF)}, {s(S_T0)}")
        I(f"s_mov_b32 {s(S_VOFF)}, {s(S_T0)}")
        I(f"s_lshl_b32 {s(S_T1)}, {s(S_QB)}, 4"); I(f"s_lshl_b32 {s(S_XOFF)}, {s(S_W)}, 2")
        I(f"s_add_u32 {s(S_T1)}, {s(S_T1)}, {s(S_XOFF)}")
        I(f"s_lshl_b32 {s(S_XOFF)}, {s(S_T1)}, 14")
        I(f"s_lshl_b32 {s(S_OOFF)}, {s(S_T1)}, 17"); I(f"s_lshl_b32 {s(S_T0)}, {s(S_HEAD)}, 12")
        I(f"s_add_u32 {s(S_OOFF)}, {s(S_OOFF)}, {s(S_T0)}")
        I(f"s_lshl_b32 {s(S_WOFF)}, {s(S_W)}, 17")
        I(f"s_mov_b32 {s(S_THR)}, 0x46000000")
        I(f"v_mov_b32 {v(V_THR)}, {s(S_THR)}")
        I(f"s_mov_b32 {s(S_SCALE)}, 0x3e0293ee")
        I(f"s_mov_b32 {s(S_SCALE+1)}, 0x3e0293ee")

    WSLOT = [('K', 0), ('K', 1), ('V', 0), ('K', 2), ('V', 1), ('V', 2), ('K', 3), ('V', 3)]
    def wq_dma(self, c):
        reg, slot = self.WSLOT[c]
        base = S_M0K if reg == 'K' else S_M0V
        self.I(f"s_add_u32 m0, {s(base)}, {slot*SLOT}")
        for jj in range(4):
            self.I(f"s_add_u32 {s(S_T0)}, {s(S_WOFF)}, {(64*c + 4*jj)*8192 - jj*1024}")
            self.I(f"buffer_load_dwordx4 {v(V_DW+(jj&1))}, {s(S_WQ,4)}, {s(S_T0)} offen offset:{jj*1024} lds", lds_w=(reg, slot))
    def xn_loads(self, c):
        for X in range(4):
            self.I(f"s_add_u32 {s(S_T1)}, {s(S_XOFF)}, {X*16384 + c*2048}")
            for e2 in range(2):
                r = A_XF + (c & 3)*32 + (e2*4 + X)*4
                self.I(f"buffer_load_dwordx4 {a(r,4)}, {v(V_L16)}, {s(S_XN,4)}, {s(S_T1)} offen offset:{e2*1024}")
    def wread(self, rho):
        phi, t = rho >> 1, rho & 1
        c, e2, nb = phi >> 4, (phi >> 3) & 1, phi & 7
        ep, b = nb >> 1, nb & 1
        reg, slot = self.WSLOT[c]
        ar = (V_AW if reg == 'K' else V_AWV) + ep
        f = phi & 15
        return Ins(f"ds_read_b64_tr_b16 {a(A_WF + 4*f + 2*t, 2)}, {v(ar)} offset:{slot*SLOT + e2*8192 + t*4096 + 8*b}", lds_r=(reg, slot))
    def kv_tile_dma(self, which, tile):
        base = S_M0K if which == 'K' else S_M0V
        self.I(f"s_add_u32 m0, {s(base)}, {(tile & 3)*SLOT}")
        self.I("s_nop 0")
        for jj in range(4): self.emit_dma(which, tile, jj)
        off = S_KOFF if which == 'K' else S_VOFF
        self.I(f"s_add_u32 {s(off)}, {s(off)}, {SLOT}")

    def qproj(self):
        I = self.I
        for c in range(4):
            self.wq_dma(c); self.xn_loads(c)
        for c in range(4, 7): self.wq_dma(c)
        LAGF = 8
        NM = 512
        after_chunk = {0: ('K', 0), 1: ('K', 1), 2: ('V', 0), 3: ('K', 2), 4: ('V', 1), 5: ('V', 2)}
        vmq = []
        for c in range(4): vmq += [('w', c)]*4 + [('x', c)]*8
        for c in range(4, 7): vmq += [('w', c)]*4
        def wait_for(kind, c):
            idx = max(i for i, e in enumerate(vmq) if e == (kind, c))
            return len(vmq) - 1 - idx
        I(f"s_waitcnt vmcnt({wait_for('w', 0)})")
        I("s_barrier")
        for rho in range(2*LAGF): self.emit(self.wread(rho))
        I(f"s_waitcnt vmcnt({wait_for('x', 0)})")
        nread = 2*LAGF
        for mu in range(NM):
            phi, X = mu >> 2, mu & 3
            c, e2, nb = phi >> 4, (phi >> 3) & 1, phi & 7
            g = mu & 63
            if mu % 16 == 0:
                I(f"s_waitcnt lgkmcnt({min(15, nread - 2*(phi+4))})")
            d = v(V_QACC + (X*8+nb)*4, 4)
            cc = "0" if (c == 0 and e2 == 0) else d
            xf = A_XF + (c & 3)*32 + (e2*4 + X)*4
            I(f"{MFMA} {d}, {a(A_WF + 4*(phi & 15), 4)}, {a(xf, 4)}, {cc}")
            if mu % 2 == 1 and nread < 256:
                if nread % 32 == 0:
                    I(f"s_waitcnt vmcnt({wait_for('w', nread >> 5)})")
                    I("s_barrier")
                self.emit(self.wread(nread)); nread += 1
            if g == 63 and c + 1 < 8:
                I(f"s_waitcnt vmcnt({wait_for('x', c+1)})")
            if g == 36 and c >= 1 and (c - 1) in after_chunk:
                w_, t_ = after_chunk[c - 1]
                self.kv_tile_dma(w_, t_); vmq += [('kv', (w_, t_))]*4
            if g == 2 and c >= 1 and c + 3 < 8:
                self.xn_loads(c + 3); vmq += [('x', c + 3)]*8
            if g == 6 and c == 0:
                self.wq_dma(7); vmq += [('w', 7)]*4
        self.vmq = vmq

    def q_convert_and_first_tile(self, sched):
        I = self.I
        I("s_nop 7")
        vmq = self.vmq
        idx = max(max(i for i, e in enumerate(vmq) if e == ('kv', kk)) for kk in (('K', 0), ('K', 1), ('V', 0)))
        I(f"s_waitcnt vmcnt({len(vmq) - 1 - idx})")
        I("s_barrier")
        for f in range(8): self.emit(kread(0, f))
        for X in range(4):
            for nb in range(8):
                base = V_QACC + (X*8+nb)*4
                for r in range(0, 4, 2): I(f"v_pk_mul_f32 {v(base+r,2)}, {v(base+r,2)}, {s(S_SCALE,2)}")
            for s_ in range(4):
                for b in range(2):
                    base = V_QACC + (X*8+2*s_+b)*4
                    for jj in range(2):
                        I(f"v_cvt_pk_bf16_f32 {v(Qreg(X, s_) + 2*b + jj)}, {v(base+2*jj)}, {v(base+2*jj+1)}")
        I("s_waitcnt lgkmcnt(0)")
        zi = 0
        for g in range(32):
            X, kb2, s_ = g >> 3, (g >> 2) & 1, g & 3
            d = v(Sreg(0, X, kb2), 4)
            I(f"{MFMA} {d}, {a(A_KF + (kb2*4+s_)*4, 4)}, {v(Qreg(X, s_), 4)}, {'0' if s_ == 0 else d}")
            for z in range(4):
                I(f"v_accvgpr_write_b32 {a(A_O + zi)}, 0"); zi += 1
        for f in range(8): self.emit(kread(1, f))
        for X in range(4): I(f"v_mov_b32 {v(V_L+X)}, 0")
        I("s_nop 3")
        for X in range(4):
            mx, t2 = V_TMP, V_TMP+1
            S0 = Sreg(0, X)
            I(f"v_max3_f32 {v(mx)}, {v(S0)}, {v(S0+1)}, {v(S0+2)}")
            I(f"v_max3_f32 {v(mx)}, {v(mx)}, {v(S0+3)}, {v(S0+4)}")
            I(f"v_max3_f32 {v(mx)}, {v(mx)}, {v(S0+5)}, {v(S0+6)}")
            I(f"v_max_f32 {v(mx)}, {v(mx)}, {v(S0+7)}")
            for sw in ('16', '32'):
                I(f"v_mov_b32 {v(t2)}, {v(mx)}")
                I("s_nop 1")
                I(f"v_permlane{sw}_swap_b32 {v(mx)}, {v(t2)}")
                I("s_nop 0")
                I(f"v_max_f32 {v(mx)}, {v(mx)}, {v(t2)}")
            for r in range(8): I(f"v_sub_f32 {v(S0+r)}, {v(S0+r)}, {v(mx)}")
            for r in range(4): I(f"v_sub_f32 {v(V_NEGM+X*4+r)}, 0, {v(mx)}")
        for g in range(self.G0, NG):
            self.gap_valu(-NG + g, sched)
        I("s_waitcnt lgkmcnt(0)")

    def epilogue(self):
        I = self.I
        I("s_nop 7")
        for X in range(4):
            l, t2 = V_L + X, V_TMP
            for sw in ('16', '32'):
                I(f"v_mov_b32 {v(t2)}, {v(l)}")
                I("s_nop 1")
                I(f"v_permlane{sw}_swap_b32 {v(l)}, {v(t2)}")
                I("s_nop 0")
                I(f"v_add_f32 {v(l)}, {v(l)}, {v(t2)}")
            I(f"v_rcp_f32 {v(l)}, {v(l)}")
        stage = 16; n = 0
        for X in range(4):
            if X > 0: I(f"s_add_u32 {s(S_OOFF)}, {s(S_OOFF)}, 131072")
            for e in range(4):
                f = stage + (n % 4)*12; n += 1
                for j in range(8): I(f"v_accvgpr_read_b32 {v(f+j)}, {a(Oreg(X, 2*e + (j >> 2)) + (j & 3))}")
                for j in range(8): I(f"v_mul_f32 {v(f+j)}, {v(f+j)}, {v(V_L+X)}")
                for jj in range(4): I(f"v_cvt_pk_bf16_f32 {v(f+8+jj)}, {v(f+2*jj)}, {v(f+2*jj+1)}")
                I(f"buffer_store_dwordx4 {v(f+8,4)}, {v(V_L16)}, {s(S_O,4)}, {s(S_OOFF)} offen offset:{e*1024}")

    def gen(self, name="attn_kernel"):
        p = self.p
        p.raw(kernel_header(name))
        sched = self.build_valu()
        n0 = len(p.items)
        self.stamp(real=True); self.stamp()
        self.prologue_setup()
        self.stamp()
        self.qproj()
        self.stamp()
        self.q_convert_and_first_tile(sched)
        self.stamp()
        pro, npad = fix_hazards(p.items[n0:], name='pro')
        p.items[n0:] = pro
        self.I(f"s_mov_b32 {s(S_CNT)}, 7")
        p.raw(".p2align 6")
        p.L("L_attn_loop")
        loop_start = len(p.items)
        replay_at_entry = list(self.replay)
        for T in range(4):
            self.step(2*T, sched, dma_k=T+3)
            self.step(2*T+1, sched, dma_v=T+3, barrier=True, vmw=8)
        self.I(f"s_sub_u32 {s(S_CNT)}, {s(S_CNT)}, 1")
        self.I(f"s_cmp_lg_u32 {s(S_CNT)}, 0")
        self.I("s_cbranch_scc1 L_attn_loop")
        loop_end = len(p.items)
        ent = [(n, k, ins.text) for (n, k, ins, kind) in replay_at_entry]
        ext = [(n - 8, k, ins.text) for (n, k, ins, kind) in self.replay]
        assert ent == ext or any(self.o[x] for x in ('noexp', 'noadd', 'nocvt')), (ent, ext)
        self.replay = [(n - 8 + 56, k, ins, kind) for (n, k, ins, kind) in self.replay]
        tail_start = len(p.items)
        for T in range(28, 32):
            dk = T + 3 if T + 3 <= 31 else None
            lastT = (T == 31)
            vmw = 8 if dk is not None else 0
            self.step(2*T, sched, dma_k=dk)
            self.step(2*T+1, sched, dma_v=dk, barrier=not lastT, vmw=vmw, last=lastT)
        self.stamp()
        self.epilogue()
        self.stamp_store()
        tail, npad2 = fix_hazards(p.items[tail_start:], name='tail', verbose=True)
        p.items[tail_start:] = tail
        p.L("L_attn_end")
        self.I("s_endpgm")
        for (tr, lab, back) in self.tramps:
            p.L(tr); self.I(f"s_call_b64 {s(S_RET,2)}, {lab}"); self.I(f"s_branch {back}")
        for key, (lab, items) in self.rare.items(): p.extend(items)
        ins = lambda seq: [i for i in seq if isinstance(i, Ins)]
        body = ins(p.items[loop_start:loop_end])
        trace = ins(p.items[n0:loop_start]) + body + body + ins(p.items[loop_end:loop_end + len(tail) + 2])
        e1 = check_hazards(trace, name); e2 = check_waitcnt(trace, name)
        self.stats = dict(pro=len(ins(pro)), loop=len(body), tail=len(ins(tail)), npad=npad, npad2=npad2, rare=len(self.rare))
        return p.text(), kernel_desc(name, 512, 96, 256), e1 + e2

if __name__ == "__main__":
    g = AttnGen(); t, d, errs = g.gen()
    print(g.stats)
    for e in errs[:40]: print(e)
    print(len(errs), "errors")
```

```python
import sys
from asmgen import *
from layout import *
import k_a, k_final
from build import build
if __name__ == "__main__":
    path = sys.argv[1]
    opts = dict(eval(a[2:]) for a in sys.argv if a.startswith('o:'))
    fo = dict(eval(a[2:]) for a in sys.argv if a.startswith('f:'))
    fo.setdefault('helper', False)
    fo['wpad'] = opts.get('wpad', 1024); fo['wp'] = opts.get('wp', 1); fo['opad'] = opts.get('opad', 1024)
    DIAG['on'] = 'diag' in sys.argv
    g = k_a.AGen(opts=opts); t, d, errs = g.gen()
    for e in errs[:20]: print(e)
    assert not errs or 'force' in sys.argv
    tt, dd, ee = k_final.gen_final(**fo); assert not ee, ee
    ks = [(t, d), (tt, dd)]
    launches = [("a_kernel", 256, 256, k_a.LDS_BYTES_A), ("final_kernel", 256, 320 if fo.get('helper', True) else 256, 131072)]
    ends = {'a_kernel': 'L_a_end'}
    order = [l[0] for l in launches]
    ks2 = [(diag_wrap(t_, t_.split()[1], order.index(t_.split()[1]), ends.get(t_.split()[1], f'L_{t_.split()[1]}_end')), d_) for (t_, d_) in ks]
    build(ks2, launches, path)
    print(g.stats)
```

```python
import re
from asmgen import *
from layout import *
import k_attn16 as KA
from k_attn16 import *
from k_gemm import gelu_ops, f2u, GC0, GC1, interleave

LDS_S0 = 131072
LDS_BYTES_A = 163840
S_X, S_WS = S_XN, S_O
S_W1, S_W2, S_H, S_DBG = 44, 48, 52, 56
S_PAR, S_CT, S_R01 = 41, 42, 43
S_R23, S_X01, S_X23, S_T2, S_T3, S_M0S, S_SPIN, S_C0, S_C1 = 60, 61, 62, 63, 64, 65, 66, 67, 68
S_WT = 88
V_ONES = 10
V_XR = 2
V_CSQ = 218
V_NMU, V_RS = 230, 234
V_POLL, V_POLLA = 226, 227
V_POLL2, V_POLLA2 = 138, 139
V_D3 = 128
V_A3K = 130
A_J2ACC, A_J2R = 192, 208
A_ST23 = 176
NRQ, LAGQ = 12, 6
def xreg(X, e):
    if e < 8: return a((e*4 + X)*4, 4)
    if e < 12: return a(192 + ((e-8)*4 + X)*4, 4)
    return v(144 + ((e-12)*4 + X)*4, 4)
def hreg(s_, e): return a((e*2 + s_)*4, 4)
J_ACC = lambda s_, nb: 16 + (s_*2 + nb)*4
J_CS = lambda nb: 32 + nb*4
J_SUM = lambda s_: 40 + 4*s_
J_GR = lambda s_: 48 + 4*s_
def ctr_off(kind): return 32*kind

def gelu8(q, x, t, nmu, cs, P0, P1, IR):
    q.I(f"v_fma_f32 {v(x)}, {v(nmu)}, {v(cs)}, {v(x)}")
    q.I(f"v_mul_f32 {v(t)}, {v(x)}, {v(x)}")
    q.I(f"v_fma_f32 {v(t)}, {v(t)}, {v(P1)}, {v(P0)}")
    q.I(f"v_mul_f32 {v(t)}, {v(t)}, {v(x)}")
    q.I(f"v_exp_f32 {v(t)}, {v(t)}")
    q.I(f"v_fma_f32 {v(t)}, {v(t)}, {v(IR)}, {v(IR)}")
    q.I(f"v_rcp_f32 {v(t)}, {v(t)}")
    q.I(f"v_mul_f32 {v(x)}, {v(x)}, {v(t)}")
def gelu_consts(I, r, P0, P1, IR):
    I(f"v_mul_f32 {v(P1)}, {v(r)}, {v(r)}"); I(f"v_rcp_f32 {v(IR)}, {v(r)}")
    I(f"v_mul_f32 {v(P1)}, {v(P1)}, {v(r)}"); I(f"v_mul_f32 {v(P0)}, 0x{f2u(GC0):x}, {v(r)}"); I(f"v_mul_f32 {v(P1)}, 0x{f2u(GC1):x}, {v(P1)}")

class AGen(AttnGen):
    def __init__(self, opts=None):
        super().__init__(stamps=False, opts=opts)
        for k_, v_ in dict(j3=1, j3v=2, xmap=1, hrate=1.5, nx0=4, chk=4, mz=1, pfq=1, pfw=0, wp=1, wpad=1024, nopoll=0, ph=(1, 48, 64), st=('j1', 'qp', 'j2', 'ft', 'loop', 'epi')).items(): self.o.setdefault(k_, v_)
        self.vmq = []; self.vm_out = 0; self.lgq = []; self.tail = False
    def ms(self, name):
        if name in self.o['st']: mid_stamp(self.I, self.o['st'].index(name))
    def vm(self, tag, n=1): self.vmq += [tag]*n
    def wait_for(self, tag):
        idx = max(i for i, e in enumerate(self.vmq) if e == tag)
        return len(self.vmq) - 1 - idx
    def waitvm(self, tag):
        n = self.wait_for(tag)
        if n < self.vm_out: self.I(f"s_waitcnt vmcnt({n})")
    def emit(self, ins):
        if ins.kind == 'vmem':
            if self.vm_out >= 62: self.p.add(Ins("s_waitcnt vmcnt(54)")); self.vm_out = 54
            self.vm_out += 1
        if ins.op == 's_waitcnt':
            m = re.search(r'vmcnt\((\d+)\)', ins.text)
            if m: self.vm_out = min(self.vm_out, int(m.group(1)))
        self.p.add(ins); return ins

    def prologue_setup(self):
        I = self.I
        I("s_cmp_ge_u32 s2, 256")
        I("s_cbranch_scc1 L_a_end")
        I(f"s_load_dwordx2 {s(S_X,2)}, s[0:1], {ARG_X}")
        I(f"s_load_dwordx2 {s(S_W1,2)}, s[0:1], {ARG_W1}")
        I(f"s_load_dwordx2 {s(S_WQ,2)}, s[0:1], {ARG_WQ}")
        I(f"s_load_dwordx2 {s(S_K,2)}, s[0:1], {ARG_K}")
        I(f"s_load_dwordx2 {s(S_V,2)}, s[0:1], {ARG_V}")
        I(f"s_load_dwordx2 {s(S_W2,2)}, s[0:1], {ARG_W2}")
        I(f"s_load_dwordx2 {s(S_WS,2)}, s[0:1], {ARG_WS}")
        I(f"s_load_dwordx2 {s(S_DBG,2)}, s[0:1], {ARG_DBG}")
        I(f"v_lshrrev_b32 v1, 6, v0")
        I(f"s_and_b32 {s(S_T0)}, s2, 7")
        I(f"v_readfirstlane_b32 {s(S_W)}, v1")
        I(f"s_lshr_b32 {s(S_T1)}, s2, 3")
        I(f"s_and_b32 {s(S_HEAD)}, {s(S_T1)}, 3")
        I(f"s_lshl_b32 {s(S_T0)}, {s(S_T0)}, 2")
        I(f"s_add_u32 {s(S_HEAD)}, {s(S_HEAD)}, {s(S_T0)}")
        I(f"s_lshr_b32 {s(S_QB)}, s2, 5")
        if self.o['xmap']:
            I(f"s_bfe_u32 {s(S_PAR)}, {s(S_HEAD)}, 0x10002"); I(f"s_lshr_b32 {s(S_CT)}, {s(S_HEAD)}, 3"); I(f"s_lshl_b32 {s(S_CT)}, {s(S_CT)}, 2")
            I(f"s_and_b32 {s(S_T0)}, {s(S_HEAD)}, 3"); I(f"s_or_b32 {s(S_CT)}, {s(S_CT)}, {s(S_T0)}")
        else:
            I(f"s_and_b32 {s(S_PAR)}, {s(S_HEAD)}, 1"); I(f"s_lshr_b32 {s(S_CT)}, {s(S_HEAD)}, 1")
        I(f"s_lshl_b32 {s(S_T0)}, {s(S_QB)}, 4"); I(f"s_lshl_b32 {s(S_T1)}, {s(S_W)}, 2"); I(f"s_add_u32 {s(S_T0)}, {s(S_T0)}, {s(S_T1)}")
        I(f"s_lshl_b32 {s(S_T1)}, {s(S_PAR)}, 1"); I(f"s_add_u32 {s(S_R01)}, {s(S_T0)}, {s(S_T1)}")
        I(f"s_add_u32 {s(S_R23)}, {s(S_T0)}, 2"); I(f"s_sub_u32 {s(S_R23)}, {s(S_R23)}, {s(S_T1)}")
        I(f"s_lshl_b32 {s(S_X01)}, {s(S_R01)}, 14"); I(f"s_lshl_b32 {s(S_X23)}, {s(S_R23)}, 14")
        I("v_and_b32 v1, 63, v0")
        I(f"v_lshlrev_b32 {v(V_L16)}, 4, v1")
        I("v_and_b32 v2, 15, v1"); I("v_lshrrev_b32 v5, 4, v1")
        I("v_lshrrev_b32 v8, 3, v1"); I("v_and_b32 v9, 7, v1"); I("v_xor_b32 v9, v9, v8"); I("v_lshlrev_b32 v9, 4, v9"); I("v_lshl_add_u32 v3, v8, 10, v9")
        I("v_lshrrev_b32 v8, 2, v1"); I("v_lshlrev_b32 v8, 10, v8"); I("v_and_b32 v9, 3, v1")
        I("v_lshrrev_b32 v4, 5, v1"); I("v_lshlrev_b32 v4, 1, v4"); I("v_xor_b32 v4, v4, v9"); I("v_lshl_add_u32 v6, v4, 4, v8")
        I("v_bfe_u32 v4, v1, 4, 1"); I("v_lshlrev_b32 v4, 1, v4"); I("v_xor_b32 v4, v4, v9"); I(f"v_lshl_add_u32 {v(15)}, v4, 4, v8")
        I("s_waitcnt lgkmcnt(0)")
        def fin(S_, size):
            I(f"s_mov_b32 {s(S_+2)}, {size}"); I(f"s_mov_b32 {s(S_+3)}, 0x20000")
        fin(S_X, "0x200000")
        I(f"s_lshl_b32 {s(S_T0)}, {s(S_HEAD)}, 8")
        I(f"s_add_u32 {s(S_WQ)}, {s(S_WQ)}, {s(S_T0)}"); I(f"s_addc_u32 {s(S_WQ+1)}, {s(S_WQ+1)}, 0")
        I(f"s_sub_u32 {s(S_WQ+2)}, 0x400000, {s(S_T0)}"); I(f"s_mov_b32 {s(S_WQ+3)}, 0x20000")
        I(f"s_lshl_b32 {s(S_T0)}, {s(S_CT)}, 6")
        for S_ in (S_W1, S_W2):
            I(f"s_add_u32 {s(S_)}, {s(S_)}, {s(S_T0)}"); I(f"s_addc_u32 {s(S_+1)}, {s(S_+1)}, 0")
            I(f"s_sub_u32 {s(S_+2)}, 0x80000, {s(S_T0)}"); I(f"s_mov_b32 {s(S_+3)}, 0x20000")
        I(f"s_lshl_b32 {s(S_M0S)}, {s(S_W)}, 13"); I(f"s_add_u32 {s(S_M0S)}, {s(S_M0S)}, {LDS_S0}")
        self.slice_dma(S_W1, 6, 'w1', 'S0')
        I(f"s_lshl_b32 {s(S_T0)}, {s(S_W)}, 12")
        I(f"s_mov_b32 {s(S_M0K)}, {s(S_T0)}")
        I(f"s_add_u32 {s(S_M0V)}, {s(S_T0)}, {LDS_V}")
        for k in range(self.o['nx0']): self.x_dma(0, k)
        if self.o['pfq']:
            I("v_bfe_u32 v4, v1, 1, 4"); I("v_lshlrev_b32 v4, 13, v4"); I("v_and_b32 v7, 1, v1"); I("v_lshl_add_u32 v4, v7, 7, v4")
            I(f"s_lshl_b32 {s(S_T0)}, {s(S_QB)}, 2"); I(f"s_add_u32 {s(S_T0)}, {s(S_T0)}, {s(S_W)}"); I(f"s_lshl_b32 {s(S_T0)}, {s(S_T0)}, 17")
            I(f"buffer_load_dword {v(V_POLL)}, v4, {s(S_WQ,4)}, {s(S_T0)} offen"); self.vm('pf')
        I("v_and_b32 v1, 63, v0")
        I("v_xor_b32 v4, v5, v2"); I("v_lshlrev_b32 v4, 4, v4"); I("v_lshl_add_u32 v4, v2, 8, v4")
        I(f"s_lshl_b32 {s(S_T2)}, {s(S_W)}, 6"); I(f"v_xor_b32 v4, {s(S_T2)}, v4")
        for s_ in range(4): I(f"v_xor_b32 {v(V_AK+s_)}, {s_ << 6}, v4")
        I("v_lshrrev_b32 v8, 2, v1"); I("v_and_b32 v8, 3, v8")
        I("v_lshl_add_u32 v7, v5, 2, v8")
        I("v_and_b32 v9, 3, v1")
        I("v_and_b32 v4, 7, v7")
        I("v_lshlrev_b32 v10, 8, v7")
        I("v_lshl_add_u32 v11, v4, 5, v10"); I("v_lshl_add_u32 v11, v9, 3, v11")
        I(f"v_add_u32 v11, {LDS_V}, v11")
        for db in range(8): I(f"v_xor_b32 {v(V_AV+db)}, {db << 5}, v11")
        I("v_lshl_add_u32 v10, v5, 3, v8")
        I("v_lshlrev_b32 v12, 1, v4"); I("v_xor_b32 v12, v12, v9"); I("v_lshlrev_b32 v12, 4, v12"); I("v_lshl_add_u32 v12, v10, 8, v12")
        I(f"v_xor_b32 v12, {s(S_T2)}, v12")
        for e in range(4):
            I(f"v_xor_b32 {v(V_AW+e)}, {e << 6}, v12")
            I(f"v_add_u32 {v(V_AWV+e)}, {LDS_V}, {v(V_AW+e)}")
        I("v_and_b32 v12, 1, v5"); I("v_lshlrev_b32 v12, 5, v12"); I("v_lshl_add_u32 v12, v9, 3, v12"); I(f"v_add_u32 v12, {LDS_S0}, v12")
        I(f"v_lshl_add_u32 {v(222)}, v10, 6, v12"); I(f"v_xor_b32 {v(223)}, 32, {v(222)}")
        I(f"v_lshl_add_u32 {v(228)}, v7, 6, v12")
        for jj in range(4):
            I(f"v_add_u32 v8, {4*jj}, v5"); I("v_xor_b32 v8, v8, v2"); I("v_lshlrev_b32 v8, 4, v8")
            I(f"v_lshl_add_u32 {v(V_DK+jj)}, v5, 8, v8")
        for pj in range(2):
            I(f"v_add_u32 v8, {4*pj}, v5"); I("v_lshlrev_b32 v8, 1, v8"); I("v_xor_b32 v8, v8, v2"); I("v_lshlrev_b32 v8, 4, v8")
            I(f"v_lshl_add_u32 {v(V_DV+pj)}, v5, 8, v8")
            I(f"v_lshl_add_u32 {v(V_DW+pj)}, v5, 13, v8")
        I(f"s_lshl_b32 {s(S_T0)}, {s(S_HEAD)}, 19")
        for S_ in (S_K, S_V):
            I(f"s_add_u32 {s(S_)}, {s(S_)}, {s(S_T0)}"); I(f"s_addc_u32 {s(S_+1)}, {s(S_+1)}, 0")
            fin(S_, "0x80000")
        I(f"s_add_u32 {s(S_H)}, {s(S_WS)}, {WS_H}"); I(f"s_addc_u32 {s(S_H+1)}, {s(S_WS+1)}, 0"); fin(S_H, "0x200000")
        fin(S_WS, hex(40*MB)); fin(S_DBG, "0x100")
        I(f"s_lshl_b32 {s(S_T0)}, {s(S_W)}, 12")
        I(f"s_mov_b32 {s(S_KOFF)}, {s(S_T0)}")
        I(f"s_mov_b32 {s(S_VOFF)}, {s(S_T0)}")
        I(f"s_lshl_b32 {s(S_WOFF)}, {s(S_W)}, 17")
        I(f"s_mov_b32 {s(S_THR)}, 0x46000000")
        I(f"v_mov_b32 {v(V_THR)}, {s(S_THR)}")
        I(f"s_mov_b32 {s(S_SCALE)}, 0x3e0293ee")
        I("v_min_u32 v4, 2, v1"); I(f"v_add_u32 v4, {s(S_QB)}, v4"); I("v_max_u32 v4, 1, v4"); I("v_min_u32 v4, 8, v4"); I("v_subrev_u32 v4, 1, v4")
        I("v_and_b32 v8, 3, v4"); I("v_lshlrev_b32 v8, 6, v8"); I("v_lshrrev_b32 v4, 2, v4"); I(f"v_lshl_add_u32 {v(V_POLLA)}, v4, 2, v8")
        I(f"s_and_b32 {s(S_C0)}, {s(S_QB)}, 3"); I(f"s_lshl_b32 {s(S_C0)}, {s(S_C0)}, 6"); I(f"s_lshr_b32 {s(S_C1)}, {s(S_QB)}, 2"); I(f"s_lshl_b32 {s(S_C1)}, {s(S_C1)}, 2")
        I(f"s_add_u32 {s(S_C0)}, {s(S_C0)}, {s(S_C1)}")
        for k in range(4): I(f"v_mov_b32 {v(V_ONES+k)}, 0x3f803f80")
        I("v_and_b32 v8, 7, v2"); I("v_xor_b32 v8, v8, v5"); I("v_lshlrev_b32 v8, 4, v8"); I("v_lshl_add_u32 v8, v2, 7, v8")
        I(f"v_add_u32 v4, {s(S_M0K)}, v8"); I("v_xor_b32 v5, 64, v4"); I(f"v_add_u32 v6, {LDS_V}, v4"); I(f"v_add_u32 v7, {LDS_V}, v5")

    def x_dma_op(self, half, k, i):
        I = self.I
        reg, slot = self.WSLOT[k]
        s_, j = i >> 1, i & 1
        imm = s_*2048 + j*1024
        I(f"s_add_u32 m0, {s(S_M0K if reg == 'K' else S_M0V)}, {slot*SLOT}")
        I(f"s_add_u32 {s(S_T0)}, {s(S_X01 if half == 0 else S_X23)}, {s_*16384 + j*8192 + k*128 - imm}")
        I(f"buffer_load_dwordx4 v3, {s(S_X,4)}, {s(S_T0)} offen offset:{imm} lds", lds_w=(reg, slot, 'x')); self.vm(('x', half, k))
    def x_dma(self, half, k):
        for i in range(4): self.x_dma_op(half, k, i)
    def x_read(self, half, k):
        reg, slot = self.WSLOT[k]
        for e2 in range(2):
            for s_ in range(2):
                ar = (4 if reg == 'K' else 6) + e2
                self.I(f"ds_read_b128 {xreg(2*half + s_, 2*k + e2)}, {v(ar)} offset:{slot*SLOT + s_*2048}", lds_r=(reg, slot, 'xr')); self.lg(('xr', half, k))
    def x23_stage(self, k0, k1):
        for k in range(k0, k1):
            self.waitvm(('x', 1, k)); self.x_read(1, k)
            if k > k0: self.waitlg(('xr', 1, k-1)); self.wq_dma(k-1)
        self.waitlg(('xr', 1, k1-1)); self.wq_dma(k1-1)
    def lg(self, tag): self.lgq.append(tag)
    def waitlg(self, tag):
        idx = max(i for i, e in enumerate(self.lgq) if e == tag)
        self.I(f"s_waitcnt lgkmcnt({min(15, len(self.lgq) - 1 - idx)})")

    def slice_dma_op(self, srd, vo, tag, region, i):
        I = self.I
        h, jj = i >> 2, i & 3
        I(f"s_add_u32 m0, {s(S_M0S)}, {h*4096}")
        I(f"s_lshl_b32 {s(S_T0)}, {s(S_W)}, 17")
        I(f"s_add_u32 {s(S_T0)}, {s(S_T0)}, {(4*h + jj)*16384 - jj*1024}")
        I(f"buffer_load_dwordx4 {v(vo)}, {s(srd,4)}, {s(S_T0)} offen offset:{jj*1024} lds", lds_w=region); self.vm(tag)
    def slice_dma(self, srd, vo, tag, region):
        for i in range(8): self.slice_dma_op(srd, vo, tag, region, i)
    def kv_op(self, which, tile, jj):
        base = S_M0K if which == 'K' else S_M0V
        self.I(f"s_add_u32 m0, {s(base)}, {(tile & 3)*SLOT}")
        self.I("s_nop 0")
        self.emit_dma(which, tile, jj); self.vm(('kv', (which, tile)))
        if jj == 3:
            off = S_KOFF if which == 'K' else S_VOFF
            self.I(f"s_add_u32 {s(off)}, {s(off)}, {SLOT}")

    def wq_dma(self, c):
        reg, slot = self.WSLOT[c]
        base = S_M0K if reg == 'K' else S_M0V
        self.I(f"s_add_u32 m0, {s(base)}, {slot*SLOT}")
        for jj in range(4):
            self.I(f"s_add_u32 {s(S_T0)}, {s(S_WOFF)}, {(64*c + 4*jj)*8192 - jj*1024}")
            self.I(f"buffer_load_dwordx4 {v(V_DW+(jj>>1))}, {s(S_WQ,4)}, {s(S_T0)} offen offset:{jj*1024} lds", lds_w=(reg, slot)); self.vm(('w', c))
    def wread(self, rho):
        phi, t = rho >> 1, rho & 1
        c, e2, nb = phi >> 4, (phi >> 3) & 1, phi & 7
        ep, b = nb >> 1, nb & 1
        reg, slot = self.WSLOT[c]
        ar = (V_AW if reg == 'K' else V_AWV) + ep
        return Ins(f"ds_read_b64_tr_b16 {a(A_WF + 4*(phi % NRQ) + 2*t, 2)}, {v(ar)} offset:{slot*SLOT + e2*8192 + t*1024 + 8*b}", lds_r=(reg, slot))

    def row_stats(self, s_, sum_txt, gr_regs, t=8, t2=9):
        I = self.I
        I(f"v_mov_b32 {v(t)}, 0")
        for r in range(4):
            I(f"s_mov_b32 vcc_lo, 0x{((1 | (1 << 20)) << r):x}"); I(f"s_mov_b32 vcc_hi, 0x{(((1 << 8) | (1 << 28)) << r) & 0xffffffff:x}")
            I(f"v_cndmask_b32 {v(t)}, {v(t)}, {v(gr_regs[r])}, vcc")
        for sw in ('16', '32'):
            I(f"v_mov_b32 {v(t2)}, {v(t)}"); I("s_nop 1"); I(f"v_permlane{sw}_swap_b32 {v(t)}, {v(t2)}"); I("s_nop 0"); I(f"v_add_f32 {v(t)}, {v(t)}, {v(t2)}")
        nm, rs = V_NMU + s_, V_RS + s_
        I(f"v_mul_f32 {v(nm)}, 0xbb000000, {sum_txt}")
        I(f"v_mul_f32 {v(t)}, 0x3b000000, {v(t)}")
        I(f"v_fma_f32 {v(t)}, -{v(nm)}, {v(nm)}, {v(t)}")
        I(f"v_max_f32 {v(t)}, 0, {v(t)}")
        I(f"v_add_f32 {v(t2)}, 0x3727c5ac, {v(t)}")
        I(f"v_rsq_f32 {v(rs)}, {v(t2)}")
        return t

    def j1(self):
        I = self.I
        NF = 32; LA = 4
        AJ = 222
        def rd(phi):
            e, nb = phi >> 1, phi & 1
            for t in range(2):
                self.emit(Ins(f"ds_read_b64_tr_b16 {a(A_WF + 4*(phi % 8) + 2*t, 2)}, {v(AJ+nb)} offset:{e*2048 + t*256}", lds_r='S0')); self.lg(('w1', phi))
        self.ms('s0')
        NX0 = self.o['nx0']
        ops = [(0, k) for k in range(NX0, 8)] + [(1, k) for k in range(8)]
        slot_ops = [[[] for _ in range(4)] for _ in range(8)]
        oi = 0
        for k in range(8):
            n_here = 1 if k + NX0 <= 7 else 2
            for j in range(n_here):
                if oi >= len(ops): break
                half, kk = ops[oi]
                if half == 1 and kk > k: break
                for i in range(4):
                    slot_ops[k][(i + j*4)//n_here if n_here == 2 else i].append(lambda half=half, kk=kk, i=i: self.x_dma_op(half, kk, i))
                oi += 1
        rest = ops[oi:]
        self.waitvm(('x', 0, 0)); self.x_read(0, 0)
        self.ms('x0')
        I("s_barrier")
        for phi in range(LA): rd(phi)
        nread = LA
        for e in range(16):
            k = e >> 1
            if e % 2 == 0:
                if k < 7: self.waitvm(('x', 0, k+1)); self.x_read(0, k+1)
                self.waitlg(('xr', 0, k))
            first = (e == 0)
            def M(d, A, B): I(f"{MFMA} {v(d,4)}, {A}, {B}, {'0' if first else v(d,4)}")
            for s_ in range(2):
                M(J_SUM(s_), v(V_ONES, 4), xreg(s_, e)); M(J_GR(s_), xreg(s_, e), xreg(s_, e))
            for nb in range(2):
                phi = 2*e + nb
                self.waitlg(('w1', phi))
                A = a(A_WF + 4*(phi % 8), 4)
                for s_ in range(2): M(J_ACC(s_, nb), A, xreg(s_, e))
                for f_ in slot_ops[k][2*(e & 1) + nb]: f_()
                M(J_CS(nb), A, v(V_ONES, 4))
                if nread < NF: rd(nread); nread += 1
        for (half, kk) in rest: self.x_dma(half, kk)
        self.ms('j1m')
        self.x23_stage(0, 2)
        self.ms('j1x')
        I("s_nop 7")
        for s_ in range(2):
            t = self.row_stats(s_, v(J_SUM(s_)), [J_GR(s_)+r for r in range(4)])
            I(f"v_mul_f32 {v(t)}, {v(t)}, {v(V_RS+s_)}"); I(f"v_mul_f32 {v(t)}, {v(t)}, {v(V_RS+s_)}")
            I(f"v_add_f32 {v(t)}, 0x3727c5ac, {v(t)}"); I(f"v_rsq_f32 {v(t)}, {v(t)}")
            I("s_nop 0")
            I(f"v_mul_f32 {v(60+s_)}, {v(t)}, {v(V_RS+s_)}")
            gelu_consts(I, 60+s_, 88+3*s_, 89+3*s_, 90+3*s_)
        seqs = []
        for s_ in range(2):
            for nb in range(2):
                for r in range(4):
                    q = Prog(); gelu8(q, J_ACC(s_, nb) + r, 64 + (s_*2+nb)*4 + r, V_NMU+s_, J_CS(nb)+r, 88+3*s_, 89+3*s_, 90+3*s_); seqs.append(q.items)
        self.p.extend(interleave(seqs))
        I(f"s_lshl_b32 {s(S_T0)}, {s(S_CT)}, 10"); I(f"s_add_u32 {s(S_T0)}, {s(S_T0)}, {s(S_X01)}")
        for s_ in range(2):
            for jj in range(4):
                x0 = J_ACC(s_, jj >> 1) + 2*(jj & 1)
                I(f"v_cvt_pk_bf16_f32 {v(80+s_*4+jj)}, {v(x0)}, {v(x0+1)}")
            I(f"buffer_store_dwordx4 {v(80+s_*4,4)}, {v(V_L16)}, {s(S_H,4)}, {s(S_T0)} offen offset:0 sc1" if s_ == 0 else
              f"buffer_store_dwordx4 {v(80+s_*4,4)}, {v(V_L16)}, {s(S_H,4)}, {s(S_T1)} offen offset:0 sc1"); self.vm('hst')
            if s_ == 0: I(f"s_add_u32 {s(S_T1)}, {s(S_T0)}, 16384")
        self.ms('j1s')
        self.x23_stage(2, 8)

    def signal(self, kind, lab):
        I = self.I
        I(f"s_cmp_lg_u32 {s(S_W)}, 0"); I(f"s_cbranch_scc1 {lab}")
        I("s_mov_b64 exec, 1")
        I("v_mov_b32 v8, 1"); I("v_mov_b32 v9, 0")
        I(f"buffer_atomic_add v8, v9, {s(S_DBG,4)}, {s(S_C0)} offen offset:{ctr_off(kind)} sc1")
        I("s_mov_b64 exec, -1")
        self.p.L(lab)
    def poll_issue(self, dst, addr, kind):
        self.I(f"buffer_load_dword {v(dst)}, {v(addr)}, {s(S_DBG,4)}, 0 offen offset:{ctr_off(kind)} sc1")
    def poll_check(self, dst, addr, kind, lab):
        I = self.I
        I(f"v_cmp_gt_u32 vcc, 32, {v(dst)}"); I("s_nop 0")
        I(f"s_cbranch_vccz {lab}_ok")
        save = self.vm_out
        I(f"s_mov_b32 {s(S_SPIN)}, 20000")
        self.p.L(f"{lab}_spin")
        I(f"buffer_load_dword {v(dst)}, {v(addr)}, {s(S_DBG,4)}, 0 offen offset:{ctr_off(kind)} sc1").nowarn = True
        I("s_waitcnt vmcnt(0)")
        I(f"v_cmp_gt_u32 vcc, 32, {v(dst)}"); I("s_nop 0")
        I(f"s_cbranch_vccz {lab}_ok")
        I(f"s_sub_u32 {s(S_SPIN)}, {s(S_SPIN)}, 1"); I(f"s_cmp_lg_u32 {s(S_SPIN)}, 0"); I(f"s_cbranch_scc1 {lab}_spin")
        self.p.L(f"{lab}_ok")
        self.vm_out = save

    def h_ops(self):
        I = self.I
        ops = []
        def setup():
            I(f"v_lshrrev_b32 v0, 4, {v(V_L16)}"); I("v_and_b32 v1, 15, v0"); I("v_and_b32 v8, 48, v0")
        def addr(cg, s_):
            dl = (1, -1, 2, -2)[cg]; dst = 2 + 2*(cg & 1) + s_
            I(f"s_add_u32 {s(S_T2)}, {s(S_R01)}, {s_}"); I(f"s_lshl_b32 {s(S_T2)}, {s(S_T2)}, 4")
            I(f"v_add_u32 v6, {s(S_T2)}, v1")
            I(f"v_subrev_u32 v6, {dl}, v6") if dl > 0 else I(f"v_add_u32 v6, {-dl}, v6")
            I(f"v_ashrrev_i32 v7, 4, v6"); I(f"v_lshlrev_b32 v7, 14, v7")
            I(f"v_and_b32 v6, 15, v6"); I(f"v_add_u32 v6, v6, v8"); I(f"v_lshl_add_u32 {v(dst)}, v6, 4, v7")
        def mk(e, s_):
            def f():
                cg = e >> 2
                if e == 0 and s_ == 0: setup()
                if (e & 3) == 0: addr(cg, s_)
                I(f"s_mov_b32 {s(S_T3)}, {cg*4096}")
                I(f"buffer_load_dwordx4 {hreg(s_, e)}, {v(2 + 2*(cg & 1) + s_)}, {s(S_H,4)}, {s(S_T3)} offen offset:{(e&3)*1024} sc1"); self.vm(('h', e))
            return f
        for e in range(16):
            for s_ in range(2): ops.append(mk(e, s_))
        def mkx(s_, nb):
            def f():
                if s_ == 0 and nb == 0:
                    I("v_lshlrev_b32 v6, 10, v1"); I("v_lshrrev_b32 v7, 1, v8"); I("v_add_u32 v0, v6, v7")
                I(f"s_lshl_b32 {s(S_T2)}, {s(S_CT)}, 6"); I(f"s_add_u32 {s(S_T2)}, {s(S_T2)}, {s(S_X01)}")
                if s_ == 1: I(f"s_add_u32 {s(S_T2)}, {s(S_T2)}, 16384")
                I(f"buffer_load_dwordx2 {v(V_XR + (s_*2+nb)*2, 2)}, v0, {s(S_X,4)}, {s(S_T2)} offen offset:{nb*32}"); self.vm('xr')
            return f
        for s_ in range(2):
            for nb in range(2): ops.append(mkx(s_, nb))
        return ops

    def qproj(self):
        I = self.I; p = self.p
        after_chunk = {0: ('K', 0), 1: ('K', 1), 2: ('V', 0), 3: ('K', 2), 4: ('V', 1), 5: ('V', 2)}
        PH_SIG, PH_POLL, PH_H = self.o['ph']
        PH_CHK = self.o['chk']; assert PH_H > 16*PH_CHK - 6 and PH_POLL < 16*PH_CHK - 6
        qa = []
        for i in range(8): qa.append((1 + i, (lambda i=i: self.slice_dma_op(S_W2, 15, 'w2', 'S0', i))))
        for c_, (w_, t_) in after_chunk.items():
            for jj in range(4): qa.append((16*(c_+1) + 10 + jj, (lambda w_=w_, t_=t_, jj=jj: self.kv_op(w_, t_, jj))))
        hops = self.h_ops()
        RATE = self.o['hrate']
        qb_ = [(PH_H + int(i*RATE), f) for i, f in enumerate(hops)]
        for i, (ph_, f) in enumerate(qb_):
            if i < 32: assert ph_ >= (32 if i < 16 else 64), (i, ph_)
        assert qb_[-1][0] <= 127
        self.waitvm(('w', 0)); I("s_barrier")
        for rho in range(2*LAGQ): self.emit(self.wread(rho))
        nread = 2*LAGQ
        for phi in range(128):
            c, e2, nb = phi >> 4, (phi >> 3) & 1, phi & 7
            e = 2*c + e2
            I(f"s_waitcnt lgkmcnt({nread - 2*(phi+1)})")
            A = a(A_WF + 4*(phi % NRQ), 4)
            for X in range(4):
                d = v(V_QACC + (X*8+nb)*4, 4)
                I(f"{MFMA} {d}, {A}, {xreg(X, e)}, {'0' if e == 0 else d}")
                if X in (0, 2) and nread < 256:
                    if nread % 32 == 0:
                        cn = nread >> 5
                        if cn == PH_SIG: self.waitvm('hst')
                        if cn == PH_CHK and not self.o['nopoll']:
                            self.waitvm('poll')
                            I(f"s_cmp_lg_u32 {s(S_W)}, 0"); I("s_cbranch_scc1 L_p1_ok")
                            self.poll_check(V_POLL, V_POLLA, 0, "L_p1")
                            self.ms('pc')
                        self.waitvm(('w', cn))
                        I("s_barrier")
                        if cn == PH_SIG: self.signal(0, "L_sig1")
                    self.emit(self.wread(nread)); nread += 1
                if X == 1 and qa and qa[0][0] <= phi: qa.pop(0)[1]()
                if X == 3 and qb_ and qb_[0][0] <= phi: qb_.pop(0)[1]()
            if nb < 2:
                d = v(V_CSQ + nb*4, 4)
                I(f"{MFMA} {d}, {A}, {v(V_ONES,4)}, {'0' if e == 0 else d}")
            elif nb < 6:
                k = nb - 2; s_ = k & 1
                d = a(A_ST23 + 4*k, 4)
                Aop = v(V_ONES, 4) if k < 2 else xreg(2+s_, e)
                I(f"{MFMA} {d}, {Aop}, {xreg(2+s_, e)}, {'0' if e == 0 else d}")
            self.ms(f'q{phi}')
            if phi == PH_POLL and not self.o['nopoll']:
                self.poll_issue(V_POLL, V_POLLA, 0); self.vm('poll')
        assert not qa and not qb_, (qa, qb_)
        self.ms('qp')

    def j2(self):
        I = self.I
        I(f"v_xor_b32 {v(229-1+0)}, 0, {v(228)}") if False else None
        I(f"v_xor_b32 v1, 32, {v(228)}")
        NF = 32; LA = 6; NR = 12
        def rd(phi):
            e, nb = phi >> 1, phi & 1
            for t in range(2):
                self.emit(Ins(f"ds_read_b64_tr_b16 {a(A_J2R + 4*(phi % NR) + 2*t, 2)}, {v(228) if nb == 0 else 'v1'} offset:{e*2048 + t*1024}", lds_r='S0'))
        self.waitvm('w2'); I("s_barrier")
        I(f"s_lshl_b32 {s(S_T0)}, {s(S_W)}, 11"); I(f"s_add_u32 {s(S_T0)}, {s(S_T0)}, {3*SLOT}")
        I(f"v_add_u32 v0, {s(S_T0)}, {v(V_L16)}")
        for b in range(2): I(f"ds_write_b128 v0, {v(V_CSQ+4*b,4)} offset:{b*1024}", lds_w=('K', 3))
        for phi in range(LA): rd(phi)
        nread = LA
        for e in range(16):
            if e % 2 == 0: self.waitvm(('h', e + 1))
            for nb in range(2):
                phi = 2*e + nb
                I(f"s_waitcnt lgkmcnt({min(15, 2*(nread - phi - 1))})")
                A = a(A_J2R + 4*(phi % NR), 4)
                for s_ in range(2):
                    d = a(A_J2ACC + (s_*2+nb)*4, 4)
                    I(f"{MFMA} {d}, {A}, {hreg(s_, e)}, {'0' if e == 0 else d}")
                if nread < NF: rd(nread); nread += 1
        for s_ in range(2):
            for r in range(4): I(f"v_accvgpr_read_b32 {v(208+r)}, {a(A_ST23 + 8 + 4*s_ + r)}")
            I(f"v_accvgpr_read_b32 {v(212)}, {a(A_ST23 + 4*s_)}")
            self.row_stats(2+s_, v(212), [208+r for r in range(4)], 213, 214)
        self.waitvm('xr')
        I(f"s_lshl_b32 {s(S_T0)}, {s(S_CT)}, 10"); I(f"s_add_u32 {s(S_T0)}, {s(S_T0)}, {s(S_X01)}"); I(f"s_add_u32 {s(S_T0)}, {s(S_T0)}, {WS_X1}")
        I(f"s_lshl_b32 {s(S_T1)}, {s(S_CT)}, 14"); I(f"s_lshl_b32 {s(S_T2)}, {s(S_R01)}, 7"); I(f"s_add_u32 {s(S_T1)}, {s(S_T1)}, {s(S_T2)}"); I(f"s_add_u32 {s(S_T1)}, {s(S_T1)}, {WS_STAT}")
        for s_ in range(2):
            acc, pk = 208, 216
            for j in range(8): I(f"v_accvgpr_read_b32 {v(acc+j)}, {a(A_J2ACC + s_*8 + j)}")
            if s_ == 0: I("s_waitcnt lgkmcnt(0)")
            for j in range(8):
                src = V_XR + s_*4 + (j >> 1)
                I(f"v_lshlrev_b32 v0, 16, {v(src)}") if (j & 1) == 0 else I(f"v_and_b32 v0, 0xffff0000, {v(src)}")
                I(f"v_add_f32 v0, v0, {v(V_NMU+s_)}")
                I(f"v_fma_f32 {v(acc+j)}, v0, {v(V_RS+s_)}, {v(acc+j)}")
            for jj in range(4): I(f"v_cvt_pk_bf16_f32 {v(pk+4*s_+jj)}, {v(acc+2*jj)}, {v(acc+2*jj+1)}")
            I(f"buffer_store_dwordx4 {v(pk+4*s_,4)}, {v(V_L16)}, {s(S_WS,4)}, {s(S_T0)} offen sc1"); self.vm('x1st')
            if s_ == 0: I(f"s_add_u32 {s(S_T0)}, {s(S_T0)}, 16384")
            sm, sq = 208 + 0, 209
            for jj in range(4):
                I(f"v_lshlrev_b32 v0, 16, {v(pk+4*s_+jj)}"); I(f"v_and_b32 v1, 0xffff0000, {v(pk+4*s_+jj)}")
                if jj == 0:
                    I(f"v_add_f32 {v(sm)}, v0, v1"); I(f"v_mul_f32 {v(sq)}, v0, v0")
                else:
                    I(f"v_add_f32 {v(sm)}, {v(sm)}, v0"); I(f"v_add_f32 {v(sm)}, {v(sm)}, v1"); I(f"v_fmac_f32 {v(sq)}, v0, v0")
                I(f"v_fmac_f32 {v(sq)}, v1, v1")
            for r_ in (sm, sq):
                for sw_ in ('16', '32'):
                    I(f"v_mov_b32 v0, {v(r_)}"); I("s_nop 1"); I(f"v_permlane{sw_}_swap_b32 {v(r_)}, v0"); I("s_nop 0"); I(f"v_add_f32 {v(r_)}, {v(r_)}, v0")
            I(f"v_lshrrev_b32 v0, 1, {v(V_L16)}")
            I("s_mov_b64 exec, 0xffff")
            I(f"buffer_store_dwordx2 {v(sm,2)}, v0, {s(S_WS,4)}, {s(S_T1)} offen offset:{s_*128} sc1"); self.vm('x1st')
            I("s_mov_b64 exec, -1")

    def wp_piece(self, i, store):
        I = self.I
        I(f"s_lshl_b32 {s(S_T2)}, s2, 2"); I(f"s_add_u32 {s(S_T2)}, {s(S_T2)}, {s(S_W)}"); I(f"s_mul_i32 {s(S_T2)}, {s(S_T2)}, 6")
        I(f"s_add_u32 {s(S_T2)}, {s(S_T2)}, {i}"); I(f"s_min_u32 {s(S_T2)}, {s(S_T2)}, 5887")
        I(f"s_and_b32 {s(S_T3)}, {s(S_T2)}, 7")
        if not store:
            I(f"s_andn2_b32 {s(S_T0)}, {s(S_T2)}, 7")
            I(f"s_cmp_lt_u32 {s(S_T0)}, 1792")
            I(f"s_cselect_b32 {s(S_WT)}, {s(S_W2)}, {s(S_H)}"); I(f"s_cselect_b32 {s(S_WT+1)}, {s(S_W2+1)}, {s(S_H+1)}")
            I(f"s_cselect_b32 {s(S_WT+2)}, {s(S_W2+2)}, {s(S_H+2)}"); I(f"s_cselect_b32 {s(S_T1)}, 0, 1792")
            I(f"s_mov_b32 {s(S_WT+3)}, 0x20000")
            I(f"s_sub_u32 {s(S_T0)}, {s(S_T0)}, {s(S_T1)}"); I(f"s_lshl_b32 {s(S_T0)}, {s(S_T0)}, 10")
            I(f"s_lshl_b32 {s(S_T3)}, {s(S_T3)}, 7"); I(f"s_add_u32 {s(S_T0)}, {s(S_T0)}, {s(S_T3)}")
            I(f"buffer_load_dwordx4 {a(4*i, 4)}, v9, {s(S_WT,4)}, {s(S_T0)} offen"); self.vm('wpl')
        else:
            I(f"s_mul_i32 {s(S_T3)}, {s(S_T3)}, {92*8192 + self.o['wpad']}"); I(f"s_lshr_b32 {s(S_T2)}, {s(S_T2)}, 3")
            I(f"s_lshl_b32 {s(S_T2)}, {s(S_T2)}, 10"); I(f"s_add_u32 {s(S_T2)}, {s(S_T2)}, {s(S_T3)}"); I(f"s_add_u32 {s(S_T2)}, {s(S_T2)}, {WS_WP}")
            I(f"buffer_store_dwordx4 {a(4*i, 4)}, {v(V_L16)}, {s(S_WS,4)}, {s(S_T2)} offen"); self.vm('wps')
    def wp_setup(self):
        I = self.I
        I(f"v_lshrrev_b32 v6, 7, {v(V_L16)}"); I(f"v_bfe_u32 v7, {v(V_L16)}, 4, 3"); I("v_lshrrev_b32 v8, 1, v6"); I("v_lshlrev_b32 v8, 1, v8"); I("v_xor_b32 v8, v8, v7")
        I("v_lshlrev_b32 v8, 4, v8"); I("v_lshl_add_u32 v9, v6, 10, v8")
        I(f"s_mov_b32 {s(S_W2+2)}, {1792*1024}"); I(f"s_mov_b32 {s(S_H+2)}, {4096*1024}")

    def q_convert_and_first_tile(self, sched):
        I = self.I
        vmq = self.vmq
        idx = max(max(i for i, e in enumerate(vmq) if e == ('kv', kk)) for kk in (('K', 0), ('K', 1), ('V', 0)))
        I(f"s_waitcnt vmcnt({len(vmq) - 1 - idx}) lgkmcnt(0)")
        I("s_barrier")
        for f in range(8): self.emit(kread(0, f))
        for X in range(4): I(f"v_mul_f32 {v(V_RS+X)}, {s(S_SCALE)}, {v(V_RS+X)}")
        CS = 208
        for h in range(2):
            for k in range(2):
                ep = 2*h + k
                I(f"s_xor_b32 {s(S_T0)}, {s(S_W)}, {ep}"); I(f"s_lshl_b32 {s(S_T0)}, {s(S_T0)}, 11"); I(f"s_add_u32 {s(S_T0)}, {s(S_T0)}, {3*SLOT}")
                I(f"v_add_u32 v{k}, {s(S_T0)}, {v(V_L16)}")
                for b in range(2): I(f"ds_read_b128 {v(CS + (k*2+b)*4, 4)}, v{k} offset:{b*1024}", lds_r=('K', 3))
            I("s_waitcnt lgkmcnt(0)")
            for X in range(4):
                pr = lambda base: v(base + (X & ~1), 2)
                hi = X & 1
                for k in range(2):
                    ep = 2*h + k
                    for b in range(2):
                        base = V_QACC + (X*8 + 2*ep + b)*4
                        for r in range(0, 4, 2):
                            I(f"v_pk_fma_f32 {v(base+r,2)}, {v(CS+(k*2+b)*4+r,2)}, {pr(V_NMU)}, {v(base+r,2)} op_sel:[0,{hi},0] op_sel_hi:[1,{hi},1]")
                        for r in range(0, 4, 2):
                            I(f"v_pk_mul_f32 {v(base+r,2)}, {v(base+r,2)}, {pr(V_RS)} op_sel:[0,{hi}] op_sel_hi:[1,{hi}]")
                        for jj in range(2):
                            I(f"v_cvt_pk_bf16_f32 {v(Qreg(X, ep) + 2*b + jj)}, {v(base+2*jj)}, {v(base+2*jj+1)}")
        I("s_waitcnt lgkmcnt(0)")
        zi = 0
        for z in range(4): I(f"v_mov_b32 v{z}, 0")
        for g in range(32):
            X, kb2, s_ = g >> 3, (g >> 2) & 1, g & 3
            d = v(Sreg(0, X, kb2), 4)
            I(f"{MFMA} {d}, {a(A_KF + (kb2*4+s_)*4, 4)}, {v(Qreg(X, s_), 4)}, {'0' if s_ == 0 else d}")
            if not self.o['mz']:
                for z in range(4):
                    I(f"v_accvgpr_write_b32 {a(A_O + zi)}, 0"); zi += 1
            elif g % 4 == 3:
                I(f"v_mfma_f32_32x32x16_bf16 {a(A_O + 16*(g >> 2), 16)}, v[0:3], v[0:3], 0")
        for f in range(8): self.emit(kread(1, f))
        for X in range(4): I(f"v_mov_b32 {v(V_L+X)}, 0")
        I("s_nop 3")
        for X in range(4):
            mx, t2 = V_TMP, V_TMP+1
            S0 = Sreg(0, X)
            I(f"v_max3_f32 {v(mx)}, {v(S0)}, {v(S0+1)}, {v(S0+2)}")
            I(f"v_max3_f32 {v(mx)}, {v(mx)}, {v(S0+3)}, {v(S0+4)}")
            I(f"v_max3_f32 {v(mx)}, {v(mx)}, {v(S0+5)}, {v(S0+6)}")
            I(f"v_max_f32 {v(mx)}, {v(mx)}, {v(S0+7)}")
            for sw in ('16', '32'):
                I(f"v_mov_b32 {v(t2)}, {v(mx)}")
                I("s_nop 1")
                I(f"v_permlane{sw}_swap_b32 {v(mx)}, {v(t2)}")
                I("s_nop 0")
                I(f"v_max_f32 {v(mx)}, {v(mx)}, {v(t2)}")
            for r in range(8): I(f"v_sub_f32 {v(S0+r)}, {v(S0+r)}, {v(mx)}")
            for r in range(4): I(f"v_sub_f32 {v(V_NEGM+X*4+r)}, 0, {v(mx)}")
        for g in range(self.G0, NG):
            self.gap_valu(-NG + g, sched)
        I("s_waitcnt vmcnt(0) lgkmcnt(0)")
        I("s_barrier")
        self.signal(1, "L_sig2")
        I("v_and_b32 v1, 63, v0") if False else None

    W3SLOT = [('K', 0), ('V', 0), ('K', 1), ('V', 1), ('K', 2), ('V', 2), ('K', 3), ('V', 3)]
    def w3_dma_one(self, c, jj):
        reg, slot = self.W3SLOT[c]
        self.I(f"s_add_u32 {s(S_T0)}, {s(S_WOFF)}, {(64*c + 4*jj)*3584 - jj*1024}")
        self.I(f"buffer_load_dwordx4 {v(V_D3+(jj&1))}, {s(S_W1,4)}, {s(S_T0)} offen offset:{jj*1024} lds", lds_w=(reg, slot))
    def emit_dma(self, which, tile, jj):
        if tile >= 32:
            c = 2*(tile - 32) + (0 if which == 'K' else 1)
            self.w3_dma_one(c, jj); self.vm(('w3', c)); return
        super().emit_dma(which, tile, jj)
        if self.tail: self.vm(('t', tile))
    def j3_setup(self):
        I = self.I
        I(f"s_load_dwordx2 {s(S_W1,2)}, s[0:1], {ARG_W3}")
        if self.o['wp']: I(f"s_load_dwordx2 {s(S_W2,2)}, s[0:1], {ARG_W4}"); I(f"s_load_dwordx2 {s(S_H,2)}, s[0:1], {ARG_WO}")
        I(f"v_lshrrev_b32 v1, 4, {v(V_L16)}"); I("v_and_b32 v2, 15, v1"); I("v_lshrrev_b32 v5, 4, v1")
        I("v_mul_u32_u24 v9, 3584, v5")
        for pj in range(2):
            I(f"v_add_u32 v8, {4*pj}, v5"); I("v_lshlrev_b32 v8, 1, v8"); I("v_xor_b32 v8, v8, v2"); I("v_min_u32 v8, 13, v8"); I("v_lshlrev_b32 v8, 4, v8")
            I(f"v_add_u32 {v(V_D3+pj)}, v9, v8")
        I(f"v_mov_b32 {v(V_POLLA2)}, {s(S_C0)}")
        I("s_waitcnt lgkmcnt(0)")
        I(f"s_mul_i32 {s(S_T0)}, {s(S_CT)}, 224")
        I(f"s_add_u32 {s(S_W1)}, {s(S_W1)}, {s(S_T0)}"); I(f"s_addc_u32 {s(S_W1+1)}, {s(S_W1+1)}, 0")
        I(f"s_sub_u32 {s(S_W1+2)}, {512*3584}, {s(S_T0)}"); I(f"s_mov_b32 {s(S_W1+3)}, 0x20000")
        I(f"s_mul_i32 {s(S_WOFF)}, {s(S_W)}, {16*3584}")
        self.poll_issue(V_POLL2, V_POLLA2, 1)
        if self.o['wp']: self.wp_setup()
        if self.o['pfw']:
            I(f"s_load_dwordx2 {s(S_W2,2)}, s[0:1], {ARG_WO}"); I(f"s_load_dwordx2 {s(S_H,2)}, s[0:1], {ARG_W4}")
            I(f"s_lshl_b32 {s(S_T0)}, s2, 2"); I(f"s_add_u32 {s(S_T0)}, {s(S_T0)}, {s(S_W)}")
            I("v_and_b32 v2, 31, v1"); I("v_lshlrev_b32 v2, 7, v2"); I("v_min_u32 v5, 13, v1"); I("v_lshlrev_b32 v5, 7, v5")
            I("s_waitcnt lgkmcnt(0)")
            I(f"s_mov_b32 {s(S_W2+2)}, {4096*1024}"); I(f"s_mov_b32 {s(S_W2+3)}, 0x20000"); I(f"s_mov_b32 {s(S_H+2)}, {1792*1024}"); I(f"s_mov_b32 {s(S_H+3)}, 0x20000")
            I(f"s_lshl_b32 {s(S_T1)}, {s(S_T0)}, 12"); I(f"s_mul_i32 {s(S_T0)}, {s(S_T0)}, {14*128}")
            I(f"buffer_load_dword v140, v2, {s(S_W2,4)}, {s(S_T1)} offen"); self.vm('pfw')
            I(f"buffer_load_dword v141, v5, {s(S_H,4)}, {s(S_T0)} offen"); self.vm('pfw')

    @staticmethod
    def x1reg(s_, e): return a(192 + (e*2 + s_)*4, 4) if e < 8 else v(16 + ((e-8)*2 + s_)*4, 4)
    def x1_op(self, s_, e):
        I = self.I
        I(f"s_add_u32 {s(S_T3)}, {s(S_X01)}, {WS_X1 + s_*16384 + (e & ~3)*1024}")
        I(f"buffer_load_dwordx4 {self.x1reg(s_, e)}, {v(V_L16)}, {s(S_WS,4)}, {s(S_T3)} offen offset:{(e&3)*1024} sc1"); self.vm(('x1', e))
    def st_op(self, k, s_):
        I = self.I
        if k == 0 and s_ == 0:
            I(f"v_lshrrev_b32 v1, 4, {v(V_L16)}"); I("v_and_b32 v2, 15, v1"); I("v_lshrrev_b32 v5, 4, v1")
            I("v_lshlrev_b32 v2, 3, v2"); I("v_lshl_add_u32 v2, v5, 16, v2")
        I(f"s_lshl_b32 {s(S_T2)}, {s(S_R01)}, 7"); I(f"s_add_u32 {s(S_T2)}, {s(S_T2)}, {WS_STAT + k*16384}")
        I(f"buffer_load_dwordx2 {v(208 + (s_*4+k)*2, 2)}, v2, {s(S_WS,4)}, {s(S_T2)} offen offset:{s_*128} sc1"); self.vm('st')

    def o_epilogue_items(self):
        q = []
        A = lambda t: q.append(Ins(t))
        for X in range(4):
            l, t2 = V_L + X, V_TMP + X
            for sw in ('16', '32'):
                A(f"v_mov_b32 {v(t2)}, {v(l)}"); A("s_nop 1"); A(f"v_permlane{sw}_swap_b32 {v(l)}, {v(t2)}"); A("s_nop 0"); A(f"v_add_f32 {v(l)}, {v(l)}, {v(t2)}")
            A(f"v_rcp_f32 {v(l)}, {v(l)}")
        stage = 80; n = 0
        for X in range(4):
            A(f"s_lshl_b32 {s(S_OOFF)}, {s(S_HEAD)}, 12"); A(f"s_add_u32 {s(S_OOFF)}, {s(S_OOFF)}, {WS_O + (X & 1)*131072}")
            A(f"s_lshl_b32 {s(S_C1)}, {s(S_R01 if X < 2 else S_R23)}, 17"); A(f"s_add_u32 {s(S_OOFF)}, {s(S_OOFF)}, {s(S_C1)}")
            for e in range(4):
                f = stage + (n % 4)*12; n += 1
                for j in range(8): A(f"v_accvgpr_read_b32 {v(f+j)}, {a(Oreg(X, 2*e + (j >> 2)) + (j & 3))}")
                for j in range(8): A(f"v_mul_f32 {v(f+j)}, {v(f+j)}, {v(V_L+X)}")
                for jj in range(4): A(f"v_cvt_pk_bf16_f32 {v(f+8+jj)}, {v(f+2*jj)}, {v(f+2*jj+1)}")
                q.append(('vm', f"buffer_store_dwordx4 {v(f+8,4)}, {v(V_L16)}, {s(S_WS,4)}, {s(S_OOFF)} offen offset:{e*1024}", 'ost'))
        return q

    def j3(self):
        I = self.I; p = self.p
        for c in range(7): I(f"v_subrev_u32 {v(V_A3K+c)}, {LDS_V}, {v(V_AV+c)}")
        I(f"s_lshl_b32 {s(S_T0)}, {s(S_W)}, 6")
        for c in range(2):
            I(f"v_xor_b32 {v(140+c)}, {s(S_T0)}, {v(V_AV+c)}"); I(f"v_subrev_u32 {v(142+c)}, {LDS_V}, {v(140+c)}")
        for k in range(4): I(f"v_mov_b32 {v(V_ONES+k)}, 0x3f803f80")
        ACC = lambda s_, cb: 144 + (s_*7 + cb)*4
        CSA = lambda c: 200 + 4*c
        blks = []
        for e in range(16):
            c = e >> 1; reg, slot = self.W3SLOT[c]; off = slot*SLOT + (e & 1)*8192
            for cb in range(7): blks.append((e, (V_AV if reg == 'V' else V_A3K) + cb, cb, False, off, (reg, slot)))
            for cb in range(2): blks.append((e, (140 if reg == 'V' else 142) + cb, cb, True, off, (reg, slot)))
        LA, NR = 9, 16
        vops = []
        for c in (6, 7):
            for jj in range(4):
                def f(c=c, jj=jj):
                    reg, slot = self.W3SLOT[c]
                    I(f"s_add_u32 m0, {s(S_M0K if reg == 'K' else S_M0V)}, {slot*SLOT}")
                    self.w3_dma_one(c, jj); self.vm(('w3', c))
                vops.append(f)
        for e in range(8, 16):
            for s_ in range(2): vops.append(lambda s_=s_, e=e: self.x1_op(s_, e))
        for k in range(4):
            for s_ in range(2): vops.append(lambda k=k, s_=s_: self.st_op(k, s_))
        side = self.o_epilogue_items()
        side.append(('wait', 'st'))
        for s_ in range(2):
            b = 208 + s_*8
            for j in range(2):
                side += [Ins(f"v_add_f32 {v(b+j)}, {v(b+j)}, {v(b+2+j)}"), Ins(f"v_add_f32 {v(b+4+j)}, {v(b+4+j)}, {v(b+6+j)}"), Ins(f"v_add_f32 {v(b+j)}, {v(b+j)}, {v(b+4+j)}")]
                for sw_ in ('16', '32'):
                    side += [Ins(f"v_mov_b32 v0, {v(b+j)}"), Ins("s_nop 1"), Ins(f"v_permlane{sw_}_swap_b32 {v(b+j)}, v0"), Ins("s_nop 0"), Ins(f"v_add_f32 {v(b+j)}, {v(b+j)}, v0")]
            side += [Ins(f"v_mul_f32 {v(b)}, 0xbb000000, {v(b)}"), Ins(f"v_mul_f32 {v(b+1)}, 0x3b000000, {v(b+1)}"),
                     Ins(f"v_fma_f32 {v(b+1)}, -{v(b)}, {v(b)}, {v(b+1)}"), Ins(f"v_max_f32 {v(b+1)}, 0, {v(b+1)}"),
                     Ins(f"v_add_f32 {v(b+1)}, 0x3727c5ac, {v(b+1)}"), Ins(f"v_rsq_f32 {v(b+1)}, {v(b+1)}")]
            q = Prog(); q.I("s_nop 0"); gelu_consts(q.I, b+1, b+2, b+3, b+4); side += q.items
        def drain(n):
            k = 0
            while side and k < n:
                it = side.pop(0)
                if isinstance(it, Ins):
                    self.emit(it); k += 0 if it.op.startswith('s_') else 1
                elif it[0] == 'vm': I(it[1]); self.vm(it[2]); k += 1
                else: self.waitvm(it[1])
        def issue_read(n):
            e, ar, cb, iscs, off, region = blks[n]
            c = e >> 1
            if n == 0 or (blks[n-1][0] >> 1) != c:
                if c in (0, 4, 6):
                    self.waitvm(('w3', {0: 3, 4: 5, 6: 7}[c])); I("s_barrier")
            r = A_WF + (n % NR)*4
            for t in range(2): I(f"ds_read_b64_tr_b16 {a(r+2*t,2)}, {v(ar)} offset:{off + t*4096}", lds_r=region)
        for n in range(LA): issue_read(n)
        nread = LA; nm = 0; nwp = 0; nside0 = len(side)
        for n, (e, ar, cb, iscs, off, region) in enumerate(blks):
            if (n == 0 or blks[n-1][0] != e): self.ms(f'e{e}')
            if (n == 0 or blks[n-1][0] != e) and (e & 1) == 0: self.waitvm(('x1', e + 1)); self.ms(f'w{e}')
            if n % 3 == 0: I(f"s_waitcnt lgkmcnt({max(0, 2*(nread - n - 3))})")
            A = a(A_WF + (n % NR)*4, 4)
            ms_ = [(CSA(cb), v(V_ONES, 4))] if iscs else [(ACC(s_, cb), self.x1reg(s_, e)) for s_ in range(2)]
            for i_, (d, B) in enumerate(ms_):
                I(f"{MFMA} {v(d,4)}, {A}, {B}, {'0' if e == 0 else v(d,4)}"); nm += 1
                if i_ == 0 and nread < len(blks): issue_read(nread); nread += 1
                elif vops and nm % 2 == 0: vops.pop(0)()
                elif self.o['wp'] and len(side) < nside0 - 140 and nm % 4 == 2 and nwp < 6:
                    assert not any(isinstance(it, Ins) and 'accvgpr_read' in it.text and int(it.text.split(', a')[1]) < 32 for it in side)
                    self.wp_piece(nwp, False); nwp += 1
                drain(self.o['j3v'] if nm > 4 else 0)
        assert not vops
        drain(10000)
        self.ms('j3m')
        I(f"s_lshl_b32 {s(S_T0)}, {s(S_W)}, 11"); I(f"s_add_u32 {s(S_T0)}, {s(S_T0)}, {LDS_S0}")
        I(f"v_add_u32 v0, {s(S_T0)}, {v(V_L16)}"); I(f"v_add_u32 v1, {LDS_S0}, {v(V_L16)}")
        for c in range(2): I(f"ds_write_b128 v0, {v(CSA(c),4)} offset:{c*1024}", lds_w='S0')
        I("s_waitcnt lgkmcnt(0)"); I("s_barrier")
        CS = 16
        for cb in range(7): I(f"ds_read_b128 {v(CS+cb*4,4)}, v1 offset:{cb*1024}", lds_r='S0')
        if self.o['wp']:
            assert nwp == 6
            self.waitvm('wpl')
            for i in range(6): self.wp_piece(i, True)
        I(f"s_mul_i32 {s(S_OOFF)}, {s(S_R01)}, {56*1024}"); I(f"s_add_u32 {s(S_OOFF)}, {s(S_OOFF)}, {WS_H2}")
        I(f"s_mul_i32 {s(S_T3)}, {s(S_CT)}, 7")
        for k, dst in ((0, S_T0), (1, S_T1)):
            I(f"s_add_u32 {s(S_T2)}, {s(S_T3)}, {k}"); I(f"s_lshr_b32 {s(dst)}, {s(S_T2)}, 1"); I(f"s_lshl_b32 {s(dst)}, {s(dst)}, 10")
            I(f"s_and_b32 {s(S_T2)}, {s(S_T2)}, 1"); I(f"s_lshl_b32 {s(S_T2)}, {s(S_T2)}, 3"); I(f"s_add_u32 {s(dst)}, {s(dst)}, {s(S_T2)}"); I(f"s_add_u32 {s(dst)}, {s(dst)}, {s(S_OOFF)}")
        I("s_waitcnt lgkmcnt(0)")
        for s_ in range(2):
            b = 208 + s_*8
            T0 = 48 + s_*28
            for half in (range(0, 4), range(4, 7)):
                seqs = []
                for cb in half:
                    for r_ in range(4):
                        q = Prog(); gelu8(q, ACC(s_, cb) + r_, T0 + cb*4 + r_, b, CS+cb*4+r_, b+2, b+3, b+4); seqs.append(q.items)
                p.extend(interleave(seqs))
                for cb in half:
                    x = ACC(s_, cb); o = 104 + (s_*7 + cb)*2
                    I(f"v_cvt_pk_bf16_f32 {v(o)}, {v(x)}, {v(x+1)}"); I(f"v_cvt_pk_bf16_f32 {v(o+1)}, {v(x+2)}, {v(x+3)}")
                    I(f"buffer_store_dwordx2 {v(o,2)}, {v(V_L16)}, {s(S_WS,4)}, {s(S_T0 if cb % 2 == 0 else S_T1)} offen offset:{(cb >> 1)*1024}"); self.vm('h2st')
            if s_ == 0:
                I(f"s_add_u32 {s(S_T0)}, {s(S_T0)}, {56*1024}"); I(f"s_add_u32 {s(S_T1)}, {s(S_T1)}, {56*1024}")

    def gen(self, name="a_kernel"):
        p = self.p; I = self.I
        p.raw(kernel_header(name))
        sched = self.build_valu()
        n0 = len(p.items)
        self.prologue_setup()
        self.j1()
        self.ms('j1')
        self.qproj()
        self.j2()
        self.ms('j2')
        self.q_convert_and_first_tile(sched)
        self.ms('ft')
        pro, npad = fix_hazards(p.items[n0:], name='pro')
        p.items[n0:] = pro
        self.I(f"s_mov_b32 {s(S_CNT)}, 7")
        p.raw(".p2align 6")
        p.L("L_attn_loop")
        loop_start = len(p.items)
        replay_at_entry = list(self.replay)
        for T in range(4):
            self.step(2*T, sched, dma_k=T+3)
            self.step(2*T+1, sched, dma_v=T+3, barrier=True, vmw=8)
        self.I(f"s_sub_u32 {s(S_CNT)}, {s(S_CNT)}, 1")
        self.I(f"s_cmp_lg_u32 {s(S_CNT)}, 0")
        self.I("s_cbranch_scc1 L_attn_loop")
        loop_end = len(p.items)
        ent = [(n, k, ins.text) for (n, k, ins, kind) in replay_at_entry]
        ext = [(n - 8, k, ins.text) for (n, k, ins, kind) in self.replay]
        assert ent == ext
        self.replay = [(n - 8 + 56, k, ins, kind) for (n, k, ins, kind) in self.replay]
        tail_start = len(p.items)
        self.vmq = [('t', 30)]*8; self.vm_out = 8; self.tail = True
        self.j3_setup(); self.vm('poll2')
        xo = [(s_, e) for e in range(8) for s_ in range(2)]
        for i_, (s_, e) in enumerate(xo):
            self.extra.setdefault((58 + i_ // 4, 34 + 4*(i_ % 4)), []).append(lambda s_=s_, e=e: self.x1_op(s_, e))
        def chk2():
            self.waitvm('poll2')
            I(f"s_cmp_lg_u32 {s(S_W)}, 0"); I("s_cbranch_scc1 L_p2_ok")
            self.poll_check(V_POLL2, V_POLLA2, 1, "L_p2")
        self.extra.setdefault((57, 62), []).append(chk2)
        for T in range(28, 32):
            dk = T + 3
            lastT = (T == 31)
            need = {28: ('pfw' if self.o['pfw'] else 'poll2'), 29: ('t', 31), 30: ('w3', 1), 31: None}[T]
            self.step(2*T, sched, dma_k=dk)
            self.step(2*T+1, sched, dma_v=dk, barrier=not lastT, vmw=(lambda need=need: min(self.wait_for(need), self.vm_out)), last=lastT)
        self.ms('loop')
        I("s_waitcnt lgkmcnt(0)")
        self.j3()
        tail, npad2 = fix_hazards(p.items[tail_start:], name='tail', verbose=True)
        p.items[tail_start:] = tail
        p.L("L_a_end")
        self.I("s_endpgm")
        for (tr, lab, back) in self.tramps:
            p.L(tr); self.I(f"s_call_b64 {s(S_RET,2)}, {lab}"); self.I(f"s_branch {back}")
        for key, (lab, items) in self.rare.items(): p.extend(items)
        ins = lambda seq: [i for i in seq if isinstance(i, Ins) and not i.nowarn]
        body = ins(p.items[loop_start:loop_end])
        def strip_spin(seq):
            out = []; skip = False
            for i in seq:
                if isinstance(i, Label) and i.name.endswith('_spin'): skip = True; continue
                if isinstance(i, Label) and i.name.endswith('_ok'): skip = False; continue
                if isinstance(i, Ins) and not skip: out.append(i)
            return out
        trace = strip_spin(p.items[n0:loop_start]) + body + body + strip_spin(p.items[loop_end:loop_end + len(tail) + 2])
        e1 = check_hazards(trace, name); e2 = check_waitcnt(trace, name)
        self.stats = dict(pro=len(ins(pro)), loop=len(body), tail=len(ins(tail)), npad=npad, npad2=npad2, rare=len(self.rare))
        return p.text(), kernel_desc(name, 512, 96, 256), e1 + e2

if __name__ == "__main__":
    g = AGen(); t, d, errs = g.gen()
    print(g.stats)
    for e in errs[:40]: print(e)
    print(len(errs), "errors")
```

```python
from asmgen import *
from layout import *
import math
from k_gemm import f2u
MFMA = "v_mfma_f32_16x16x32_bf16"
def gen_final(name="final_kernel", with_b=True, lds_bytes=131072, helper=True, lead=6, nods=0, nomfma=0, now=0, nox=0, nobar=0, D=7, pf64=0, same=0, map=0, wp=1, wpad=0, csp=0):
    p = Prog(); I = p.I
    p.raw(kernel_header(name))
    end = f"L_{name}_end"
    SW, SX = 4, 8
    SW2, SX2 = 12, 16
    SX1, SXIN, SOUT = 20, 24, 28
    sw, sT0, sT1, sWOFF, sXOFF, sM0, sPF, sCNT, sWOFF2, sXOFF2, sRT, sCT = 32, 33, 34, 35, 36, 37, 38, 39, 40, 41, 42, 43
    VAA = 16
    VAB = 18
    VDW = 19
    VL16 = 14
    VA = 32
    VB = 64
    ACCB, ACCS = 96, 112
    I("s_cmp_ge_u32 s2, 256"); I(f"s_cbranch_scc1 {end}")
    I(f"s_load_dwordx2 {s(SW,2)}, s[0:1], {ARG_W4}")
    I(f"s_load_dwordx2 {s(SW2,2)}, s[0:1], {ARG_WO}")
    I(f"s_load_dwordx2 {s(SX,2)}, s[0:1], {ARG_WS}")
    I(f"s_load_dwordx2 {s(SXIN,2)}, s[0:1], {ARG_X}")
    I(f"s_load_dwordx2 {s(SOUT,2)}, s[0:1], {ARG_OUT}")
    I("v_lshrrev_b32 v1, 6, v0"); I("s_nop 0"); I(f"v_readfirstlane_b32 {s(sw)}, v1")
    I("v_and_b32 v1, 63, v0"); I(f"v_lshlrev_b32 {v(VL16)}, 4, v1")
    I(f"s_and_b32 {s(sT0)}, s2, 7"); I(f"s_lshr_b32 {s(sT1)}, s2, 3")
    I(f"s_and_b32 {s(sCT)}, {s(sT1)}, 7"); I(f"s_lshr_b32 {s(sT1)}, {s(sT1)}, 3")
    I(f"s_lshl_b32 {s(sT0)}, {s(sT0)}, 2"); I(f"s_add_u32 {s(sRT)}, {s(sT0)}, {s(sT1)}")
    if map == 1:
        I(f"s_and_b32 {s(sT0)}, s2, 7"); I(f"s_lshr_b32 {s(sT1)}, s2, 3")
        I(f"s_and_b32 {s(sCT)}, {s(sT1)}, 3"); I(f"s_lshr_b32 {s(sT1)}, {s(sT1)}, 2")
        I(f"s_and_b32 s44, {s(sT0)}, 1"); I("s_lshl_b32 s44, s44, 2"); I(f"s_add_u32 {s(sCT)}, {s(sCT)}, s44")
        I(f"s_lshr_b32 {s(sT0)}, {s(sT0)}, 1"); I(f"s_lshl_b32 {s(sT0)}, {s(sT0)}, 3"); I(f"s_add_u32 {s(sRT)}, {s(sT0)}, {s(sT1)}")
    if same == 1: I(f"s_mov_b32 {s(sRT)}, 0"); I(f"s_mov_b32 {s(sCT)}, 0")
    if same == 2: I(f"s_mov_b32 {s(sRT)}, 0")
    if same == 3: I(f"s_mov_b32 {s(sCT)}, 0")
    I("v_and_b32 v2, 15, v1"); I("v_lshrrev_b32 v5, 4, v1")
    I("v_lshrrev_b32 v6, 2, v1"); I("v_and_b32 v6, 3, v6")
    I("v_lshl_add_u32 v7, v5, 2, v6")
    I("v_lshrrev_b32 v8, 1, v7"); I("v_and_b32 v8, 3, v8")
    I("v_and_b32 v9, 3, v1")
    I("v_lshlrev_b32 v10, 7, v7"); I("v_lshl_add_u32 v10, v8, 5, v10"); I("v_lshl_add_u32 v10, v9, 3, v10")
    I(f"s_and_b32 {s(sT0)}, {s(sw)}, 1"); I(f"s_lshl_b32 {s(sT0)}, {s(sT0)}, 1")
    for cb in range(2):
        I(f"s_add_u32 {s(sT1)}, {s(sT0)}, {cb}"); I(f"s_lshl_b32 {s(sT1)}, {s(sT1)}, 5"); I(f"v_xor_b32 {v(VAA+cb)}, {s(sT1)}, v10")
    I(f"s_lshr_b32 {s(sT0)}, {s(sw)}, 1"); I(f"s_lshl_b32 {s(sT0)}, {s(sT0)}, 12"); I(f"s_add_u32 {s(sT0)}, {s(sT0)}, 8192")
    I(f"v_add_u32 {v(VAB)}, {s(sT0)}, {v(VL16)}")
    I("v_lshrrev_b32 v6, 3, v1"); I("v_and_b32 v7, 7, v1"); I("v_lshrrev_b32 v8, 1, v6"); I("v_lshlrev_b32 v8, 1, v8"); I("v_xor_b32 v8, v8, v7")
    if csp:
        I("v_lshrrev_b32 v9, 2, v8"); I("v_and_b32 v8, 3, v8"); I("v_lshlrev_b32 v8, 4, v8"); I(f"v_lshl_add_u32 v8, v9, {9 if csp == 1 else 8}, v8")
        I(f"v_lshl_add_u32 {v(VDW)}, v6, 10, v8")
    else:
        I("v_lshlrev_b32 v8, 4, v8"); I(f"v_lshl_add_u32 {v(VDW)}, v6, 10, v8")
    I("s_waitcnt lgkmcnt(0)")
    def srd(dst, lo, off, size):
        if off is not None:
            I(f"s_add_u32 {s(dst)}, {s(lo)}, {off}"); I(f"s_addc_u32 {s(dst+1)}, {s(lo+1)}, 0")
        I(f"s_mov_b32 {s(dst+2)}, {size}"); I(f"s_mov_b32 {s(dst+3)}, 0x20000")
    srd(SX2, SX, WS_O, 16*MB); srd(SX1, SX, WS_X1, 2*MB); srd(SX, SX, WS_H2, 2048*1792*2)
    if wp:
        assert not helper and with_b
        I(f"s_mul_i32 {s(sT0)}, {s(sCT)}, {92*8192 + wpad}"); I(f"s_add_u32 {s(sT0)}, {s(sT0)}, {WS_WP}")
        I(f"s_add_u32 {s(SW)}, {s(SX1)}, {s(sT0)}"); I(f"s_addc_u32 {s(SW+1)}, {s(SX1+1)}, 0")
        I(f"s_sub_u32 {s(SW)}, {s(SW)}, {WS_X1}"); I(f"s_subb_u32 {s(SW+1)}, {s(SW+1)}, 0")
        I(f"s_mov_b32 {s(SW+2)}, {92*8192}"); I(f"s_mov_b32 {s(SW+3)}, 0x20000")
    else:
        srd(SW, SW, None, 1792*1024); srd(SW2, SW2, None, 4096*1024)
    srd(SXIN, SXIN, None, 2*MB); srd(SOUT, SOUT, None, 2*MB)
    if wp: I(f"s_lshl_b32 {s(sWOFF)}, {s(sw)}, 11")
    else:
        I(f"s_lshl_b32 {s(sWOFF)}, {s(sw)}, 14")
        if csp == 0: I(f"s_lshl_b32 {s(sT0)}, {s(sCT)}, 7")
        elif csp == 1: I(f"s_lshl_b32 {s(sT0)}, {s(sCT)}, 6")
        else:
            I(f"s_and_b32 {s(sT0)}, {s(sCT)}, 3"); I(f"s_lshl_b32 {s(sT0)}, {s(sT0)}, 6"); I(f"s_lshr_b32 {s(sT1)}, {s(sCT)}, 2"); I(f"s_lshl_b32 {s(sT1)}, {s(sT1)}, 9"); I(f"s_add_u32 {s(sT0)}, {s(sT0)}, {s(sT1)}")
        I(f"s_add_u32 {s(sWOFF)}, {s(sWOFF)}, {s(sT0)}")
    I(f"s_mov_b32 {s(sWOFF2)}, {s(sWOFF)}")
    I(f"s_lshl_b32 {s(sT0)}, {s(sRT)}, 2"); I(f"s_add_u32 {s(sT0)}, {s(sT0)}, {s(sw)}")
    I(f"s_mul_i32 {s(sXOFF)}, {s(sT0)}, {56*1024}"); I(f"s_lshl_b32 {s(sXOFF2)}, {s(sT0)}, 17")
    I(f"s_lshl_b32 {s(sM0)}, {s(sw)}, 11")
    I(f"s_mov_b32 {s(sPF)}, 0")
    if helper:
        I(f"s_cmp_lg_u32 {s(sw)}, 4"); I(f"s_cbranch_scc1 L_{name}_main")
        I(f"s_and_b32 {s(sT0)}, {s(sRT)}, 3"); I(f"s_lshl_b32 {s(sT0)}, {s(sT0)}, 4")
        I(f"v_lshl_add_u32 v20, v5, 6, v2"); I(f"v_add_u32 v20, {s(sT0)}, v20"); I("v_lshlrev_b32 v20, 10, v20")
        I(f"s_lshl_b32 {s(sT1)}, {s(sCT)}, 7"); I(f"v_add_u32 v20, {s(sT1)}, v20")
        I("v_lshrrev_b32 v21, 3, v1"); I("v_lshlrev_b32 v21, 11, v21"); I("v_and_b32 v22, 7, v1"); I("v_lshl_add_u32 v21, v22, 7, v21")
        I(f"s_and_b32 {s(sT0)}, {s(sCT)}, 1"); I(f"s_lshl_b32 {s(sT0)}, {s(sT0)}, 10"); I(f"v_add_u32 v21, {s(sT0)}, v21")
        I("v_cmp_gt_u32 vcc, 32, v1"); I("v_mov_b32 v22, 0x7f000000"); I("s_nop 1"); I("v_cndmask_b32 v21, v22, v21, vcc")
        I(f"s_lshr_b32 {s(sT0)}, {s(sCT)}, 1"); I(f"s_lshl_b32 {s(sT1)}, {s(sRT)}, 2"); I(f"s_add_u32 {s(sT0)}, {s(sT0)}, {s(sT1)}")
        I(f"s_mul_i32 {s(sXOFF)}, {s(sT0)}, {56*1024}"); I(f"s_lshl_b32 {s(sXOFF2)}, {s(sT0)}, 17")
        I(f"s_mov_b32 {s(sWOFF)}, 0")
        nb_tot = 23 if with_b else 16
        if not with_b:
            for k in range(4): I(f"s_mov_b32 {s(SW+k)}, {s(SW2+k)}"); I(f"s_mov_b32 {s(SX+k)}, {s(SX2+k)}")
            I(f"s_mov_b32 {s(sXOFF)}, {s(sXOFF2)}")
        def pf(b):
            if with_b and b == 7:
                for k in range(4): I(f"s_mov_b32 {s(SW+k)}, {s(SW2+k)}"); I(f"s_mov_b32 {s(SX+k)}, {s(SX2+k)}")
                I(f"s_mov_b32 {s(sWOFF)}, 0"); I(f"s_mov_b32 {s(sXOFF)}, {s(sXOFF2)}")
            I(f"buffer_load_dword v24, v20, {s(SW,4)}, {s(sWOFF)} offen")
            I(f"buffer_load_dword v25, v21, {s(SX,4)}, {s(sXOFF)} offen")
            if pf64:
                I(f"buffer_load_dword v24, v20, {s(SW,4)}, {s(sWOFF)} offen offset:64")
                I(f"buffer_load_dword v25, v21, {s(SX,4)}, {s(sXOFF)} offen offset:64")
            I("s_waitcnt vmcnt(40)")
            I(f"s_add_u32 {s(sWOFF)}, {s(sWOFF)}, {4*65536}"); I(f"s_add_u32 {s(sXOFF)}, {s(sXOFF)}, {4*2048}")
        for b in range(lead): pf(b)
        for b in range(lead, nb_tot):
            for k in range(4): I("s_barrier")
            pf(b)
        I("s_waitcnt vmcnt(0)")
        I("s_endpgm")
        p.L(f"L_{name}_main")
    if not with_b:
        for k in range(4): I(f"s_mov_b32 {s(SW+k)}, {s(SW2+k)}"); I(f"s_mov_b32 {s(SX+k)}, {s(SX2+k)}")
        I(f"s_mov_b32 {s(sXOFF)}, {s(sXOFF2)}")
    nsw = [0]
    def dma_ops(slot):
        o = (slot & 3)*16384
        g = []
        if wp:
            g.append([Ins(f"s_add_u32 m0, {s(sM0)}, {o}"), Ins("s_nop 0"),
                      Ins(f"buffer_load_dwordx4 {v(VL16)}, {s(SW,4)}, {s(sWOFF)} offen lds")])
            g.append([Ins(f"buffer_load_dwordx4 {v(VL16)}, {s(SW,4)}, {s(sWOFF)} offen offset:1024 lds"),
                      Ins(f"s_add_u32 m0, {s(sM0)}, {o + 8192}"), Ins(f"s_add_u32 {s(sWOFF)}, {s(sWOFF)}, 8192")])
        else:
          g.append([Ins(f"s_add_u32 m0, {s(sM0)}, {o}"), Ins(f"s_add_u32 {s(sT0)}, {s(sWOFF)}, {8192 - 1024}"),
                  Ins(f"buffer_load_dwordx4 {v(VDW)}, {s(SW,4)}, {s(sWOFF)} offen lds")])
          g.append([Ins(f"buffer_load_dwordx4 {v(VDW)}, {s(SW,4)}, {s(sT0)} offen offset:1024 lds"),
                  Ins(f"s_add_u32 m0, {s(sM0)}, {o + 8192}"), Ins(f"s_add_u32 {s(sWOFF)}, {s(sWOFF)}, 65536")])
        g.append([Ins(f"buffer_load_dwordx4 {v(VL16)}, {s(SX,4)}, {s(sXOFF)} offen lds")])
        last = [Ins(f"buffer_load_dwordx4 {v(VL16)}, {s(SX,4)}, {s(sXOFF)} offen offset:1024 lds"), Ins(f"s_add_u32 {s(sXOFF)}, {s(sXOFF)}, 2048")]
        if with_b:
            lab = f"L_{name}_sw{nsw[0]}"; nsw[0] += 1
            last += [Ins(f"s_add_u32 {s(sPF)}, {s(sPF)}, 1"), Ins(f"s_cmp_eq_u32 {s(sPF)}, 28"), Ins(f"s_cbranch_scc0 {lab}")]
            if wp:
                for k in range(4): last += [Ins(f"s_mov_b32 {s(SX+k)}, {s(SX2+k)}")]
                last += [Ins(f"s_mov_b32 {s(sXOFF)}, {s(sXOFF2)}"), Label(lab)]
            else:
                for k in range(4): last += [Ins(f"s_mov_b32 {s(SW+k)}, {s(SW2+k)}"), Ins(f"s_mov_b32 {s(SX+k)}, {s(SX2+k)}")]
                last += [Ins(f"s_mov_b32 {s(sWOFF)}, {s(sWOFF2)}"), Ins(f"s_mov_b32 {s(sXOFF)}, {s(sXOFF2)}"), Label(lab)]
        g.append(last)
        if now: g = [[i for i in x if not (isinstance(i, Ins) and i.op.startswith('buffer') and f"{v(VDW)}," in i.text)] for x in g]
        if nox: g = [[i for i in x if not (isinstance(i, Ins) and i.op.startswith('buffer') and f"{v(VL16)}," in i.text)] for x in g]
        return g
    def read_ops(k, toggled):
        o = k*16384; buf = k & 1; r = []
        for e2 in range(2):
            for cb in range(2):
                for t in range(2):
                    r.append(Ins(f"ds_read_b64_tr_b16 {v(VA + buf*16 + (e2*2+cb)*4 + 2*t, 2)}, {v(VAA+cb)} offset:{o + e2*4096 + t*2048}"))
            for rb2 in range(2):
                r.append(Ins(f"ds_read_b128 {v(VB + buf*16 + (e2*2+rb2)*4, 4)}, {v(VAB)} offset:{o + rb2*2048 + e2*1024}"))
        return r if not nods else []
    mid_stamp(I, 0)
    for c in range(D):
        if c == 4 or c == 8: I(f"s_xor_b32 {s(sM0)}, {s(sM0)}, 0x10000")
        for g in dma_ops(c): p.extend(g)
    nper = 4 - 2*now - 2*nox
    I(f"s_waitcnt vmcnt({nper*(D-1)})"); I("s_barrier")
    p.extend(read_ops(0, False))
    def body(acc):
        for k in range(4):
            I(f"s_waitcnt vmcnt({nper*(D-2)}) lgkmcnt(0)")
            if not nobar: I("s_barrier")
            pslot = (k + D) & 7
            pre = []
            if (pslot & 3) == 0: pre = [Ins(f"s_xor_b32 {s(sM0)}, {s(sM0)}, 0x10000")]
            dg = dma_ops(pslot); dg[0] = pre + dg[0]
            if k == 3:
                tog = [Ins(f"v_xor_b32 {v(r)}, 0x10000, {v(r)}") for r in (VAA, VAA+1, VAB)]
            else: tog = []
            rd = read_ops((k + 1) & 3, k == 3)
            p.extend(tog)
            buf = k & 1
            mf = []
            for e2 in range(2):
                for cb in range(2):
                    for rb2 in range(2):
                        d = v(acc + (rb2*2+cb)*4, 4)
                        mf.append(Ins(f"{MFMA} {d}, {v(VA + buf*16 + (e2*2+cb)*4, 4)}, {v(VB + buf*16 + (e2*2+rb2)*4, 4)}, {d}"))
            if nomfma: mf = [Ins("s_nop 0") for _ in mf]
            ri = 0
            for m in range(8):
                p.add(mf[m])
                nr = 2 if m % 2 == 0 else 1
                for _ in range(nr):
                    if ri < len(rd): p.add(rd[ri]); ri += 1
                if m % 2 == 1: p.extend(dg[m >> 1])
            assert ri == len(rd)
    for r in range(ACCB, ACCS + 16): I(f"v_mov_b32 {v(r)}, 0")
    trace_parts = []
    pre_end = len(p.items)
    if with_b:
        I(f"s_mov_b32 {s(sCNT)}, 7")
        p.L(f"L_{name}_loopB"); b0 = len(p.items)
        body(ACCB); b1 = len(p.items)
        I(f"s_sub_u32 {s(sCNT)}, {s(sCNT)}, 1"); I(f"s_cmp_lg_u32 {s(sCNT)}, 0"); I(f"s_cbranch_scc1 L_{name}_loopB")
    mid_stamp(I, 1)
    I(f"s_mov_b32 {s(sCNT)}, 16")
    p.L(f"L_{name}_loopS"); c0 = len(p.items)
    body(ACCS); c1 = len(p.items)
    I(f"s_sub_u32 {s(sCNT)}, {s(sCNT)}, 1"); I(f"s_cmp_lg_u32 {s(sCNT)}, 0"); I(f"s_cbranch_scc1 L_{name}_loopS")
    I("s_waitcnt vmcnt(0) lgkmcnt(0)")
    mid_stamp(I, 2)
    I(f"s_lshr_b32 {s(sT0)}, {s(sw)}, 1"); I(f"s_lshl_b32 {s(sT0)}, {s(sT0)}, 1"); I(f"s_lshl_b32 {s(sT1)}, {s(sRT)}, 2"); I(f"s_add_u32 {s(sT0)}, {s(sT0)}, {s(sT1)}")
    if csp == 0:
        I(f"s_and_b32 {s(sT1)}, {s(sw)}, 1"); I(f"s_lshl_b32 s44, {s(sCT)}, 1"); I(f"s_add_u32 {s(sT1)}, {s(sT1)}, s44")
    elif csp == 1:
        I(f"s_and_b32 {s(sT1)}, {s(sw)}, 1"); I(f"s_lshl_b32 {s(sT1)}, {s(sT1)}, 3"); I(f"s_add_u32 {s(sT1)}, {s(sT1)}, {s(sCT)}")
    else:
        I(f"s_and_b32 {s(sT1)}, {s(sw)}, 1"); I(f"s_lshl_b32 {s(sT1)}, {s(sT1)}, 2"); I(f"s_and_b32 s44, {s(sCT)}, 3"); I(f"s_add_u32 {s(sT1)}, {s(sT1)}, s44")
        I(f"s_lshr_b32 s44, {s(sCT)}, 2"); I("s_lshl_b32 s44, s44, 3"); I(f"s_add_u32 {s(sT1)}, {s(sT1)}, s44")
    I(f"s_lshl_b32 s45, {s(sT0)}, 14"); I(f"s_lshl_b32 s46, {s(sT1)}, 10"); I("s_add_u32 s45, s45, s46")
    I(f"buffer_load_dwordx4 v[32:35], {v(VL16)}, {s(SX1,4)}, s45 offen")
    I("s_add_u32 s45, s45, 16384")
    I(f"buffer_load_dwordx4 v[36:39], {v(VL16)}, {s(SX1,4)}, s45 offen")
    I("v_lshlrev_b32 v40, 10, v2"); I("v_lshl_add_u32 v40, v5, 3, v40")
    I(f"s_lshl_b32 s45, {s(sT0)}, 14"); I(f"s_lshl_b32 s46, {s(sT1)}, 6"); I("s_add_u32 s45, s45, s46"); I("s_add_u32 s46, s45, 16384")
    for rb2 in range(2):
        for cb in range(2):
            I(f"buffer_load_dwordx2 {v(44+(rb2*2+cb)*2,2)}, v40, {s(SXIN,4)}, {'s45' if rb2 == 0 else 's46'} offen offset:{cb*32}")
    I(f"s_mov_b32 s47, 0x{f2u(-math.log2(math.e)):x}")
    I("s_waitcnt vmcnt(0)")
    for rb2 in range(2):
        for cb in range(2):
            for r in range(4):
                j = cb*4 + r
                x1src = 32 + rb2*4 + (j >> 1)
                b = ACCB + (rb2*2+cb)*4 + r; sv = ACCS + (rb2*2+cb)*4 + r
                t0, t1 = 56 + 2*r, 57 + 2*r
                I(f"v_lshlrev_b32 {v(t0)}, 16, {v(x1src)}") if (j & 1) == 0 else I(f"v_and_b32 {v(t0)}, 0xffff0000, {v(x1src)}")
                I(f"v_add_f32 {v(b)}, {v(b)}, {v(t0)}")
                I(f"v_mul_f32 {v(t0)}, s47, {v(b)}")
                I(f"v_exp_f32 {v(t0)}, {v(t0)}")
                xs = 44 + (rb2*2+cb)*2 + (r >> 1)
                I(f"v_lshlrev_b32 {v(t1)}, 16, {v(xs)}") if (r & 1) == 0 else I(f"v_and_b32 {v(t1)}, 0xffff0000, {v(xs)}")
                I(f"v_add_f32 {v(t0)}, 1.0, {v(t0)}")
                I(f"v_rcp_f32 {v(t0)}, {v(t0)}")
                I(f"v_mul_f32 {v(sv)}, {v(sv)}, {v(b)}")
                I(f"v_fma_f32 {v(sv)}, {v(sv)}, {v(t0)}, {v(t1)}")
            x = ACCS + (rb2*2+cb)*4
            I(f"v_cvt_pk_bf16_f32 {v(64+(rb2*2+cb)*2)}, {v(x)}, {v(x+1)}"); I(f"v_cvt_pk_bf16_f32 {v(65+(rb2*2+cb)*2)}, {v(x+2)}, {v(x+3)}")
            I(f"buffer_store_dwordx2 {v(64+(rb2*2+cb)*2,2)}, v40, {s(SOUT,4)}, {'s45' if rb2 == 0 else 's46'} offen offset:{cb*32}")
    p.L(end); I("s_endpgm")
    items, n = fix_hazards(p.items, name=name); p.items = items
    ins = [i for i in p.items if isinstance(i, Ins)]
    errs = check_hazards(ins + [], name)
    return p.text(), kernel_desc(name, 128, 64, 128), errs

if __name__ == "__main__":
    t, d, e = gen_final(); print(len(t.splitlines()), e[:10])
```

```python
import re
from asmgen import *
from layout import *
import k_attn16 as KA
from k_attn16 import *
from k_gemm import gelu_ops, f2u, GC0, GC1, interleave

LDS_S0 = 131072
LDS_BYTES_A = 163840
S_X, S_WS = S_XN, S_O
S_W1, S_W2, S_H, S_DBG = 44, 48, 52, 56
S_PAR, S_CT, S_R01 = 41, 42, 43
S_R23, S_X01, S_X23, S_T2, S_T3, S_M0S, S_SPIN, S_C0, S_C1 = 60, 61, 62, 63, 64, 65, 66, 67, 68
S_WT = 88
V_ONES = 10
V_XR = 2
V_CSQ = 218
V_NMU, V_RS = 230, 234
V_POLL, V_POLLA = 226, 227
V_POLL2, V_POLLA2 = 138, 139
V_D3 = 128
V_A3K = 130
A_J2ACC, A_J2R = 192, 208
A_ST23 = 176
NRQ, LAGQ = 12, 6
def xreg(X, e):
    if e < 8: return a((e*4 + X)*4, 4)
    if e < 12: return a(192 + ((e-8)*4 + X)*4, 4)
    return v(144 + ((e-12)*4 + X)*4, 4)
def hreg(s_, e): return a((e*2 + s_)*4, 4)
J_ACC = lambda s_, nb: 16 + (s_*2 + nb)*4
J_CS = lambda nb: 32 + nb*4
J_SUM = lambda s_: 40 + 4*s_
J_GR = lambda s_: 48 + 4*s_
def ctr_off(kind): return 32*kind

def gelu8(q, x, t, nmu, cs, P0, P1, IR):
    q.I(f"v_fma_f32 {v(x)}, {v(nmu)}, {v(cs)}, {v(x)}")
    q.I(f"v_mul_f32 {v(t)}, {v(x)}, {v(x)}")
    q.I(f"v_fma_f32 {v(t)}, {v(t)}, {v(P1)}, {v(P0)}")
    q.I(f"v_mul_f32 {v(t)}, {v(t)}, {v(x)}")
    q.I(f"v_exp_f32 {v(t)}, {v(t)}")
    q.I(f"v_fma_f32 {v(t)}, {v(t)}, {v(IR)}, {v(IR)}")
    q.I(f"v_rcp_f32 {v(t)}, {v(t)}")
    q.I(f"v_mul_f32 {v(x)}, {v(x)}, {v(t)}")
def gelu_consts(I, r, P0, P1, IR):
    I(f"v_mul_f32 {v(P1)}, {v(r)}, {v(r)}"); I(f"v_rcp_f32 {v(IR)}, {v(r)}")
    I(f"v_mul_f32 {v(P1)}, {v(P1)}, {v(r)}"); I(f"v_mul_f32 {v(P0)}, 0x{f2u(GC0):x}, {v(r)}"); I(f"v_mul_f32 {v(P1)}, 0x{f2u(GC1):x}, {v(P1)}")

class AGen(AttnGen):
    def __init__(self, opts=None):
        opts = dict(opts or {}); opts.setdefault('lsum', 0)
        super().__init__(stamps=False, opts=opts)
        for k_, v_ in dict(j3=1, j3v=2, xmap=1, hrate=1.5, nx0=4, chk=4, mz=1, pfq=1, pfx=0, pf3=0, cpf=1, opad=1024, pfw=0, wp=1, wpad=1024, nopoll=0, ph=(1, 48, 64), st=('j1', 'qp', 'j2', 'ft', 'loop', 'epi')).items(): self.o.setdefault(k_, v_)
        self.vmq = []; self.vm_out = 0; self.lgq = []; self.tail = False
    def ms(self, name):
        if name in self.o['st']: mid_stamp(self.I, self.o['st'].index(name))
    def vm(self, tag, n=1): self.vmq += [tag]*n
    def wait_for(self, tag):
        idx = max(i for i, e in enumerate(self.vmq) if e == tag)
        return len(self.vmq) - 1 - idx
    def waitvm(self, tag):
        n = self.wait_for(tag)
        if n < self.vm_out: self.I(f"s_waitcnt vmcnt({n})")
    def emit(self, ins):
        if ins.kind == 'vmem':
            if self.vm_out >= 62: self.p.add(Ins("s_waitcnt vmcnt(54)")); self.vm_out = 54
            self.vm_out += 1
        if ins.op == 's_waitcnt':
            m = re.search(r'vmcnt\((\d+)\)', ins.text)
            if m: self.vm_out = min(self.vm_out, int(m.group(1)))
        self.p.add(ins); return ins

    def prologue_setup(self):
        I = self.I
        I("s_cmp_ge_u32 s2, 256")
        I("s_cbranch_scc1 L_a_end")
        I(f"s_load_dwordx2 {s(S_X,2)}, s[0:1], {ARG_X}")
        I(f"s_load_dwordx2 {s(S_W1,2)}, s[0:1], {ARG_W1}")
        I(f"s_load_dwordx2 {s(S_WQ,2)}, s[0:1], {ARG_WQ}")
        I(f"s_load_dwordx2 {s(S_K,2)}, s[0:1], {ARG_K}")
        I(f"s_load_dwordx2 {s(S_V,2)}, s[0:1], {ARG_V}")
        I(f"s_load_dwordx2 {s(S_W2,2)}, s[0:1], {ARG_W2}")
        I(f"s_load_dwordx2 {s(S_WS,2)}, s[0:1], {ARG_WS}")
        I(f"s_load_dwordx2 {s(S_DBG,2)}, s[0:1], {ARG_DBG}")
        I(f"v_lshrrev_b32 v1, 6, v0")
        I(f"s_and_b32 {s(S_T0)}, s2, 7")
        I(f"v_readfirstlane_b32 {s(S_W)}, v1")
        I(f"s_lshr_b32 {s(S_T1)}, s2, 3")
        I(f"s_and_b32 {s(S_HEAD)}, {s(S_T1)}, 3")
        I(f"s_lshl_b32 {s(S_T0)}, {s(S_T0)}, 2")
        I(f"s_add_u32 {s(S_HEAD)}, {s(S_HEAD)}, {s(S_T0)}")
        I(f"s_lshr_b32 {s(S_QB)}, s2, 5")
        if self.o['xmap']:
            I(f"s_bfe_u32 {s(S_PAR)}, {s(S_HEAD)}, 0x10002"); I(f"s_lshr_b32 {s(S_CT)}, {s(S_HEAD)}, 3"); I(f"s_lshl_b32 {s(S_CT)}, {s(S_CT)}, 2")
            I(f"s_and_b32 {s(S_T0)}, {s(S_HEAD)}, 3"); I(f"s_or_b32 {s(S_CT)}, {s(S_CT)}, {s(S_T0)}")
        else:
            I(f"s_and_b32 {s(S_PAR)}, {s(S_HEAD)}, 1"); I(f"s_lshr_b32 {s(S_CT)}, {s(S_HEAD)}, 1")
        I(f"s_lshl_b32 {s(S_T0)}, {s(S_QB)}, 4"); I(f"s_lshl_b32 {s(S_T1)}, {s(S_W)}, 2"); I(f"s_add_u32 {s(S_T0)}, {s(S_T0)}, {s(S_T1)}")
        I(f"s_lshl_b32 {s(S_T1)}, {s(S_PAR)}, 1"); I(f"s_add_u32 {s(S_R01)}, {s(S_T0)}, {s(S_T1)}")
        I(f"s_add_u32 {s(S_R23)}, {s(S_T0)}, 2"); I(f"s_sub_u32 {s(S_R23)}, {s(S_R23)}, {s(S_T1)}")
        I(f"s_lshl_b32 {s(S_X01)}, {s(S_R01)}, 14"); I(f"s_lshl_b32 {s(S_X23)}, {s(S_R23)}, 14")
        I("v_and_b32 v1, 63, v0")
        I(f"v_lshlrev_b32 {v(V_L16)}, 4, v1")
        I("v_and_b32 v2, 15, v1"); I("v_lshrrev_b32 v5, 4, v1")
        I("v_lshrrev_b32 v8, 3, v1"); I("v_and_b32 v9, 7, v1"); I("v_xor_b32 v9, v9, v8"); I("v_lshlrev_b32 v9, 4, v9"); I("v_lshl_add_u32 v3, v8, 10, v9")
        I("v_lshrrev_b32 v8, 2, v1"); I("v_lshlrev_b32 v8, 10, v8"); I("v_and_b32 v9, 3, v1")
        I("v_lshrrev_b32 v4, 5, v1"); I("v_lshlrev_b32 v4, 1, v4"); I("v_xor_b32 v4, v4, v9"); I("v_lshl_add_u32 v6, v4, 4, v8")
        I("v_bfe_u32 v4, v1, 4, 1"); I("v_lshlrev_b32 v4, 1, v4"); I("v_xor_b32 v4, v4, v9"); I(f"v_lshl_add_u32 {v(15)}, v4, 4, v8")
        I("s_waitcnt lgkmcnt(0)")
        def fin(S_, size):
            I(f"s_mov_b32 {s(S_+2)}, {size}"); I(f"s_mov_b32 {s(S_+3)}, 0x20000")
        fin(S_X, "0x200000")
        I(f"s_lshl_b32 {s(S_T0)}, {s(S_HEAD)}, 8")
        I(f"s_add_u32 {s(S_WQ)}, {s(S_WQ)}, {s(S_T0)}"); I(f"s_addc_u32 {s(S_WQ+1)}, {s(S_WQ+1)}, 0")
        I(f"s_sub_u32 {s(S_WQ+2)}, 0x400000, {s(S_T0)}"); I(f"s_mov_b32 {s(S_WQ+3)}, 0x20000")
        I(f"s_lshl_b32 {s(S_T0)}, {s(S_CT)}, 6")
        for S_ in (S_W1, S_W2):
            I(f"s_add_u32 {s(S_)}, {s(S_)}, {s(S_T0)}"); I(f"s_addc_u32 {s(S_+1)}, {s(S_+1)}, 0")
            I(f"s_sub_u32 {s(S_+2)}, 0x80000, {s(S_T0)}"); I(f"s_mov_b32 {s(S_+3)}, 0x20000")
        I(f"s_lshl_b32 {s(S_M0S)}, {s(S_W)}, 13"); I(f"s_add_u32 {s(S_M0S)}, {s(S_M0S)}, {LDS_S0}")
        self.slice_dma(S_W1, 6, 'w1', 'S0')
        I(f"s_lshl_b32 {s(S_T0)}, {s(S_W)}, 12")
        I(f"s_mov_b32 {s(S_M0K)}, {s(S_T0)}")
        I(f"s_add_u32 {s(S_M0V)}, {s(S_T0)}, {LDS_V}")
        for k in range(self.o['nx0']): self.x_dma(0, k)
        if self.o['pfq']:
            I("v_bfe_u32 v4, v1, 1, 4"); I("v_lshlrev_b32 v4, 13, v4"); I("v_and_b32 v7, 1, v1"); I("v_lshl_add_u32 v4, v7, 7, v4")
            I(f"s_lshl_b32 {s(S_T0)}, {s(S_QB)}, 2"); I(f"s_add_u32 {s(S_T0)}, {s(S_T0)}, {s(S_W)}"); I(f"s_lshl_b32 {s(S_T0)}, {s(S_T0)}, 17")
            I(f"buffer_load_dword {v(V_POLL)}, v4, {s(S_WQ,4)}, {s(S_T0)} offen"); self.vm('pf')
        if self.o['pfx']:
            I("v_lshrrev_b32 v4, 3, v1"); I("v_lshlrev_b32 v4, 10, v4"); I("v_and_b32 v7, 7, v1"); I("v_lshl_add_u32 v4, v7, 7, v4")
            I(f"s_and_b32 {s(S_T0)}, {s(S_HEAD)}, 3"); I(f"s_lshl_b32 {s(S_T0)}, {s(S_T0)}, 13"); I(f"s_add_u32 {s(S_T0)}, {s(S_T0)}, {s(S_X23)}")
            I(f"buffer_load_dword {v(225)}, v4, {s(S_X,4)}, {s(S_T0)} offen"); self.vm('pf')
        if self.o['cpf']: self.code_prefetch("a_kernel", "L_final_kernel_end", "L_pc1", 4, 224, 6)
        I("v_and_b32 v1, 63, v0")
        I("v_xor_b32 v4, v5, v2"); I("v_lshlrev_b32 v4, 4, v4"); I("v_lshl_add_u32 v4, v2, 8, v4")
        I(f"s_lshl_b32 {s(S_T2)}, {s(S_W)}, 6"); I(f"v_xor_b32 v4, {s(S_T2)}, v4")
        for s_ in range(4): I(f"v_xor_b32 {v(V_AK+s_)}, {s_ << 6}, v4")
        I("v_lshrrev_b32 v8, 2, v1"); I("v_and_b32 v8, 3, v8")
        I("v_lshl_add_u32 v7, v5, 2, v8")
        I("v_and_b32 v9, 3, v1")
        I("v_and_b32 v4, 7, v7")
        I("v_lshlrev_b32 v10, 8, v7")
        I("v_lshl_add_u32 v11, v4, 5, v10"); I("v_lshl_add_u32 v11, v9, 3, v11")
        I(f"v_add_u32 v11, {LDS_V}, v11")
        for db in range(8): I(f"v_xor_b32 {v(V_AV+db)}, {db << 5}, v11")
        I("v_lshl_add_u32 v10, v5, 3, v8")
        I("v_lshlrev_b32 v12, 1, v4"); I("v_xor_b32 v12, v12, v9"); I("v_lshlrev_b32 v12, 4, v12"); I("v_lshl_add_u32 v12, v10, 8, v12")
        I(f"v_xor_b32 v12, {s(S_T2)}, v12")
        for e in range(4):
            I(f"v_xor_b32 {v(V_AW+e)}, {e << 6}, v12")
            I(f"v_add_u32 {v(V_AWV+e)}, {LDS_V}, {v(V_AW+e)}")
        I("v_and_b32 v12, 1, v5"); I("v_lshlrev_b32 v12, 5, v12"); I("v_lshl_add_u32 v12, v9, 3, v12"); I(f"v_add_u32 v12, {LDS_S0}, v12")
        I(f"v_lshl_add_u32 {v(222)}, v10, 6, v12"); I(f"v_xor_b32 {v(223)}, 32, {v(222)}")
        I(f"v_lshl_add_u32 {v(228)}, v7, 6, v12")
        for jj in range(4):
            I(f"v_add_u32 v8, {4*jj}, v5"); I("v_xor_b32 v8, v8, v2"); I("v_lshlrev_b32 v8, 4, v8")
            I(f"v_lshl_add_u32 {v(V_DK+jj)}, v5, 8, v8")
        for pj in range(2):
            I(f"v_add_u32 v8, {4*pj}, v5"); I("v_lshlrev_b32 v8, 1, v8"); I("v_xor_b32 v8, v8, v2"); I("v_lshlrev_b32 v8, 4, v8")
            I(f"v_lshl_add_u32 {v(V_DV+pj)}, v5, 8, v8")
            I(f"v_lshl_add_u32 {v(V_DW+pj)}, v5, 13, v8")
        I(f"s_lshl_b32 {s(S_T0)}, {s(S_HEAD)}, 19")
        for S_ in (S_K, S_V):
            I(f"s_add_u32 {s(S_)}, {s(S_)}, {s(S_T0)}"); I(f"s_addc_u32 {s(S_+1)}, {s(S_+1)}, 0")
            fin(S_, "0x80000")
        I(f"s_add_u32 {s(S_H)}, {s(S_WS)}, {WS_H}"); I(f"s_addc_u32 {s(S_H+1)}, {s(S_WS+1)}, 0"); fin(S_H, "0x200000")
        fin(S_WS, hex(44*MB)); fin(S_DBG, "0x100")
        I(f"s_lshl_b32 {s(S_T0)}, {s(S_W)}, 12")
        I(f"s_mov_b32 {s(S_KOFF)}, {s(S_T0)}")
        I(f"s_mov_b32 {s(S_VOFF)}, {s(S_T0)}")
        I(f"s_lshl_b32 {s(S_WOFF)}, {s(S_W)}, 17")
        I(f"s_mov_b32 {s(S_THR)}, {'0x41500000' if KA.LSUM else '0x46000000'}")
        I(f"v_mov_b32 {v(V_THR)}, {s(S_THR)}")
        I(f"s_mov_b32 {s(S_SCALE)}, 0x3e0293ee")
        I("v_min_u32 v4, 2, v1"); I(f"v_add_u32 v4, {s(S_QB)}, v4"); I("v_max_u32 v4, 1, v4"); I("v_min_u32 v4, 8, v4"); I("v_subrev_u32 v4, 1, v4")
        I("v_and_b32 v8, 3, v4"); I("v_lshlrev_b32 v8, 6, v8"); I("v_lshrrev_b32 v4, 2, v4"); I(f"v_lshl_add_u32 {v(V_POLLA)}, v4, 2, v8")
        I(f"s_and_b32 {s(S_C0)}, {s(S_QB)}, 3"); I(f"s_lshl_b32 {s(S_C0)}, {s(S_C0)}, 6"); I(f"s_lshr_b32 {s(S_C1)}, {s(S_QB)}, 2"); I(f"s_lshl_b32 {s(S_C1)}, {s(S_C1)}, 2")
        I(f"s_add_u32 {s(S_C0)}, {s(S_C0)}, {s(S_C1)}")
        for k in range(4): I(f"v_mov_b32 {v(V_ONES+k)}, 0x3f803f80")
        I("v_and_b32 v8, 7, v2"); I("v_xor_b32 v8, v8, v5"); I("v_lshlrev_b32 v8, 4, v8"); I("v_lshl_add_u32 v8, v2, 7, v8")
        I(f"v_add_u32 v4, {s(S_M0K)}, v8"); I("v_xor_b32 v5, 64, v4"); I(f"v_add_u32 v6, {LDS_V}, v4"); I(f"v_add_u32 v7, {LDS_V}, v5")

    def x_dma_op(self, half, k, i):
        I = self.I
        reg, slot = self.WSLOT[k]
        s_, j = i >> 1, i & 1
        imm = s_*2048 + j*1024
        I(f"s_add_u32 m0, {s(S_M0K if reg == 'K' else S_M0V)}, {slot*SLOT}")
        I(f"s_add_u32 {s(S_T0)}, {s(S_X01 if half == 0 else S_X23)}, {s_*16384 + j*8192 + k*128 - imm}")
        I(f"buffer_load_dwordx4 v3, {s(S_X,4)}, {s(S_T0)} offen offset:{imm} lds", lds_w=(reg, slot, 'x')); self.vm(('x', half, k))
    def x_dma(self, half, k):
        for i in range(4): self.x_dma_op(half, k, i)
    def x_read(self, half, k):
        reg, slot = self.WSLOT[k]
        for e2 in range(2):
            for s_ in range(2):
                ar = (4 if reg == 'K' else 6) + e2
                self.I(f"ds_read_b128 {xreg(2*half + s_, 2*k + e2)}, {v(ar)} offset:{slot*SLOT + s_*2048}", lds_r=(reg, slot, 'xr')); self.lg(('xr', half, k))
    def x23_stage(self, k0, k1):
        for k in range(k0, k1):
            self.waitvm(('x', 1, k)); self.x_read(1, k)
            if k > k0: self.waitlg(('xr', 1, k-1)); self.wq_dma(k-1)
        self.waitlg(('xr', 1, k1-1)); self.wq_dma(k1-1)
    def lg(self, tag): self.lgq.append(tag)
    def waitlg(self, tag):
        idx = max(i for i, e in enumerate(self.lgq) if e == tag)
        self.I(f"s_waitcnt lgkmcnt({min(15, len(self.lgq) - 1 - idx)})")

    def code_prefetch(self, lo, hi, lab, vt, dst, nper):
        I = self.I
        I(f"s_getpc_b64 {s(S_WT,2)}")
        self.p.L(lab)
        I(f"s_add_u32 {s(S_WT)}, {s(S_WT)}, {lo} - {lab}") ; I(f"s_addc_u32 {s(S_WT+1)}, {s(S_WT+1)}, {'0' if True else ''}") if not lo.startswith('a_kernel') else None
        if lo.startswith('a_kernel'):
            self.p.items.pop()
            I(f"s_sub_u32 {s(S_WT)}, {s(S_WT)}, {lab} - {lo}"); I(f"s_subb_u32 {s(S_WT+1)}, {s(S_WT+1)}, 0")
        I(f"s_lshr_b32 {s(S_T0)}, s2, 3"); I(f"s_lshl_b32 {s(S_T0)}, {s(S_T0)}, 2"); I(f"s_add_u32 {s(S_T0)}, {s(S_T0)}, {s(S_W)}"); I(f"s_mul_i32 {s(S_T0)}, {s(S_T0)}, {nper}")
        I(f"v_lshrrev_b32 {v(vt)}, 4, {v(V_L16)}"); I(f"v_min_u32 {v(vt)}, {nper - 1}, {v(vt)}"); I(f"v_add_u32 {v(vt)}, {s(S_T0)}, {v(vt)}")
        I(f"v_min_u32 {v(vt)}, (({hi} - {lo}) >> 7) - 1, {v(vt)}"); I(f"v_lshlrev_b32 {v(vt)}, 7, {v(vt)}")
        I(f"global_load_dword {v(dst)}, {v(vt)}, {s(S_WT,2)}"); self.vm('cpf')

    def slice_dma_op(self, srd, vo, tag, region, i):
        I = self.I
        h, jj = i >> 2, i & 3
        I(f"s_add_u32 m0, {s(S_M0S)}, {h*4096}")
        I(f"s_lshl_b32 {s(S_T0)}, {s(S_W)}, 17")
        I(f"s_add_u32 {s(S_T0)}, {s(S_T0)}, {(4*h + jj)*16384 - jj*1024}")
        I(f"buffer_load_dwordx4 {v(vo)}, {s(srd,4)}, {s(S_T0)} offen offset:{jj*1024} lds", lds_w=region); self.vm(tag)
    def slice_dma(self, srd, vo, tag, region):
        for i in range(8): self.slice_dma_op(srd, vo, tag, region, i)
    def kv_op(self, which, tile, jj):
        base = S_M0K if which == 'K' else S_M0V
        self.I(f"s_add_u32 m0, {s(base)}, {(tile & 3)*SLOT}")
        self.I("s_nop 0")
        self.emit_dma(which, tile, jj); self.vm(('kv', (which, tile)))
        if jj == 3:
            off = S_KOFF if which == 'K' else S_VOFF
            self.I(f"s_add_u32 {s(off)}, {s(off)}, {SLOT}")

    def wq_dma(self, c):
        reg, slot = self.WSLOT[c]
        base = S_M0K if reg == 'K' else S_M0V
        self.I(f"s_add_u32 m0, {s(base)}, {slot*SLOT}")
        for jj in range(4):
            self.I(f"s_add_u32 {s(S_T0)}, {s(S_WOFF)}, {(64*c + 4*jj)*8192 - jj*1024}")
            self.I(f"buffer_load_dwordx4 {v(V_DW+(jj>>1))}, {s(S_WQ,4)}, {s(S_T0)} offen offset:{jj*1024} lds", lds_w=(reg, slot)); self.vm(('w', c))
    def wread(self, rho):
        phi, t = rho >> 1, rho & 1
        c, e2, nb = phi >> 4, (phi >> 3) & 1, phi & 7
        ep, b = nb >> 1, nb & 1
        reg, slot = self.WSLOT[c]
        ar = (V_AW if reg == 'K' else V_AWV) + ep
        return Ins(f"ds_read_b64_tr_b16 {a(A_WF + 4*(phi % NRQ) + 2*t, 2)}, {v(ar)} offset:{slot*SLOT + e2*8192 + t*1024 + 8*b}", lds_r=(reg, slot))

    def row_stats(self, s_, sum_txt, gr_regs, t=8, t2=9):
        I = self.I
        I(f"v_mov_b32 {v(t)}, 0")
        for r in range(4):
            I(f"s_mov_b32 vcc_lo, 0x{((1 | (1 << 20)) << r):x}"); I(f"s_mov_b32 vcc_hi, 0x{(((1 << 8) | (1 << 28)) << r) & 0xffffffff:x}")
            I(f"v_cndmask_b32 {v(t)}, {v(t)}, {v(gr_regs[r])}, vcc")
        for sw in ('16', '32'):
            I(f"v_mov_b32 {v(t2)}, {v(t)}"); I("s_nop 1"); I(f"v_permlane{sw}_swap_b32 {v(t)}, {v(t2)}"); I("s_nop 0"); I(f"v_add_f32 {v(t)}, {v(t)}, {v(t2)}")
        nm, rs = V_NMU + s_, V_RS + s_
        I(f"v_mul_f32 {v(nm)}, 0xbb000000, {sum_txt}")
        I(f"v_mul_f32 {v(t)}, 0x3b000000, {v(t)}")
        I(f"v_fma_f32 {v(t)}, -{v(nm)}, {v(nm)}, {v(t)}")
        I(f"v_max_f32 {v(t)}, 0, {v(t)}")
        I(f"v_add_f32 {v(t2)}, 0x3727c5ac, {v(t)}")
        I(f"v_rsq_f32 {v(rs)}, {v(t2)}")
        return t

    def j1(self):
        I = self.I
        NF = 32; LA = 4
        AJ = 222
        def rd(phi):
            e, nb = phi >> 1, phi & 1
            for t in range(2):
                self.emit(Ins(f"ds_read_b64_tr_b16 {a(A_WF + 4*(phi % 8) + 2*t, 2)}, {v(AJ+nb)} offset:{e*2048 + t*256}", lds_r='S0')); self.lg(('w1', phi))
        self.ms('s0')
        NX0 = self.o['nx0']
        ops = [(0, k) for k in range(NX0, 8)] + [(1, k) for k in range(8)]
        slot_ops = [[[] for _ in range(4)] for _ in range(8)]
        oi = 0
        for k in range(8):
            n_here = 1 if k + NX0 <= 7 else 2
            for j in range(n_here):
                if oi >= len(ops): break
                half, kk = ops[oi]
                if half == 1 and kk > k: break
                for i in range(4):
                    slot_ops[k][(i + j*4)//n_here if n_here == 2 else i].append(lambda half=half, kk=kk, i=i: self.x_dma_op(half, kk, i))
                oi += 1
        rest = ops[oi:]
        self.waitvm(('x', 0, 0)); self.x_read(0, 0)
        self.ms('x0')
        I("s_barrier")
        for phi in range(LA): rd(phi)
        nread = LA
        for e in range(16):
            k = e >> 1
            if e % 2 == 0:
                if k < 7: self.waitvm(('x', 0, k+1)); self.x_read(0, k+1)
                self.waitlg(('xr', 0, k))
            first = (e == 0)
            def M(d, A, B): I(f"{MFMA} {v(d,4)}, {A}, {B}, {'0' if first else v(d,4)}")
            for s_ in range(2):
                M(J_SUM(s_), v(V_ONES, 4), xreg(s_, e)); M(J_GR(s_), xreg(s_, e), xreg(s_, e))
            for nb in range(2):
                phi = 2*e + nb
                self.waitlg(('w1', phi))
                A = a(A_WF + 4*(phi % 8), 4)
                for s_ in range(2): M(J_ACC(s_, nb), A, xreg(s_, e))
                for f_ in slot_ops[k][2*(e & 1) + nb]: f_()
                M(J_CS(nb), A, v(V_ONES, 4))
                if nread < NF: rd(nread); nread += 1
        for (half, kk) in rest: self.x_dma(half, kk)
        self.ms('j1m')
        self.x23_stage(0, 2)
        self.ms('j1x')
        I("s_nop 7")
        for s_ in range(2):
            t = self.row_stats(s_, v(J_SUM(s_)), [J_GR(s_)+r for r in range(4)])
            I(f"v_mul_f32 {v(t)}, {v(t)}, {v(V_RS+s_)}"); I(f"v_mul_f32 {v(t)}, {v(t)}, {v(V_RS+s_)}")
            I(f"v_add_f32 {v(t)}, 0x3727c5ac, {v(t)}"); I(f"v_rsq_f32 {v(t)}, {v(t)}")
            I("s_nop 0")
            I(f"v_mul_f32 {v(60+s_)}, {v(t)}, {v(V_RS+s_)}")
            gelu_consts(I, 60+s_, 88+3*s_, 89+3*s_, 90+3*s_)
        seqs = []
        for s_ in range(2):
            for nb in range(2):
                for r in range(4):
                    q = Prog(); gelu8(q, J_ACC(s_, nb) + r, 64 + (s_*2+nb)*4 + r, V_NMU+s_, J_CS(nb)+r, 88+3*s_, 89+3*s_, 90+3*s_); seqs.append(q.items)
        self.p.extend(interleave(seqs))
        I(f"s_lshl_b32 {s(S_T0)}, {s(S_CT)}, 10"); I(f"s_add_u32 {s(S_T0)}, {s(S_T0)}, {s(S_X01)}")
        for s_ in range(2):
            for jj in range(4):
                x0 = J_ACC(s_, jj >> 1) + 2*(jj & 1)
                I(f"v_cvt_pk_bf16_f32 {v(80+s_*4+jj)}, {v(x0)}, {v(x0+1)}")
            I(f"buffer_store_dwordx4 {v(80+s_*4,4)}, {v(V_L16)}, {s(S_H,4)}, {s(S_T0)} offen offset:0 sc1" if s_ == 0 else
              f"buffer_store_dwordx4 {v(80+s_*4,4)}, {v(V_L16)}, {s(S_H,4)}, {s(S_T1)} offen offset:0 sc1"); self.vm('hst')
            if s_ == 0: I(f"s_add_u32 {s(S_T1)}, {s(S_T0)}, 16384")
        self.ms('j1s')
        self.x23_stage(2, 8)

    def signal(self, kind, lab):
        I = self.I
        I(f"s_cmp_lg_u32 {s(S_W)}, 0"); I(f"s_cbranch_scc1 {lab}")
        I("s_mov_b64 exec, 1")
        I("v_mov_b32 v8, 1"); I("v_mov_b32 v9, 0")
        I(f"buffer_atomic_add v8, v9, {s(S_DBG,4)}, {s(S_C0)} offen offset:{ctr_off(kind)} sc1")
        I("s_mov_b64 exec, -1")
        self.p.L(lab)
    def poll_issue(self, dst, addr, kind):
        self.I(f"buffer_load_dword {v(dst)}, {v(addr)}, {s(S_DBG,4)}, 0 offen offset:{ctr_off(kind)} sc1")
    def poll_check(self, dst, addr, kind, lab):
        I = self.I
        I(f"v_cmp_gt_u32 vcc, 32, {v(dst)}"); I("s_nop 0")
        I(f"s_cbranch_vccz {lab}_ok")
        save = self.vm_out
        I(f"s_mov_b32 {s(S_SPIN)}, 20000")
        self.p.L(f"{lab}_spin")
        I(f"buffer_load_dword {v(dst)}, {v(addr)}, {s(S_DBG,4)}, 0 offen offset:{ctr_off(kind)} sc1").nowarn = True
        I("s_waitcnt vmcnt(0)")
        I(f"v_cmp_gt_u32 vcc, 32, {v(dst)}"); I("s_nop 0")
        I(f"s_cbranch_vccz {lab}_ok")
        I(f"s_sub_u32 {s(S_SPIN)}, {s(S_SPIN)}, 1"); I(f"s_cmp_lg_u32 {s(S_SPIN)}, 0"); I(f"s_cbranch_scc1 {lab}_spin")
        self.p.L(f"{lab}_ok")
        self.vm_out = save

    def h_ops(self):
        I = self.I
        ops = []
        def setup():
            I(f"v_lshrrev_b32 v0, 4, {v(V_L16)}"); I("v_and_b32 v1, 15, v0"); I("v_and_b32 v8, 48, v0")
        def addr(cg, s_):
            dl = (1, -1, 2, -2)[cg]; dst = 2 + 2*(cg & 1) + s_
            I(f"s_add_u32 {s(S_T2)}, {s(S_R01)}, {s_}"); I(f"s_lshl_b32 {s(S_T2)}, {s(S_T2)}, 4")
            I(f"v_add_u32 v6, {s(S_T2)}, v1")
            I(f"v_subrev_u32 v6, {dl}, v6") if dl > 0 else I(f"v_add_u32 v6, {-dl}, v6")
            I(f"v_ashrrev_i32 v7, 4, v6"); I(f"v_lshlrev_b32 v7, 14, v7")
            I(f"v_and_b32 v6, 15, v6"); I(f"v_add_u32 v6, v6, v8"); I(f"v_lshl_add_u32 {v(dst)}, v6, 4, v7")
        def mk(e, s_):
            def f():
                cg = e >> 2
                if e == 0 and s_ == 0: setup()
                if (e & 3) == 0: addr(cg, s_)
                I(f"s_mov_b32 {s(S_T3)}, {cg*4096}")
                I(f"buffer_load_dwordx4 {hreg(s_, e)}, {v(2 + 2*(cg & 1) + s_)}, {s(S_H,4)}, {s(S_T3)} offen offset:{(e&3)*1024} sc1"); self.vm(('h', e))
            return f
        for e in range(16):
            for s_ in range(2): ops.append(mk(e, s_))
        def mkx(s_, nb):
            def f():
                if s_ == 0 and nb == 0:
                    I("v_lshlrev_b32 v6, 10, v1"); I("v_lshrrev_b32 v7, 1, v8"); I("v_add_u32 v0, v6, v7")
                I(f"s_lshl_b32 {s(S_T2)}, {s(S_CT)}, 6"); I(f"s_add_u32 {s(S_T2)}, {s(S_T2)}, {s(S_X01)}")
                if s_ == 1: I(f"s_add_u32 {s(S_T2)}, {s(S_T2)}, 16384")
                I(f"buffer_load_dwordx2 {v(V_XR + (s_*2+nb)*2, 2)}, v0, {s(S_X,4)}, {s(S_T2)} offen offset:{nb*32}"); self.vm('xr')
            return f
        for s_ in range(2):
            for nb in range(2): ops.append(mkx(s_, nb))
        return ops

    def qproj(self):
        I = self.I; p = self.p
        after_chunk = {0: ('K', 0), 1: ('K', 1), 2: ('V', 0), 3: ('K', 2), 4: ('V', 1), 5: ('V', 2)}
        PH_SIG, PH_POLL, PH_H = self.o['ph']
        PH_CHK = self.o['chk']; assert PH_H > 16*PH_CHK - 6 and PH_POLL < 16*PH_CHK - 6
        qa = []
        for i in range(8): qa.append((1 + i, (lambda i=i: self.slice_dma_op(S_W2, 15, 'w2', 'S0', i))))
        for c_, (w_, t_) in after_chunk.items():
            for jj in range(4): qa.append((16*(c_+1) + 10 + jj, (lambda w_=w_, t_=t_, jj=jj: self.kv_op(w_, t_, jj))))
        hops = self.h_ops()
        RATE = self.o['hrate']
        qb_ = [(PH_H + int(i*RATE), f) for i, f in enumerate(hops)]
        for i, (ph_, f) in enumerate(qb_):
            if i < 32: assert ph_ >= (32 if i < 16 else 64), (i, ph_)
        assert qb_[-1][0] <= 127
        self.waitvm(('w', 0)); I("s_barrier")
        for rho in range(2*LAGQ): self.emit(self.wread(rho))
        nread = 2*LAGQ
        for phi in range(128):
            c, e2, nb = phi >> 4, (phi >> 3) & 1, phi & 7
            e = 2*c + e2
            I(f"s_waitcnt lgkmcnt({nread - 2*(phi+1)})")
            A = a(A_WF + 4*(phi % NRQ), 4)
            for X in range(4):
                d = v(V_QACC + (X*8+nb)*4, 4)
                I(f"{MFMA} {d}, {A}, {xreg(X, e)}, {'0' if e == 0 else d}")
                if X in (0, 2) and nread < 256:
                    if nread % 32 == 0:
                        cn = nread >> 5
                        if cn == PH_SIG: self.waitvm('hst')
                        if cn == PH_CHK and not self.o['nopoll']:
                            self.waitvm('poll')
                            I(f"s_cmp_lg_u32 {s(S_W)}, 0"); I("s_cbranch_scc1 L_p1_ok")
                            self.poll_check(V_POLL, V_POLLA, 0, "L_p1")
                            self.ms('pc')
                        self.waitvm(('w', cn))
                        I("s_barrier")
                        if cn == PH_SIG: self.signal(0, "L_sig1")
                    self.emit(self.wread(nread)); nread += 1
                if X == 1 and qa and qa[0][0] <= phi: qa.pop(0)[1]()
                if X == 3 and qb_ and qb_[0][0] <= phi: qb_.pop(0)[1]()
            if nb < 2:
                d = v(V_CSQ + nb*4, 4)
                I(f"{MFMA} {d}, {A}, {v(V_ONES,4)}, {'0' if e == 0 else d}")
            elif nb < 6:
                k = nb - 2; s_ = k & 1
                d = a(A_ST23 + 4*k, 4)
                Aop = v(V_ONES, 4) if k < 2 else xreg(2+s_, e)
                I(f"{MFMA} {d}, {Aop}, {xreg(2+s_, e)}, {'0' if e == 0 else d}")
            self.ms(f'q{phi}')
            if phi == PH_POLL and not self.o['nopoll']:
                self.poll_issue(V_POLL, V_POLLA, 0); self.vm('poll')
        assert not qa and not qb_, (qa, qb_)
        self.ms('qp')

    def j2(self):
        I = self.I
        I(f"v_xor_b32 {v(229-1+0)}, 0, {v(228)}") if False else None
        I(f"v_xor_b32 v1, 32, {v(228)}")
        NF = 32; LA = 6; NR = 12
        def rd(phi):
            e, nb = phi >> 1, phi & 1
            for t in range(2):
                self.emit(Ins(f"ds_read_b64_tr_b16 {a(A_J2R + 4*(phi % NR) + 2*t, 2)}, {v(228) if nb == 0 else 'v1'} offset:{e*2048 + t*1024}", lds_r='S0'))
        self.waitvm('w2'); I("s_barrier")
        I(f"s_lshl_b32 {s(S_T0)}, {s(S_W)}, 11"); I(f"s_add_u32 {s(S_T0)}, {s(S_T0)}, {3*SLOT}")
        I(f"v_add_u32 v0, {s(S_T0)}, {v(V_L16)}")
        for b in range(2): I(f"ds_write_b128 v0, {v(V_CSQ+4*b,4)} offset:{b*1024}", lds_w=('K', 3))
        for phi in range(LA): rd(phi)
        nread = LA
        for e in range(16):
            if e % 2 == 0: self.waitvm(('h', e + 1))
            for nb in range(2):
                phi = 2*e + nb
                I(f"s_waitcnt lgkmcnt({min(15, 2*(nread - phi - 1))})")
                A = a(A_J2R + 4*(phi % NR), 4)
                for s_ in range(2):
                    d = a(A_J2ACC + (s_*2+nb)*4, 4)
                    I(f"{MFMA} {d}, {A}, {hreg(s_, e)}, {'0' if e == 0 else d}")
                if nread < NF: rd(nread); nread += 1
        for s_ in range(2):
            for r in range(4): I(f"v_accvgpr_read_b32 {v(208+r)}, {a(A_ST23 + 8 + 4*s_ + r)}")
            I(f"v_accvgpr_read_b32 {v(212)}, {a(A_ST23 + 4*s_)}")
            self.row_stats(2+s_, v(212), [208+r for r in range(4)], 213, 214)
        self.waitvm('xr')
        I(f"s_lshl_b32 {s(S_T0)}, {s(S_CT)}, 10"); I(f"s_add_u32 {s(S_T0)}, {s(S_T0)}, {s(S_X01)}"); I(f"s_add_u32 {s(S_T0)}, {s(S_T0)}, {WS_X1}")
        I(f"s_lshl_b32 {s(S_T1)}, {s(S_CT)}, 14"); I(f"s_lshl_b32 {s(S_T2)}, {s(S_R01)}, 7"); I(f"s_add_u32 {s(S_T1)}, {s(S_T1)}, {s(S_T2)}"); I(f"s_add_u32 {s(S_T1)}, {s(S_T1)}, {WS_STAT}")
        for s_ in range(2):
            acc, pk = 208, 216
            for j in range(8): I(f"v_accvgpr_read_b32 {v(acc+j)}, {a(A_J2ACC + s_*8 + j)}")
            if s_ == 0: I("s_waitcnt lgkmcnt(0)")
            for j in range(8):
                src = V_XR + s_*4 + (j >> 1)
                I(f"v_lshlrev_b32 v0, 16, {v(src)}") if (j & 1) == 0 else I(f"v_and_b32 v0, 0xffff0000, {v(src)}")
                I(f"v_add_f32 v0, v0, {v(V_NMU+s_)}")
                I(f"v_fma_f32 {v(acc+j)}, v0, {v(V_RS+s_)}, {v(acc+j)}")
            for jj in range(4): I(f"v_cvt_pk_bf16_f32 {v(pk+4*s_+jj)}, {v(acc+2*jj)}, {v(acc+2*jj+1)}")
            I(f"buffer_store_dwordx4 {v(pk+4*s_,4)}, {v(V_L16)}, {s(S_WS,4)}, {s(S_T0)} offen sc1"); self.vm('x1st')
            if s_ == 0: I(f"s_add_u32 {s(S_T0)}, {s(S_T0)}, 16384")
            sm, sq = 208 + 0, 209
            for jj in range(4):
                I(f"v_lshlrev_b32 v0, 16, {v(pk+4*s_+jj)}"); I(f"v_and_b32 v1, 0xffff0000, {v(pk+4*s_+jj)}")
                if jj == 0:
                    I(f"v_add_f32 {v(sm)}, v0, v1"); I(f"v_mul_f32 {v(sq)}, v0, v0")
                else:
                    I(f"v_add_f32 {v(sm)}, {v(sm)}, v0"); I(f"v_add_f32 {v(sm)}, {v(sm)}, v1"); I(f"v_fmac_f32 {v(sq)}, v0, v0")
                I(f"v_fmac_f32 {v(sq)}, v1, v1")
            for r_ in (sm, sq):
                for sw_ in ('16', '32'):
                    I(f"v_mov_b32 v0, {v(r_)}"); I("s_nop 1"); I(f"v_permlane{sw_}_swap_b32 {v(r_)}, v0"); I("s_nop 0"); I(f"v_add_f32 {v(r_)}, {v(r_)}, v0")
            I(f"v_lshrrev_b32 v0, 1, {v(V_L16)}")
            I("s_mov_b64 exec, 0xffff")
            I(f"buffer_store_dwordx2 {v(sm,2)}, v0, {s(S_WS,4)}, {s(S_T1)} offen offset:{s_*128} sc1"); self.vm('x1st')
            I("s_mov_b64 exec, -1")

    def wp_piece(self, i, store):
        I = self.I
        I(f"s_lshl_b32 {s(S_T2)}, s2, 2"); I(f"s_add_u32 {s(S_T2)}, {s(S_T2)}, {s(S_W)}"); I(f"s_mul_i32 {s(S_T2)}, {s(S_T2)}, 6")
        I(f"s_add_u32 {s(S_T2)}, {s(S_T2)}, {i}"); I(f"s_min_u32 {s(S_T2)}, {s(S_T2)}, 5887")
        I(f"s_and_b32 {s(S_T3)}, {s(S_T2)}, 7")
        if not store:
            I(f"s_andn2_b32 {s(S_T0)}, {s(S_T2)}, 7")
            I(f"s_cmp_lt_u32 {s(S_T0)}, 1792")
            I(f"s_cselect_b32 {s(S_WT)}, {s(S_W2)}, {s(S_H)}"); I(f"s_cselect_b32 {s(S_WT+1)}, {s(S_W2+1)}, {s(S_H+1)}")
            I(f"s_cselect_b32 {s(S_WT+2)}, {s(S_W2+2)}, {s(S_H+2)}"); I(f"s_cselect_b32 {s(S_T1)}, 0, 1792")
            I(f"s_mov_b32 {s(S_WT+3)}, 0x20000")
            I(f"s_sub_u32 {s(S_T0)}, {s(S_T0)}, {s(S_T1)}"); I(f"s_lshl_b32 {s(S_T0)}, {s(S_T0)}, 10")
            I(f"s_lshl_b32 {s(S_T3)}, {s(S_T3)}, 7"); I(f"s_add_u32 {s(S_T0)}, {s(S_T0)}, {s(S_T3)}")
            I(f"buffer_load_dwordx4 {a(4*i, 4)}, v9, {s(S_WT,4)}, {s(S_T0)} offen"); self.vm('wpl')
        else:
            I(f"s_mul_i32 {s(S_T3)}, {s(S_T3)}, {92*8192 + self.o['wpad']}"); I(f"s_lshr_b32 {s(S_T2)}, {s(S_T2)}, 3")
            I(f"s_lshl_b32 {s(S_T2)}, {s(S_T2)}, 10"); I(f"s_add_u32 {s(S_T2)}, {s(S_T2)}, {s(S_T3)}"); I(f"s_add_u32 {s(S_T2)}, {s(S_T2)}, {WS_WP}")
            I(f"buffer_store_dwordx4 {a(4*i, 4)}, {v(V_L16)}, {s(S_WS,4)}, {s(S_T2)} offen"); self.vm('wps')
    def wp_setup(self):
        I = self.I
        I(f"v_lshrrev_b32 v6, 7, {v(V_L16)}"); I(f"v_bfe_u32 v7, {v(V_L16)}, 4, 3"); I("v_lshrrev_b32 v8, 1, v6"); I("v_lshlrev_b32 v8, 1, v8"); I("v_xor_b32 v8, v8, v7")
        I("v_lshlrev_b32 v8, 4, v8"); I("v_lshl_add_u32 v9, v6, 10, v8")
        I(f"s_mov_b32 {s(S_W2+2)}, {1792*1024}"); I(f"s_mov_b32 {s(S_H+2)}, {4096*1024}")

    def q_convert_and_first_tile(self, sched):
        I = self.I
        vmq = self.vmq
        idx = max(max(i for i, e in enumerate(vmq) if e == ('kv', kk)) for kk in (('K', 0), ('K', 1), ('V', 0)))
        I(f"s_waitcnt vmcnt({len(vmq) - 1 - idx}) lgkmcnt(0)")
        I("s_barrier")
        for f in range(8): self.emit(kread(0, f))
        for X in range(4): I(f"v_mul_f32 {v(V_RS+X)}, {s(S_SCALE)}, {v(V_RS+X)}")
        CS = 208
        for h in range(2):
            for k in range(2):
                ep = 2*h + k
                I(f"s_xor_b32 {s(S_T0)}, {s(S_W)}, {ep}"); I(f"s_lshl_b32 {s(S_T0)}, {s(S_T0)}, 11"); I(f"s_add_u32 {s(S_T0)}, {s(S_T0)}, {3*SLOT}")
                I(f"v_add_u32 v{k}, {s(S_T0)}, {v(V_L16)}")
                for b in range(2): I(f"ds_read_b128 {v(CS + (k*2+b)*4, 4)}, v{k} offset:{b*1024}", lds_r=('K', 3))
            I("s_waitcnt lgkmcnt(0)")
            for X in range(4):
                pr = lambda base: v(base + (X & ~1), 2)
                hi = X & 1
                for k in range(2):
                    ep = 2*h + k
                    for b in range(2):
                        base = V_QACC + (X*8 + 2*ep + b)*4
                        for r in range(0, 4, 2):
                            I(f"v_pk_fma_f32 {v(base+r,2)}, {v(CS+(k*2+b)*4+r,2)}, {pr(V_NMU)}, {v(base+r,2)} op_sel:[0,{hi},0] op_sel_hi:[1,{hi},1]")
                        for r in range(0, 4, 2):
                            I(f"v_pk_mul_f32 {v(base+r,2)}, {v(base+r,2)}, {pr(V_RS)} op_sel:[0,{hi}] op_sel_hi:[1,{hi}]")
                        for jj in range(2):
                            I(f"v_cvt_pk_bf16_f32 {v(Qreg(X, ep) + 2*b + jj)}, {v(base+2*jj)}, {v(base+2*jj+1)}")
        I("s_waitcnt lgkmcnt(0)")
        zi = 0
        for z in range(4): I(f"v_mov_b32 v{z}, 0")
        for g in range(32):
            X, kb2, s_ = g >> 3, (g >> 2) & 1, g & 3
            d = v(Sreg(0, X, kb2), 4)
            I(f"{MFMA} {d}, {a(A_KF + (kb2*4+s_)*4, 4)}, {v(Qreg(X, s_), 4)}, {'0' if s_ == 0 else d}")
            if not self.o['mz']:
                for z in range(4):
                    I(f"v_accvgpr_write_b32 {a(A_O + zi)}, 0"); zi += 1
            elif g % 4 == 3:
                I(f"v_mfma_f32_32x32x16_bf16 {a(A_O + 16*(g >> 2), 16)}, v[0:3], v[0:3], 0")
        if KA.LSUM: I(f"v_mfma_f32_32x32x16_bf16 {a(KA.A_L, 16)}, v[0:3], v[0:3], 0")
        for f in range(8): self.emit(kread(1, f))
        if not KA.LSUM:
            for X in range(4): I(f"v_mov_b32 {v(V_L+X)}, 0")
        I("s_nop 3")
        for X in range(4):
            mx, t2 = V_TMP, V_TMP+1
            S0 = Sreg(0, X)
            I(f"v_max3_f32 {v(mx)}, {v(S0)}, {v(S0+1)}, {v(S0+2)}")
            I(f"v_max3_f32 {v(mx)}, {v(mx)}, {v(S0+3)}, {v(S0+4)}")
            I(f"v_max3_f32 {v(mx)}, {v(mx)}, {v(S0+5)}, {v(S0+6)}")
            I(f"v_max_f32 {v(mx)}, {v(mx)}, {v(S0+7)}")
            for sw in ('16', '32'):
                I(f"v_mov_b32 {v(t2)}, {v(mx)}")
                I("s_nop 1")
                I(f"v_permlane{sw}_swap_b32 {v(mx)}, {v(t2)}")
                I("s_nop 0")
                I(f"v_max_f32 {v(mx)}, {v(mx)}, {v(t2)}")
            for r in range(8): I(f"v_sub_f32 {v(S0+r)}, {v(S0+r)}, {v(mx)}")
            for r in range(4): I(f"v_sub_f32 {v(V_NEGM+X*4+r)}, 0, {v(mx)}")
        for g in range(self.G0, NG):
            self.gap_valu(-NG + g, sched)
        I("s_waitcnt vmcnt(0) lgkmcnt(0)")
        I("s_barrier")
        self.signal(1, "L_sig2")
        I("v_and_b32 v1, 63, v0") if False else None

    W3SLOT = [('K', 0), ('V', 0), ('K', 1), ('V', 1), ('K', 2), ('V', 2), ('K', 3), ('V', 3)]
    def w3_dma_one(self, c, jj):
        reg, slot = self.W3SLOT[c]
        self.I(f"s_add_u32 {s(S_T0)}, {s(S_WOFF)}, {(64*c + 4*jj)*3584 - jj*1024}")
        self.I(f"buffer_load_dwordx4 {v(V_D3+(jj&1))}, {s(S_W1,4)}, {s(S_T0)} offen offset:{jj*1024} lds", lds_w=(reg, slot))
    def emit_dma(self, which, tile, jj):
        if tile >= 32:
            c = 2*(tile - 32) + (0 if which == 'K' else 1)
            self.w3_dma_one(c, jj); self.vm(('w3', c)); return
        super().emit_dma(which, tile, jj)
        if self.tail: self.vm(('t', tile))
    def j3_setup(self):
        I = self.I
        I(f"s_load_dwordx2 {s(S_W1,2)}, s[0:1], {ARG_W3}")
        if self.o['wp']: I(f"s_load_dwordx2 {s(S_W2,2)}, s[0:1], {ARG_W4}"); I(f"s_load_dwordx2 {s(S_H,2)}, s[0:1], {ARG_WO}")
        I(f"v_lshrrev_b32 v1, 4, {v(V_L16)}"); I("v_and_b32 v2, 15, v1"); I("v_lshrrev_b32 v5, 4, v1")
        I("v_mul_u32_u24 v9, 3584, v5")
        for pj in range(2):
            I(f"v_add_u32 v8, {4*pj}, v5"); I("v_lshlrev_b32 v8, 1, v8"); I("v_xor_b32 v8, v8, v2"); I("v_min_u32 v8, 13, v8"); I("v_lshlrev_b32 v8, 4, v8")
            I(f"v_add_u32 {v(V_D3+pj)}, v9, v8")
        I(f"v_mov_b32 {v(V_POLLA2)}, {s(S_C0)}")
        I("s_waitcnt lgkmcnt(0)")
        I(f"s_mul_i32 {s(S_T0)}, {s(S_CT)}, 224")
        I(f"s_add_u32 {s(S_W1)}, {s(S_W1)}, {s(S_T0)}"); I(f"s_addc_u32 {s(S_W1+1)}, {s(S_W1+1)}, 0")
        I(f"s_sub_u32 {s(S_W1+2)}, {512*3584}, {s(S_T0)}"); I(f"s_mov_b32 {s(S_W1+3)}, 0x20000")
        I(f"s_mul_i32 {s(S_WOFF)}, {s(S_W)}, {16*3584}")
        self.poll_issue(V_POLL2, V_POLLA2, 1); self.vm('poll2')
        if self.o['pf3']:
            I("v_lshrrev_b32 v2, 2, v1"); I("v_mul_u32_u24 v2, 3584, v2"); I("v_and_b32 v5, 3, v1"); I("v_min_u32 v5, 1, v5"); I("v_lshl_add_u32 v2, v5, 7, v2")
            I(f"s_lshl_b32 {s(S_T0)}, {s(S_QB)}, 2"); I(f"s_add_u32 {s(S_T0)}, {s(S_T0)}, {s(S_W)}"); I(f"s_mul_i32 {s(S_T0)}, {s(S_T0)}, {16*3584}")
            I(f"buffer_load_dword v140, v2, {s(S_W1,4)}, {s(S_T0)} offen"); self.vm('pf3')
            I(f"buffer_load_dword v141, v2, {s(S_W1,4)}, {s(S_T0)} offen offset:92"); self.vm('pf3')
        if self.o['cpf']: self.code_prefetch("L_j3", "L_final_kernel_end", "L_pc2", 2, 142, 2)
        if self.o['wp']: self.wp_setup()
        if self.o['pfw']:
            I(f"s_load_dwordx2 {s(S_W2,2)}, s[0:1], {ARG_WO}"); I(f"s_load_dwordx2 {s(S_H,2)}, s[0:1], {ARG_W4}")
            I(f"s_lshl_b32 {s(S_T0)}, s2, 2"); I(f"s_add_u32 {s(S_T0)}, {s(S_T0)}, {s(S_W)}")
            I("v_and_b32 v2, 31, v1"); I("v_lshlrev_b32 v2, 7, v2"); I("v_min_u32 v5, 13, v1"); I("v_lshlrev_b32 v5, 7, v5")
            I("s_waitcnt lgkmcnt(0)")
            I(f"s_mov_b32 {s(S_W2+2)}, {4096*1024}"); I(f"s_mov_b32 {s(S_W2+3)}, 0x20000"); I(f"s_mov_b32 {s(S_H+2)}, {1792*1024}"); I(f"s_mov_b32 {s(S_H+3)}, 0x20000")
            I(f"s_lshl_b32 {s(S_T1)}, {s(S_T0)}, 12"); I(f"s_mul_i32 {s(S_T0)}, {s(S_T0)}, {14*128}")
            I(f"buffer_load_dword v140, v2, {s(S_W2,4)}, {s(S_T1)} offen"); self.vm('pfw')
            I(f"buffer_load_dword v141, v5, {s(S_H,4)}, {s(S_T0)} offen"); self.vm('pfw')

    @staticmethod
    def x1reg(s_, e):
        if not KA.LSUM: return a(192 + (e*2 + s_)*4, 4) if e < 8 else v(16 + ((e-8)*2 + s_)*4, 4)
        return a(208 + (e*2 + s_)*4, 4) if e < 6 else v(16 + ((e-6)*2 + s_)*4, 4)
    def x1_op(self, s_, e):
        I = self.I
        I(f"s_add_u32 {s(S_T3)}, {s(S_X01)}, {WS_X1 + s_*16384 + (e & ~3)*1024}")
        I(f"buffer_load_dwordx4 {self.x1reg(s_, e)}, {v(V_L16)}, {s(S_WS,4)}, {s(S_T3)} offen offset:{(e&3)*1024} sc1"); self.vm(('x1', e))
    def st_op(self, k, s_):
        I = self.I
        if k == 0 and s_ == 0:
            I(f"v_lshrrev_b32 v1, 4, {v(V_L16)}"); I("v_and_b32 v2, 15, v1"); I("v_lshrrev_b32 v5, 4, v1")
            I("v_lshlrev_b32 v2, 3, v2"); I("v_lshl_add_u32 v2, v5, 16, v2")
        I(f"s_lshl_b32 {s(S_T2)}, {s(S_R01)}, 7"); I(f"s_add_u32 {s(S_T2)}, {s(S_T2)}, {WS_STAT + k*16384}")
        I(f"buffer_load_dwordx2 {v(208 + (s_*4+k)*2, 2)}, v2, {s(S_WS,4)}, {s(S_T2)} offen offset:{s_*128} sc1"); self.vm('st')

    def o_epilogue_items(self):
        q = []
        A = lambda t: q.append(Ins(t))
        for X in range(4):
            l, t2 = V_L + X, V_TMP + X
            if KA.LSUM: A(f"v_accvgpr_read_b32 {v(l)}, {a(KA.A_L + 4*X)}")
            else:
                for sw in ('16', '32'):
                    A(f"v_mov_b32 {v(t2)}, {v(l)}"); A("s_nop 1"); A(f"v_permlane{sw}_swap_b32 {v(l)}, {v(t2)}"); A("s_nop 0"); A(f"v_add_f32 {v(l)}, {v(l)}, {v(t2)}")
        for X in range(4): A(f"v_rcp_f32 {v(V_L + X)}, {v(V_L + X)}")
        stage = 96 if KA.LSUM else 80; n = 0; NS = 2 if KA.LSUM else 4
        for X in range(4):
            OST = 131072 + self.o['opad']
            A(f"s_lshl_b32 {s(S_OOFF)}, {s(S_HEAD)}, 12"); A(f"s_add_u32 {s(S_OOFF)}, {s(S_OOFF)}, {WS_O + (X & 1)*OST}")
            A(f"s_mul_i32 {s(S_C1)}, {s(S_R01 if X < 2 else S_R23)}, {OST}"); A(f"s_add_u32 {s(S_OOFF)}, {s(S_OOFF)}, {s(S_C1)}")
            for e in range(4):
                f = stage + (n % NS)*12; n += 1
                for j in range(8): A(f"v_accvgpr_read_b32 {v(f+j)}, {a(Oreg(X, 2*e + (j >> 2)) + (j & 3))}")
                for j in range(8): A(f"v_mul_f32 {v(f+j)}, {v(f+j)}, {v(V_L+X)}")
                for jj in range(4): A(f"v_cvt_pk_bf16_f32 {v(f+8+jj)}, {v(f+2*jj)}, {v(f+2*jj+1)}")
                q.append(('vm', f"buffer_store_dwordx4 {v(f+8,4)}, {v(V_L16)}, {s(S_WS,4)}, {s(S_OOFF)} offen offset:{e*1024}", 'ost'))
        return q

    def j3(self):
        I = self.I; p = self.p
        for c in range(7): I(f"v_subrev_u32 {v(V_A3K+c)}, {LDS_V}, {v(V_AV+c)}")
        I(f"s_lshl_b32 {s(S_T0)}, {s(S_W)}, 6")
        for c in range(2):
            I(f"v_xor_b32 {v(140+c)}, {s(S_T0)}, {v(V_AV+c)}"); I(f"v_subrev_u32 {v(142+c)}, {LDS_V}, {v(140+c)}")
        for k in range(4): I(f"v_mov_b32 {v(V_ONES+k)}, 0x3f803f80")
        ACC = lambda s_, cb: 144 + (s_*7 + cb)*4
        CSA = lambda c: 200 + 4*c
        blks = []
        for e in range(16):
            c = e >> 1; reg, slot = self.W3SLOT[c]; off = slot*SLOT + (e & 1)*8192
            for cb in range(7): blks.append((e, (V_AV if reg == 'V' else V_A3K) + cb, cb, False, off, (reg, slot)))
            for cb in range(2): blks.append((e, (140 if reg == 'V' else 142) + cb, cb, True, off, (reg, slot)))
        LA, NR = 9, 16
        vops = []
        for c in (6, 7):
            for jj in range(4):
                def f(c=c, jj=jj):
                    reg, slot = self.W3SLOT[c]
                    I(f"s_add_u32 m0, {s(S_M0K if reg == 'K' else S_M0V)}, {slot*SLOT}")
                    self.w3_dma_one(c, jj); self.vm(('w3', c))
                vops.append(f)
        for e in range(6 if KA.LSUM else 8, 16):
            for s_ in range(2): vops.append(lambda s_=s_, e=e: self.x1_op(s_, e))
        for k in range(4):
            for s_ in range(2): vops.append(lambda k=k, s_=s_: self.st_op(k, s_))
        side = self.o_epilogue_items()
        side.append(('wait', 'st'))
        for s_ in range(2):
            b = 208 + s_*8
            for j in range(2):
                side += [Ins(f"v_add_f32 {v(b+j)}, {v(b+j)}, {v(b+2+j)}"), Ins(f"v_add_f32 {v(b+4+j)}, {v(b+4+j)}, {v(b+6+j)}"), Ins(f"v_add_f32 {v(b+j)}, {v(b+j)}, {v(b+4+j)}")]
                for sw_ in ('16', '32'):
                    side += [Ins(f"v_mov_b32 v0, {v(b+j)}"), Ins("s_nop 1"), Ins(f"v_permlane{sw_}_swap_b32 {v(b+j)}, v0"), Ins("s_nop 0"), Ins(f"v_add_f32 {v(b+j)}, {v(b+j)}, v0")]
            side += [Ins(f"v_mul_f32 {v(b)}, 0xbb000000, {v(b)}"), Ins(f"v_mul_f32 {v(b+1)}, 0x3b000000, {v(b+1)}"),
                     Ins(f"v_fma_f32 {v(b+1)}, -{v(b)}, {v(b)}, {v(b+1)}"), Ins(f"v_max_f32 {v(b+1)}, 0, {v(b+1)}"),
                     Ins(f"v_add_f32 {v(b+1)}, 0x3727c5ac, {v(b+1)}"), Ins(f"v_rsq_f32 {v(b+1)}, {v(b+1)}")]
            q = Prog(); q.I("s_nop 0"); gelu_consts(q.I, b+1, b+2, b+3, b+4); side += q.items
        def drain(n):
            k = 0
            while side and k < n:
                it = side.pop(0)
                if isinstance(it, Ins):
                    self.emit(it); k += 0 if it.op.startswith('s_') else 1
                elif it[0] == 'vm': I(it[1]); self.vm(it[2]); k += 1
                else: self.waitvm(it[1])
        def issue_read(n):
            e, ar, cb, iscs, off, region = blks[n]
            c = e >> 1
            if n == 0 or (blks[n-1][0] >> 1) != c:
                if c in (0, 4, 6):
                    self.waitvm(('w3', {0: 3, 4: 5, 6: 7}[c])); I("s_barrier")
            r = A_WF + (n % NR)*4
            for t in range(2): I(f"ds_read_b64_tr_b16 {a(r+2*t,2)}, {v(ar)} offset:{off + t*4096}", lds_r=region)
        for n in range(LA): issue_read(n)
        nread = LA; nm = 0; nwp = 0; nside0 = len(side)
        for n, (e, ar, cb, iscs, off, region) in enumerate(blks):
            if (n == 0 or blks[n-1][0] != e): self.ms(f'e{e}')
            if (n == 0 or blks[n-1][0] != e) and (e & 1) == 0: self.waitvm(('x1', e + 1)); self.ms(f'w{e}')
            if n % 3 == 0: I(f"s_waitcnt lgkmcnt({max(0, 2*(nread - n - 3))})")
            A = a(A_WF + (n % NR)*4, 4)
            ms_ = [(CSA(cb), v(V_ONES, 4))] if iscs else [(ACC(s_, cb), self.x1reg(s_, e)) for s_ in range(2)]
            for i_, (d, B) in enumerate(ms_):
                I(f"{MFMA} {v(d,4)}, {A}, {B}, {'0' if e == 0 else v(d,4)}"); nm += 1
                if i_ == 0 and nread < len(blks): issue_read(nread); nread += 1
                elif vops and nm % 2 == 0: vops.pop(0)()
                elif self.o['wp'] and len(side) < nside0 - 110 and not vops and nm % 4 == 2 and nwp < 6:
                    assert not any(isinstance(it, Ins) and 'accvgpr_read' in it.text and int(it.text.split(', a')[1]) < 32 for it in side)
                    self.wp_piece(nwp, False); nwp += 1
                drain(self.o['j3v'] if nm > 4 else 0)
        assert not vops
        drain(10000)
        self.ms('j3m')
        I(f"s_lshl_b32 {s(S_T0)}, {s(S_W)}, 11"); I(f"s_add_u32 {s(S_T0)}, {s(S_T0)}, {LDS_S0}")
        I(f"v_add_u32 v0, {s(S_T0)}, {v(V_L16)}"); I(f"v_add_u32 v1, {LDS_S0}, {v(V_L16)}")
        for c in range(2): I(f"ds_write_b128 v0, {v(CSA(c),4)} offset:{c*1024}", lds_w='S0')
        I("s_waitcnt lgkmcnt(0)"); I("s_barrier")
        CS = 16
        for cb in range(7): I(f"ds_read_b128 {v(CS+cb*4,4)}, v1 offset:{cb*1024}", lds_r='S0')
        if self.o['wp']:
            assert nwp == 6
            self.waitvm('wpl')
            for i in range(6): self.wp_piece(i, True)
        I(f"s_mul_i32 {s(S_OOFF)}, {s(S_R01)}, {56*1024}"); I(f"s_add_u32 {s(S_OOFF)}, {s(S_OOFF)}, {WS_H2}")
        I(f"s_mul_i32 {s(S_T3)}, {s(S_CT)}, 7")
        for k, dst in ((0, S_T0), (1, S_T1)):
            I(f"s_add_u32 {s(S_T2)}, {s(S_T3)}, {k}"); I(f"s_lshr_b32 {s(dst)}, {s(S_T2)}, 1"); I(f"s_lshl_b32 {s(dst)}, {s(dst)}, 10")
            I(f"s_and_b32 {s(S_T2)}, {s(S_T2)}, 1"); I(f"s_lshl_b32 {s(S_T2)}, {s(S_T2)}, 3"); I(f"s_add_u32 {s(dst)}, {s(dst)}, {s(S_T2)}"); I(f"s_add_u32 {s(dst)}, {s(dst)}, {s(S_OOFF)}")
        I("s_waitcnt lgkmcnt(0)")
        for s_ in range(2):
            b = 208 + s_*8
            T0 = 48 + s_*28
            for half in (range(0, 4), range(4, 7)):
                seqs = []
                for cb in half:
                    for r_ in range(4):
                        q = Prog(); gelu8(q, ACC(s_, cb) + r_, T0 + cb*4 + r_, b, CS+cb*4+r_, b+2, b+3, b+4); seqs.append(q.items)
                p.extend(interleave(seqs))
                for cb in half:
                    x = ACC(s_, cb); o = 104 + (s_*7 + cb)*2
                    I(f"v_cvt_pk_bf16_f32 {v(o)}, {v(x)}, {v(x+1)}"); I(f"v_cvt_pk_bf16_f32 {v(o+1)}, {v(x+2)}, {v(x+3)}")
                    I(f"buffer_store_dwordx2 {v(o,2)}, {v(V_L16)}, {s(S_WS,4)}, {s(S_T0 if cb % 2 == 0 else S_T1)} offen offset:{(cb >> 1)*1024}"); self.vm('h2st')
            if s_ == 0:
                I(f"s_add_u32 {s(S_T0)}, {s(S_T0)}, {56*1024}"); I(f"s_add_u32 {s(S_T1)}, {s(S_T1)}, {56*1024}")

    def gen(self, name="a_kernel"):
        p = self.p; I = self.I
        p.raw(kernel_header(name))
        sched = self.build_valu()
        n0 = len(p.items)
        self.prologue_setup()
        self.j1()
        self.ms('j1')
        self.qproj()
        self.j2()
        self.ms('j2')
        self.q_convert_and_first_tile(sched)
        self.ms('ft')
        pro, npad = fix_hazards(p.items[n0:], name='pro')
        p.items[n0:] = pro
        self.I(f"s_mov_b32 {s(S_CNT)}, 7")
        p.raw(".p2align 6")
        p.L("L_attn_loop")
        loop_start = len(p.items)
        replay_at_entry = list(self.replay)
        for T in range(4):
            self.step(2*T, sched, dma_k=T+3)
            self.step(2*T+1, sched, dma_v=T+3, barrier=True, vmw=8)
        self.I(f"s_sub_u32 {s(S_CNT)}, {s(S_CNT)}, 1")
        self.I(f"s_cmp_lg_u32 {s(S_CNT)}, 0")
        self.I("s_cbranch_scc1 L_attn_loop")
        loop_end = len(p.items)
        ent = [(n, k, ins.text) for (n, k, ins, kind) in replay_at_entry]
        ext = [(n - 8, k, ins.text) for (n, k, ins, kind) in self.replay]
        assert ent == ext
        self.replay = [(n - 8 + 56, k, ins, kind) for (n, k, ins, kind) in self.replay]
        tail_start = len(p.items)
        self.vmq = [('t', 30)]*8; self.vm_out = 8; self.tail = True
        self.j3_setup()
        xo = [(s_, e) for e in range(6 if KA.LSUM else 8) for s_ in range(2)]
        for i_, (s_, e) in enumerate(xo):
            self.extra.setdefault((58 + i_ // 4, 34 + 4*(i_ % 4)), []).append(lambda s_=s_, e=e: self.x1_op(s_, e))
        def chk2():
            self.waitvm('poll2')
            I(f"s_cmp_lg_u32 {s(S_W)}, 0"); I("s_cbranch_scc1 L_p2_ok")
            self.poll_check(V_POLL2, V_POLLA2, 1, "L_p2")
        self.extra.setdefault((57, 62), []).append(chk2)
        for T in range(28, 32):
            dk = T + 3
            lastT = (T == 31)
            need = {28: ('cpf' if self.o['cpf'] else 'pfw' if self.o['pfw'] else 'pf3' if self.o['pf3'] else 'poll2'), 29: ('t', 31), 30: ('w3', 1), 31: None}[T]
            self.step(2*T, sched, dma_k=dk)
            self.step(2*T+1, sched, dma_v=dk, barrier=not lastT, vmw=(lambda need=need: min(self.wait_for(need), self.vm_out)), last=lastT)
        self.ms('loop')
        I("s_waitcnt lgkmcnt(0)")
        p.L("L_j3")
        self.j3()
        tail, npad2 = fix_hazards(p.items[tail_start:], name='tail', verbose=True)
        p.items[tail_start:] = tail
        p.L("L_a_end")
        self.I("s_endpgm")
        for (tr, lab, back) in self.tramps:
            p.L(tr); self.I(f"s_call_b64 {s(S_RET,2)}, {lab}"); self.I(f"s_branch {back}")
        for key, (lab, items) in self.rare.items(): p.extend(items)
        ins = lambda seq: [i for i in seq if isinstance(i, Ins) and not i.nowarn]
        body = ins(p.items[loop_start:loop_end])
        def strip_spin(seq):
            out = []; skip = False
            for i in seq:
                if isinstance(i, Label) and i.name.endswith('_spin'): skip = True; continue
                if isinstance(i, Label) and i.name.endswith('_ok'): skip = False; continue
                if isinstance(i, Ins) and not skip: out.append(i)
            return out
        trace = strip_spin(p.items[n0:loop_start]) + body + body + strip_spin(p.items[loop_end:loop_end + len(tail) + 2])
        e1 = check_hazards(trace, name); e2 = check_waitcnt(trace, name)
        self.stats = dict(pro=len(ins(pro)), loop=len(body), tail=len(ins(tail)), npad=npad, npad2=npad2, rare=len(self.rare))
        return p.text(), kernel_desc(name, 512, 96, 256), e1 + e2

if __name__ == "__main__":
    g = AGen(); t, d, errs = g.gen()
    print(g.stats)
    for e in errs[:40]: print(e)
    print(len(errs), "errors")
```

```python
from asmgen import *
from layout import *

V_S    = 16
V_NEGM = 80
V_P    = 96
V_QACC = 16
V_Q    = 144
V_T    = 208
V_TS   = 216
V_L    = 224
V_U    = 228
V_THR  = 229
V_TMP  = 230
V_AK   = 238
V_AV   = 242
V_DK   = 250
V_DV   = 254
V_L16  = 14
V_AW   = 208
V_AWV  = 212
V_DW   = 216
A_O    = 0
A_XF   = 0
A_KF   = 128
A_VF   = 160
A_WF   = 128
S_K, S_V, S_WQ, S_XN, S_O = 4, 8, 12, 16, 20
S_W, S_HEAD, S_QB, S_CNT, S_KOFF, S_VOFF, S_RET, S_THR = 24, 25, 26, 27, 28, 29, 30, 32
S_M0K, S_M0V, S_T0, S_T1, S_XOFF, S_WOFF, S_OOFF, S_SCALE = 33, 34, 35, 36, 37, 38, 39, 40
LDS_K, LDS_V, SLOT = 0, 65536, 16384
LDS_BYTES = 131072
MFMA = "v_mfma_f32_16x16x32_bf16"
NG = 64
CVT_DELAY = 3
LSUM = 0
A_L = 192
V_ONE = 10
LGAPS = (35, 43, 51, 59)

def Sreg(b, X, kb2=0, r=0): return V_S + b*32 + X*8 + kb2*4 + r
def Preg(b, X): return V_P + b*16 + X*4
def Oreg(X, db): return A_O + (X*8+db)*4
def Qreg(X, s_): return V_Q + (X*4+s_)*4

def mfma_qk(step, g):
    X, kb2, s_ = g >> 3, (g >> 2) & 1, g & 3
    b = step & 1
    d = v(Sreg(b, X, kb2), 4)
    c = v(V_NEGM + X*4, 4) if s_ == 0 else d
    return Ins(f"{MFMA} {d}, {a(A_KF + (kb2*4+s_)*4, 4)}, {v(Qreg(X, s_), 4)}, {c}")
def mfma_pv(step, g):
    db, X = g >> 2, g & 3
    d = a(Oreg(X, db), 4)
    return Ins(f"{MFMA} {d}, {a(A_VF + 4*db, 4)}, {v(Preg(step & 1, X), 4)}, {d}")
def kread(step, f):
    T, kb = step >> 1, step & 1
    slot = T & 3; kb2, s_ = f >> 2, f & 3
    return Ins(f"ds_read_b128 {a(A_KF + 4*f, 4)}, {v(V_AK + s_)} offset:{slot*SLOT + kb*8192 + kb2*4096}", lds_r=('K', slot))
def vread(step, idx):
    T, kb = step >> 1, step & 1
    slot = T & 3; db, t = idx >> 1, idx & 1
    return Ins(f"ds_read_b64_tr_b16 {a(A_VF + 4*db + 2*t, 2)}, {v(V_AV + db)} offset:{slot*SLOT + kb*8192 + t*4096}", lds_r=('V', slot))

def chunk_ops(tile, X):
    b = tile & 1; t = V_TS + b*4 + X
    ops = []
    for j in range(8):
        ops.append((2*j, Ins(f"v_exp_f32 {v(V_T+j)}, {v(Sreg(b, X, j >> 2, j & 3))}"), 'exp', j))
    if LSUM:
        u = V_TS + b
        S = [Sreg(b, X, j >> 2, j & 3) for j in range(8)]
        if X == 0:
            ops.append((1, Ins(f"v_max3_f32 {v(u)}, {v(S[0])}, {v(S[1])}, {v(S[2])}"), 'max', 0))
            ops.append((5, Ins(f"v_max3_f32 {v(u)}, {v(u)}, {v(S[3])}, {v(S[4])}"), 'max', 1))
            ops.append((9, Ins(f"v_max3_f32 {v(u)}, {v(u)}, {v(S[5])}, {v(S[6])}"), 'max', 2))
            ops.append((13, Ins(f"v_max_f32 {v(u)}, {v(u)}, {v(S[7])}"), 'max', 3))
        else:
            for k in range(4): ops.append((4*k + 1, Ins(f"v_max3_f32 {v(u)}, {v(u)}, {v(S[2*k])}, {v(S[2*k+1])}"), 'max', k))
    else:
        ops.append((5, Ins(f"v_add_f32 {v(t)}, {v(V_T)}, {v(V_T+1)}"), 'add', 1))
        for j in range(2, 8):
            ops.append((2*j + 3, Ins(f"v_add_f32 {v(t)}, {v(t)}, {v(V_T+j)}"), 'add', j))
    for jj in range(4):
        ops.append((4*jj + CVT_DELAY, Ins(f"v_cvt_pk_bf16_f32 {v(Preg(b, X) + jj)}, {v(V_T+2*jj)}, {v(V_T+2*jj+1)}"), 'cvt', jj))
    return ops

class AttnGen:
    def __init__(self, stamps=False, opts=None):
        self.o = dict(lsum=0, nomax=0, lgaps=(35, 43, 51, 59), cvt_delay=3, nodma=0, nobar=0, novread=0, nokread=0, nocheck=0, noexp=0, noadd=0, nocvt=0, dmag=(49,53,57,61), pvorder=0)
        if opts: self.o.update(opts)
        global CVT_DELAY, LSUM; CVT_DELAY = self.o['cvt_delay']; LSUM = self.o['lsum']
        self.stamps = stamps; self.nst = 0
        self.p = Prog()
        self.rare = {}; self.tramps = []; self.replay = []; self.extra = {}
    def emit(self, ins): self.p.add(ins); return ins
    def I(self, text, **kw): return self.emit(Ins(text, **kw))
    def stamp(self, real=False):
        if not self.stamps: return
        r = 44 + 2*self.nst; self.nst += 1
        self.I(f"{'s_memrealtime' if real else 's_memtime'} {s(r,2)}")
        self.I("s_waitcnt lgkmcnt(0)")
    def stamp_store(self):
        if not self.stamps: return
        I = self.I
        I("s_waitcnt vmcnt(0)")
        self.stamp(); self.stamp(real=True)
        I(f"s_load_dwordx2 s[70:71], s[0:1], {ARG_WS}")
        I("s_waitcnt lgkmcnt(0)")
        I(f"s_add_u32 s76, s70, {40*MB}"); I("s_addc_u32 s77, s71, 0")
        I("s_mov_b32 s78, 0x100000"); I("s_mov_b32 s79, 0x20000")
        I(f"s_lshl_b32 s74, s2, 2"); I(f"s_add_u32 s74, s74, {s(S_W)}"); I("s_lshl_b32 s74, s74, 6")
        for k in range(self.nst):
            I(f"v_mov_b32 v1, {s(44+2*k)}")
            I("v_mov_b32 v2, 0")
            I(f"buffer_store_dword v1, v2, s[76:79], s74 offen offset:{4*k}")

    G0 = 12
    HOLE = 63
    def build_valu(self):
        sched = {}
        for n in range(0, 64):
            for X in range(4):
                G0 = (n-1)*NG + self.G0 + 16*X
                for (j, ins, kind, idx) in chunk_ops(n, X):
                    G = G0 + j
                    st, g = divmod(G, NG)
                    if (st & 1) == 1 and g == self.HOLE:
                        G += 1
                    sched.setdefault(G, []).append((n, X, ins, kind))
        for G in sched:
            sched[G].sort(key=lambda x: (x[3] == 'exp', x[0], x[1]))
        return sched

    def check_site(self, tile, started):
        replay = [ins for (n, X, ins, kind) in self.replay]
        b1 = tile & 1; b2 = b1 ^ 1
        key = (b1, tuple(started), tuple(i.text for i in replay))
        if key not in self.rare:
            lab = f"L_rare_{len(self.rare)}"
            q = Prog(); q.L(lab)
            q.I("s_nop 15")
            for X in range(4):
                mx, t2, dl, f = V_TMP, V_TMP+1, V_TMP+2, V_TMP+3
                S0 = Sreg(b1, X)
                q.I(f"v_max3_f32 {v(mx)}, {v(S0)}, {v(S0+1)}, {v(S0+2)}")
                q.I(f"v_max3_f32 {v(mx)}, {v(mx)}, {v(S0+3)}, {v(S0+4)}")
                q.I(f"v_max3_f32 {v(mx)}, {v(mx)}, {v(S0+5)}, {v(S0+6)}")
                q.I(f"v_max_f32 {v(mx)}, {v(mx)}, {v(S0+7)}")
                for sw in ('16', '32'):
                    q.I(f"v_mov_b32 {v(t2)}, {v(mx)}")
                    q.I("s_nop 1")
                    q.I(f"v_permlane{sw}_swap_b32 {v(mx)}, {v(t2)}")
                    q.I("s_nop 0")
                    q.I(f"v_max_f32 {v(mx)}, {v(mx)}, {v(t2)}")
                q.I(f"v_max_f32 {v(dl)}, 0, {v(mx)}")
                q.I(f"v_exp_f32 {v(f)}, -{v(dl)}")
                for r in range(8): q.I(f"v_sub_f32 {v(S0+r)}, {v(S0+r)}, {v(dl)}")
                for r in range(4): q.I(f"v_sub_f32 {v(V_NEGM+X*4+r)}, {v(V_NEGM+X*4+r)}, {v(dl)}")
                if X in started:
                    for r in range(8): q.I(f"v_sub_f32 {v(Sreg(b2, X)+r)}, {v(Sreg(b2, X)+r)}, {v(dl)}")
                if LSUM:
                    for i in range(4): q.I(f"v_accvgpr_read_b32 {v(V_TMP+4+i)}, {a(A_L + 4*X + i)}")
                    for i in range(4): q.I(f"v_mul_f32 {v(V_TMP+4+i)}, {v(V_TMP+4+i)}, {v(f)}")
                    for i in range(4): q.I(f"v_accvgpr_write_b32 {a(A_L + 4*X + i)}, {v(V_TMP+4+i)}")
                else: q.I(f"v_mul_f32 {v(V_L+X)}, {v(V_L+X)}, {v(f)}")
                for db in range(8):
                    o = Oreg(X, db)
                    for i in range(4): q.I(f"v_accvgpr_read_b32 {v(V_TMP+4+i)}, {a(o+i)}")
                    for i in range(4): q.I(f"v_mul_f32 {v(V_TMP+4+i)}, {v(V_TMP+4+i)}, {v(f)}")
                    for i in range(4): q.I(f"v_accvgpr_write_b32 {a(o+i)}, {v(V_TMP+4+i)}")
            for i in replay: q.add(Ins(i.text))
            q.I("s_nop 1")
            q.I(f"s_setpc_b64 {s(S_RET, 2)}")
            items, n = fix_hazards(q.items, name=lab)
            self.rare[key] = (lab, items)
        lab = self.rare[key][0]
        tr = self.p.newlabel("L_tramp"); back = self.p.newlabel("L_back")
        self.I(f"s_cbranch_vccnz {tr}")
        self.p.L(back)
        self.tramps.append((tr, lab, back))

    def gap_valu(self, G, sched):
        for item in sched.get(G, []):
            n, X, ins, kind = item
            if self.o['no' + kind] and G >= 0: continue
            self.emit(Ins(ins.text)); self.replay.append(item)

    def step(self, i, sched, dma_k=None, dma_v=None, last=False, barrier=False, vmw=None):
        more_k = (i + 2 <= 63)
        DMAG = {g_: k_ for k_, g_ in enumerate(self.o['dmag'])}
        if self.o['nodma']: dma_k = dma_v = None
        for g in range(NG):
            G = i*NG + g
            if g < 32:
                if not last: self.emit(mfma_qk(i+1, g))
                if g % 2 == 1 and not self.o['novread']: self.emit(vread(i, g >> 1))
            else:
                self.emit(mfma_pv(i, g - 32))
                if LSUM and g in self.o['lgaps']:
                    X_ = self.o['lgaps'].index(g)
                    self.emit(Ins(f"{MFMA} {a(A_L + 4*X_, 4)}, {v(V_ONE, 4)}, {v(Preg(i & 1, X_), 4)}, {a(A_L + 4*X_, 4)}"))
                if g % 2 == 1 and g < 48 and more_k and not self.o['nokread']: self.emit(kread(i+2, (g - 33) >> 1))
                if g in DMAG:
                    if dma_k is not None: self.emit_dma('K', dma_k, DMAG[g])
                    if dma_v is not None: self.emit_dma('V', dma_v, DMAG[g])
            for f_ in self.extra.get((i, g), []): f_()
            if g == self.HOLE and barrier:
                if callable(vmw): vmw = vmw()
                self.I(f"s_waitcnt vmcnt({vmw}) lgkmcnt(0)")
                if not self.o['nobar']: self.I("s_barrier")
                assert not sched.get(G), sched.get(G)
                continue
            if g == 63: self.I("s_waitcnt lgkmcnt(0)")
            if g == 31: self.I("s_waitcnt lgkmcnt(8)")
            if g == 47: self.I(f"s_waitcnt lgkmcnt({8 if more_k else 0})")
            if g == self.o['dmag'][0] - 1 and dma_k is not None: self.I(f"s_add_u32 m0, {s(S_M0K)}, {(dma_k & 3)*SLOT}")
            if g == self.o['dmag'][0] - 1 and dma_v is not None: self.I(f"s_add_u32 m0, {s(S_M0V)}, {(dma_v & 3)*SLOT}")
            if g == self.o['dmag'][3] + 1 and dma_k is not None: self.I(f"s_add_u32 {s(S_KOFF)}, {s(S_KOFF)}, {SLOT}")
            if g == self.o['dmag'][3] + 1 and dma_v is not None: self.I(f"s_add_u32 {s(S_VOFF)}, {s(S_VOFF)}, {SLOT}")
            self.gap_valu(G, sched)
            if g == 14 and not LSUM:
                tb = V_TS + (i & 1)*4
                self.I(f"v_max3_f32 {v(V_U)}, {v(tb)}, {v(tb+1)}, {v(tb+2)}")
            if g == 15 and not LSUM:
                self.I(f"v_max_f32 {v(V_U)}, {v(V_U)}, {v(V_TS + (i & 1)*4 + 3)}")
            if g == 17:
                self.I(f"v_cmp_nle_f32 vcc, {v(V_TS + (i & 1)) if LSUM else v(V_U)}, {v(V_THR)}")
            if g == 23:
                self.check_site(i, [] if last else [0, 1, 2])
                self.replay = [x for x in self.replay if x[0] != i]
            if g == 16: pass
            if g in (25, 27, 29, 31) and not LSUM:
                X = (g - 25) >> 1
                self.I(f"v_add_f32 {v(V_L+X)}, {v(V_L+X)}, {v(V_TS + (i & 1)*4 + X)}")

    def emit_dma(self, which, tile, jj):
        slot = tile & 3
        if which == 'K':
            self.I(f"buffer_load_dwordx4 {v(V_DK+jj)}, {s(S_K,4)}, {s(S_KOFF)} offen offset:{jj*1024} lds", lds_w=('K', slot))
        else:
            self.I(f"buffer_load_dwordx4 {v(V_DV+(jj&1))}, {s(S_V,4)}, {s(S_VOFF)} offen offset:{jj*1024} lds", lds_w=('V', slot))

    def prologue_setup(self):
        I = self.I
        I("s_cmp_ge_u32 s2, 256")
        I("s_cbranch_scc1 L_attn_end")
        I(f"s_load_dwordx2 {s(S_K,2)}, s[0:1], {ARG_K}")
        I(f"s_load_dwordx2 {s(S_V,2)}, s[0:1], {ARG_V}")
        I(f"s_load_dwordx2 {s(S_WQ,2)}, s[0:1], {ARG_WQ}")
        I(f"s_load_dwordx2 {s(S_XN,2)}, s[0:1], {ARG_WS}")
        I(f"v_lshrrev_b32 v1, 6, v0")
        I(f"s_and_b32 {s(S_T0)}, s2, 7")
        I(f"v_readfirstlane_b32 {s(S_W)}, v1")
        I(f"s_lshr_b32 {s(S_T1)}, s2, 3")
        I(f"s_and_b32 {s(S_HEAD)}, {s(S_T1)}, 3")
        I(f"s_lshl_b32 {s(S_T0)}, {s(S_T0)}, 2")
        I(f"s_add_u32 {s(S_HEAD)}, {s(S_HEAD)}, {s(S_T0)}")
        I(f"s_lshr_b32 {s(S_QB)}, s2, 5")
        I("v_and_b32 v1, 63, v0")
        I(f"v_lshlrev_b32 {v(V_L16)}, 4, v1")
        I("v_and_b32 v2, 15, v1")
        I("v_lshrrev_b32 v5, 4, v1")
        I("v_xor_b32 v4, v5, v2"); I("v_lshlrev_b32 v4, 4, v4"); I("v_lshl_add_u32 v4, v2, 8, v4")
        for s_ in range(4): I(f"v_xor_b32 {v(V_AK+s_)}, {s_ << 6}, v4")
        I("v_lshrrev_b32 v6, 2, v1"); I("v_and_b32 v6, 3, v6")
        I("v_lshl_add_u32 v7, v5, 2, v6")
        I("v_and_b32 v8, 7, v7")
        I("v_and_b32 v9, 3, v1")
        I("v_lshlrev_b32 v10, 8, v7")
        I("v_lshl_add_u32 v11, v8, 5, v10"); I("v_lshl_add_u32 v11, v9, 3, v11")
        I(f"v_add_u32 v11, {LDS_V}, v11")
        for db in range(8): I(f"v_xor_b32 {v(V_AV+db)}, {db << 5}, v11")
        I("v_lshlrev_b32 v12, 1, v8"); I("v_xor_b32 v12, v12, v9"); I("v_lshl_add_u32 v12, v12, 4, v10")
        for e in range(4):
            I(f"v_xor_b32 {v(V_AW+e)}, {e << 6}, v12")
            I(f"v_add_u32 {v(V_AWV+e)}, {LDS_V}, {v(V_AW+e)}")
        for jj in range(4):
            I(f"v_add_u32 v8, {4*jj}, v5"); I("v_xor_b32 v8, v8, v2"); I("v_lshlrev_b32 v8, 4, v8")
            I(f"v_lshl_add_u32 {v(V_DK+jj)}, v5, 8, v8")
        for pj in range(2):
            I(f"v_add_u32 v8, {4*pj}, v5"); I("v_lshlrev_b32 v8, 1, v8"); I("v_xor_b32 v8, v8, v2"); I("v_lshlrev_b32 v8, 4, v8")
            I(f"v_lshl_add_u32 {v(V_DV+pj)}, v5, 8, v8")
            I(f"v_lshl_add_u32 {v(V_DW+pj)}, v5, 13, v8")
        I("s_waitcnt lgkmcnt(0)")
        I(f"s_lshl_b32 {s(S_T0)}, {s(S_HEAD)}, 19")
        for S_ in (S_K, S_V):
            I(f"s_add_u32 {s(S_)}, {s(S_)}, {s(S_T0)}"); I(f"s_addc_u32 {s(S_+1)}, {s(S_+1)}, 0")
            I(f"s_mov_b32 {s(S_+2)}, 0x80000"); I(f"s_mov_b32 {s(S_+3)}, 0x20000")
        I(f"s_add_u32 {s(S_O)}, {s(S_XN)}, {WS_O}"); I(f"s_addc_u32 {s(S_O+1)}, {s(S_XN+1)}, 0")
        I(f"s_mov_b32 {s(S_O+2)}, 0x1000000"); I(f"s_mov_b32 {s(S_O+3)}, 0x20000")
        I(f"s_mov_b32 {s(S_XN+2)}, 0x200000"); I(f"s_mov_b32 {s(S_XN+3)}, 0x20000")
        I(f"s_lshl_b32 {s(S_T0)}, {s(S_HEAD)}, 8")
        I(f"s_add_u32 {s(S_WQ)}, {s(S_WQ)}, {s(S_T0)}"); I(f"s_addc_u32 {s(S_WQ+1)}, {s(S_WQ+1)}, 0")
        I(f"s_sub_u32 {s(S_WQ+2)}, 0x400000, {s(S_T0)}"); I(f"s_mov_b32 {s(S_WQ+3)}, 0x20000")
        I(f"s_lshl_b32 {s(S_T0)}, {s(S_W)}, 12")
        I(f"s_mov_b32 {s(S_M0K)}, {s(S_T0)}")
        I(f"s_add_u32 {s(S_M0V)}, {s(S_T0)}, {LDS_V}")
        I(f"s_mov_b32 {s(S_KOFF)}, {s(S_T0)}")
        I(f"s_mov_b32 {s(S_VOFF)}, {s(S_T0)}")
        I(f"s_lshl_b32 {s(S_T1)}, {s(S_QB)}, 4"); I(f"s_lshl_b32 {s(S_XOFF)}, {s(S_W)}, 2")
        I(f"s_add_u32 {s(S_T1)}, {s(S_T1)}, {s(S_XOFF)}")
        I(f"s_lshl_b32 {s(S_XOFF)}, {s(S_T1)}, 14")
        I(f"s_lshl_b32 {s(S_OOFF)}, {s(S_T1)}, 17"); I(f"s_lshl_b32 {s(S_T0)}, {s(S_HEAD)}, 12")
        I(f"s_add_u32 {s(S_OOFF)}, {s(S_OOFF)}, {s(S_T0)}")
        I(f"s_lshl_b32 {s(S_WOFF)}, {s(S_W)}, 17")
        I(f"s_mov_b32 {s(S_THR)}, 0x46000000")
        I(f"v_mov_b32 {v(V_THR)}, {s(S_THR)}")
        I(f"s_mov_b32 {s(S_SCALE)}, 0x3e0293ee")
        I(f"s_mov_b32 {s(S_SCALE+1)}, 0x3e0293ee")

    WSLOT = [('K', 0), ('K', 1), ('V', 0), ('K', 2), ('V', 1), ('V', 2), ('K', 3), ('V', 3)]
    def wq_dma(self, c):
        reg, slot = self.WSLOT[c]
        base = S_M0K if reg == 'K' else S_M0V
        self.I(f"s_add_u32 m0, {s(base)}, {slot*SLOT}")
        for jj in range(4):
            self.I(f"s_add_u32 {s(S_T0)}, {s(S_WOFF)}, {(64*c + 4*jj)*8192 - jj*1024}")
            self.I(f"buffer_load_dwordx4 {v(V_DW+(jj&1))}, {s(S_WQ,4)}, {s(S_T0)} offen offset:{jj*1024} lds", lds_w=(reg, slot))
    def xn_loads(self, c):
        for X in range(4):
            self.I(f"s_add_u32 {s(S_T1)}, {s(S_XOFF)}, {X*16384 + c*2048}")
            for e2 in range(2):
                r = A_XF + (c & 3)*32 + (e2*4 + X)*4
                self.I(f"buffer_load_dwordx4 {a(r,4)}, {v(V_L16)}, {s(S_XN,4)}, {s(S_T1)} offen offset:{e2*1024}")
    def wread(self, rho):
        phi, t = rho >> 1, rho & 1
        c, e2, nb = phi >> 4, (phi >> 3) & 1, phi & 7
        ep, b = nb >> 1, nb & 1
        reg, slot = self.WSLOT[c]
        ar = (V_AW if reg == 'K' else V_AWV) + ep
        f = phi & 15
        return Ins(f"ds_read_b64_tr_b16 {a(A_WF + 4*f + 2*t, 2)}, {v(ar)} offset:{slot*SLOT + e2*8192 + t*4096 + 8*b}", lds_r=(reg, slot))
    def kv_tile_dma(self, which, tile):
        base = S_M0K if which == 'K' else S_M0V
        self.I(f"s_add_u32 m0, {s(base)}, {(tile & 3)*SLOT}")
        self.I("s_nop 0")
        for jj in range(4): self.emit_dma(which, tile, jj)
        off = S_KOFF if which == 'K' else S_VOFF
        self.I(f"s_add_u32 {s(off)}, {s(off)}, {SLOT}")

    def qproj(self):
        I = self.I
        for c in range(4):
            self.wq_dma(c); self.xn_loads(c)
        for c in range(4, 7): self.wq_dma(c)
        LAGF = 8
        NM = 512
        after_chunk = {0: ('K', 0), 1: ('K', 1), 2: ('V', 0), 3: ('K', 2), 4: ('V', 1), 5: ('V', 2)}
        vmq = []
        for c in range(4): vmq += [('w', c)]*4 + [('x', c)]*8
        for c in range(4, 7): vmq += [('w', c)]*4
        def wait_for(kind, c):
            idx = max(i for i, e in enumerate(vmq) if e == (kind, c))
            return len(vmq) - 1 - idx
        I(f"s_waitcnt vmcnt({wait_for('w', 0)})")
        I("s_barrier")
        for rho in range(2*LAGF): self.emit(self.wread(rho))
        I(f"s_waitcnt vmcnt({wait_for('x', 0)})")
        nread = 2*LAGF
        for mu in range(NM):
            phi, X = mu >> 2, mu & 3
            c, e2, nb = phi >> 4, (phi >> 3) & 1, phi & 7
            g = mu & 63
            if mu % 16 == 0:
                I(f"s_waitcnt lgkmcnt({min(15, nread - 2*(phi+4))})")
            d = v(V_QACC + (X*8+nb)*4, 4)
            cc = "0" if (c == 0 and e2 == 0) else d
            xf = A_XF + (c & 3)*32 + (e2*4 + X)*4
            I(f"{MFMA} {d}, {a(A_WF + 4*(phi & 15), 4)}, {a(xf, 4)}, {cc}")
            if mu % 2 == 1 and nread < 256:
                if nread % 32 == 0:
                    I(f"s_waitcnt vmcnt({wait_for('w', nread >> 5)})")
                    I("s_barrier")
                self.emit(self.wread(nread)); nread += 1
            if g == 63 and c + 1 < 8:
                I(f"s_waitcnt vmcnt({wait_for('x', c+1)})")
            if g == 36 and c >= 1 and (c - 1) in after_chunk:
                w_, t_ = after_chunk[c - 1]
                self.kv_tile_dma(w_, t_); vmq += [('kv', (w_, t_))]*4
            if g == 2 and c >= 1 and c + 3 < 8:
                self.xn_loads(c + 3); vmq += [('x', c + 3)]*8
            if g == 6 and c == 0:
                self.wq_dma(7); vmq += [('w', 7)]*4
        self.vmq = vmq

    def q_convert_and_first_tile(self, sched):
        I = self.I
        I("s_nop 7")
        vmq = self.vmq
        idx = max(max(i for i, e in enumerate(vmq) if e == ('kv', kk)) for kk in (('K', 0), ('K', 1), ('V', 0)))
        I(f"s_waitcnt vmcnt({len(vmq) - 1 - idx})")
        I("s_barrier")
        for f in range(8): self.emit(kread(0, f))
        for X in range(4):
            for nb in range(8):
                base = V_QACC + (X*8+nb)*4
                for r in range(0, 4, 2): I(f"v_pk_mul_f32 {v(base+r,2)}, {v(base+r,2)}, {s(S_SCALE,2)}")
            for s_ in range(4):
                for b in range(2):
                    base = V_QACC + (X*8+2*s_+b)*4
                    for jj in range(2):
                        I(f"v_cvt_pk_bf16_f32 {v(Qreg(X, s_) + 2*b + jj)}, {v(base+2*jj)}, {v(base+2*jj+1)}")
        I("s_waitcnt lgkmcnt(0)")
        zi = 0
        for g in range(32):
            X, kb2, s_ = g >> 3, (g >> 2) & 1, g & 3
            d = v(Sreg(0, X, kb2), 4)
            I(f"{MFMA} {d}, {a(A_KF + (kb2*4+s_)*4, 4)}, {v(Qreg(X, s_), 4)}, {'0' if s_ == 0 else d}")
            for z in range(4):
                I(f"v_accvgpr_write_b32 {a(A_O + zi)}, 0"); zi += 1
        for f in range(8): self.emit(kread(1, f))
        for X in range(4): I(f"v_mov_b32 {v(V_L+X)}, 0")
        I("s_nop 3")
        for X in range(4):
            mx, t2 = V_TMP, V_TMP+1
            S0 = Sreg(0, X)
            I(f"v_max3_f32 {v(mx)}, {v(S0)}, {v(S0+1)}, {v(S0+2)}")
            I(f"v_max3_f32 {v(mx)}, {v(mx)}, {v(S0+3)}, {v(S0+4)}")
            I(f"v_max3_f32 {v(mx)}, {v(mx)}, {v(S0+5)}, {v(S0+6)}")
            I(f"v_max_f32 {v(mx)}, {v(mx)}, {v(S0+7)}")
            for sw in ('16', '32'):
                I(f"v_mov_b32 {v(t2)}, {v(mx)}")
                I("s_nop 1")
                I(f"v_permlane{sw}_swap_b32 {v(mx)}, {v(t2)}")
                I("s_nop 0")
                I(f"v_max_f32 {v(mx)}, {v(mx)}, {v(t2)}")
            for r in range(8): I(f"v_sub_f32 {v(S0+r)}, {v(S0+r)}, {v(mx)}")
            for r in range(4): I(f"v_sub_f32 {v(V_NEGM+X*4+r)}, 0, {v(mx)}")
        for g in range(self.G0, NG):
            self.gap_valu(-NG + g, sched)
        I("s_waitcnt lgkmcnt(0)")

    def epilogue(self):
        I = self.I
        I("s_nop 7")
        for X in range(4):
            l, t2 = V_L + X, V_TMP
            for sw in ('16', '32'):
                I(f"v_mov_b32 {v(t2)}, {v(l)}")
                I("s_nop 1")
                I(f"v_permlane{sw}_swap_b32 {v(l)}, {v(t2)}")
                I("s_nop 0")
                I(f"v_add_f32 {v(l)}, {v(l)}, {v(t2)}")
            I(f"v_rcp_f32 {v(l)}, {v(l)}")
        stage = 16; n = 0
        for X in range(4):
            if X > 0: I(f"s_add_u32 {s(S_OOFF)}, {s(S_OOFF)}, 131072")
            for e in range(4):
                f = stage + (n % 4)*12; n += 1
                for j in range(8): I(f"v_accvgpr_read_b32 {v(f+j)}, {a(Oreg(X, 2*e + (j >> 2)) + (j & 3))}")
                for j in range(8): I(f"v_mul_f32 {v(f+j)}, {v(f+j)}, {v(V_L+X)}")
                for jj in range(4): I(f"v_cvt_pk_bf16_f32 {v(f+8+jj)}, {v(f+2*jj)}, {v(f+2*jj+1)}")
                I(f"buffer_store_dwordx4 {v(f+8,4)}, {v(V_L16)}, {s(S_O,4)}, {s(S_OOFF)} offen offset:{e*1024}")

    def gen(self, name="attn_kernel"):
        p = self.p
        p.raw(kernel_header(name))
        sched = self.build_valu()
        n0 = len(p.items)
        self.stamp(real=True); self.stamp()
        self.prologue_setup()
        self.stamp()
        self.qproj()
        self.stamp()
        self.q_convert_and_first_tile(sched)
        self.stamp()
        pro, npad = fix_hazards(p.items[n0:], name='pro')
        p.items[n0:] = pro
        self.I(f"s_mov_b32 {s(S_CNT)}, 7")
        p.raw(".p2align 6")
        p.L("L_attn_loop")
        loop_start = len(p.items)
        replay_at_entry = list(self.replay)
        for T in range(4):
            self.step(2*T, sched, dma_k=T+3)
            self.step(2*T+1, sched, dma_v=T+3, barrier=True, vmw=8)
        self.I(f"s_sub_u32 {s(S_CNT)}, {s(S_CNT)}, 1")
        self.I(f"s_cmp_lg_u32 {s(S_CNT)}, 0")
        self.I("s_cbranch_scc1 L_attn_loop")
        loop_end = len(p.items)
        ent = [(n, k, ins.text) for (n, k, ins, kind) in replay_at_entry]
        ext = [(n - 8, k, ins.text) for (n, k, ins, kind) in self.replay]
        assert ent == ext or any(self.o[x] for x in ('noexp', 'noadd', 'nocvt')), (ent, ext)
        self.replay = [(n - 8 + 56, k, ins, kind) for (n, k, ins, kind) in self.replay]
        tail_start = len(p.items)
        for T in range(28, 32):
            dk = T + 3 if T + 3 <= 31 else None
            lastT = (T == 31)
            vmw = 8 if dk is not None else 0
            self.step(2*T, sched, dma_k=dk)
            self.step(2*T+1, sched, dma_v=dk, barrier=not lastT, vmw=vmw, last=lastT)
        self.stamp()
        self.epilogue()
        self.stamp_store()
        tail, npad2 = fix_hazards(p.items[tail_start:], name='tail', verbose=True)
        p.items[tail_start:] = tail
        p.L("L_attn_end")
        self.I("s_endpgm")
        for (tr, lab, back) in self.tramps:
            p.L(tr); self.I(f"s_call_b64 {s(S_RET,2)}, {lab}"); self.I(f"s_branch {back}")
        for key, (lab, items) in self.rare.items(): p.extend(items)
        ins = lambda seq: [i for i in seq if isinstance(i, Ins)]
        body = ins(p.items[loop_start:loop_end])
        trace = ins(p.items[n0:loop_start]) + body + body + ins(p.items[loop_end:loop_end + len(tail) + 2])
        e1 = check_hazards(trace, name); e2 = check_waitcnt(trace, name)
        self.stats = dict(pro=len(ins(pro)), loop=len(body), tail=len(ins(tail)), npad=npad, npad2=npad2, rare=len(self.rare))
        return p.text(), kernel_desc(name, 512, 96, 256), e1 + e2

if __name__ == "__main__":
    g = AttnGen(); t, d, errs = g.gen()
    print(g.stats)
    for e in errs[:40]: print(e)
    print(len(errs), "errors")
```

```python
from asmgen import *
from layout import *
import math
from k_gemm import f2u, interleave
MFMA = "v_mfma_f32_16x16x32_bf16"
def gen_final(name="final_kernel", with_b=True, lds_bytes=131072, helper=True, lead=6, nods=0, nomfma=0, now=0, nox=0, nobar=0, D=5, pf64=0, same=0, map=0, wp=1, wpad=0, csp=0, opad=0, osc=0):
    p = Prog(); I = p.I
    p.raw(kernel_header(name))
    end = f"L_{name}_end"
    SW, SX = 4, 8
    SW2, SX2 = 12, 16
    SX1, SXIN, SOUT = 20, 24, 28
    sw, sT0, sT1, sWOFF, sXOFF, sM0, sPF, sCNT, sWOFF2, sXOFF2, sRT, sCT = 32, 33, 34, 35, 36, 37, 38, 39, 40, 41, 42, 43
    VAA = 16
    VAB = 18
    VDW = 19
    VL16 = 14
    VA = 32
    VB = 64
    ACCB, ACCS = 96, 112
    I("s_cmp_ge_u32 s2, 256"); I(f"s_cbranch_scc1 {end}")
    I(f"s_load_dwordx2 {s(SW,2)}, s[0:1], {ARG_W4}")
    I(f"s_load_dwordx2 {s(SW2,2)}, s[0:1], {ARG_WO}")
    I(f"s_load_dwordx2 {s(SX,2)}, s[0:1], {ARG_WS}")
    I(f"s_load_dwordx2 {s(SXIN,2)}, s[0:1], {ARG_X}")
    I(f"s_load_dwordx2 {s(SOUT,2)}, s[0:1], {ARG_OUT}")
    I("v_lshrrev_b32 v1, 6, v0"); I("s_nop 0"); I(f"v_readfirstlane_b32 {s(sw)}, v1")
    I("v_and_b32 v1, 63, v0"); I(f"v_lshlrev_b32 {v(VL16)}, 4, v1")
    I(f"s_and_b32 {s(sT0)}, s2, 7"); I(f"s_lshr_b32 {s(sT1)}, s2, 3")
    I(f"s_and_b32 {s(sCT)}, {s(sT1)}, 7"); I(f"s_lshr_b32 {s(sT1)}, {s(sT1)}, 3")
    I(f"s_lshl_b32 {s(sT0)}, {s(sT0)}, 2"); I(f"s_add_u32 {s(sRT)}, {s(sT0)}, {s(sT1)}")
    if map == 1:
        I(f"s_and_b32 {s(sT0)}, s2, 7"); I(f"s_lshr_b32 {s(sT1)}, s2, 3")
        I(f"s_and_b32 {s(sCT)}, {s(sT1)}, 3"); I(f"s_lshr_b32 {s(sT1)}, {s(sT1)}, 2")
        I(f"s_and_b32 s44, {s(sT0)}, 1"); I("s_lshl_b32 s44, s44, 2"); I(f"s_add_u32 {s(sCT)}, {s(sCT)}, s44")
        I(f"s_lshr_b32 {s(sT0)}, {s(sT0)}, 1"); I(f"s_lshl_b32 {s(sT0)}, {s(sT0)}, 3"); I(f"s_add_u32 {s(sRT)}, {s(sT0)}, {s(sT1)}")
    if same == 1: I(f"s_mov_b32 {s(sRT)}, 0"); I(f"s_mov_b32 {s(sCT)}, 0")
    if same == 2: I(f"s_mov_b32 {s(sRT)}, 0")
    if same == 3: I(f"s_mov_b32 {s(sCT)}, 0")
    I("v_and_b32 v2, 15, v1"); I("v_lshrrev_b32 v5, 4, v1")
    I("v_lshrrev_b32 v6, 2, v1"); I("v_and_b32 v6, 3, v6")
    I("v_lshl_add_u32 v7, v5, 2, v6")
    I("v_lshrrev_b32 v8, 1, v7"); I("v_and_b32 v8, 3, v8")
    I("v_and_b32 v9, 3, v1")
    I("v_lshlrev_b32 v10, 7, v7"); I("v_lshl_add_u32 v10, v8, 5, v10"); I("v_lshl_add_u32 v10, v9, 3, v10")
    I(f"s_and_b32 {s(sT0)}, {s(sw)}, 1"); I(f"s_lshl_b32 {s(sT0)}, {s(sT0)}, 1")
    for cb in range(2):
        I(f"s_add_u32 {s(sT1)}, {s(sT0)}, {cb}"); I(f"s_lshl_b32 {s(sT1)}, {s(sT1)}, 5"); I(f"v_xor_b32 {v(VAA+cb)}, {s(sT1)}, v10")
    I(f"s_lshr_b32 {s(sT0)}, {s(sw)}, 1"); I(f"s_lshl_b32 {s(sT0)}, {s(sT0)}, 12"); I(f"s_add_u32 {s(sT0)}, {s(sT0)}, 8192")
    I(f"v_add_u32 {v(VAB)}, {s(sT0)}, {v(VL16)}")
    I("v_lshrrev_b32 v6, 3, v1"); I("v_and_b32 v7, 7, v1"); I("v_lshrrev_b32 v8, 1, v6"); I("v_lshlrev_b32 v8, 1, v8"); I("v_xor_b32 v8, v8, v7")
    if csp:
        I("v_lshrrev_b32 v9, 2, v8"); I("v_and_b32 v8, 3, v8"); I("v_lshlrev_b32 v8, 4, v8"); I(f"v_lshl_add_u32 v8, v9, {9 if csp == 1 else 8}, v8")
        I(f"v_lshl_add_u32 {v(VDW)}, v6, 10, v8")
    else:
        I("v_lshlrev_b32 v8, 4, v8"); I(f"v_lshl_add_u32 {v(VDW)}, v6, 10, v8")
    I("s_waitcnt lgkmcnt(0)")
    def srd(dst, lo, off, size):
        if off is not None:
            I(f"s_add_u32 {s(dst)}, {s(lo)}, {off}"); I(f"s_addc_u32 {s(dst+1)}, {s(lo+1)}, 0")
        I(f"s_mov_b32 {s(dst+2)}, {size}"); I(f"s_mov_b32 {s(dst+3)}, 0x20000")
    srd(SX2, SX, WS_O, 18*MB); srd(SX1, SX, WS_X1, 2*MB); srd(SX, SX, WS_H2, 2048*1792*2)
    if wp:
        assert not helper and with_b
        I(f"s_mul_i32 {s(sT0)}, {s(sCT)}, {92*8192 + wpad}"); I(f"s_add_u32 {s(sT0)}, {s(sT0)}, {WS_WP}")
        I(f"s_add_u32 {s(SW)}, {s(SX1)}, {s(sT0)}"); I(f"s_addc_u32 {s(SW+1)}, {s(SX1+1)}, 0")
        I(f"s_sub_u32 {s(SW)}, {s(SW)}, {WS_X1}"); I(f"s_subb_u32 {s(SW+1)}, {s(SW+1)}, 0")
        I(f"s_mov_b32 {s(SW+2)}, {92*8192}"); I(f"s_mov_b32 {s(SW+3)}, 0x20000")
    else:
        srd(SW, SW, None, 1792*1024); srd(SW2, SW2, None, 4096*1024)
    srd(SXIN, SXIN, None, 2*MB); srd(SOUT, SOUT, None, 2*MB)
    if wp: I(f"s_lshl_b32 {s(sWOFF)}, {s(sw)}, 11")
    else:
        I(f"s_lshl_b32 {s(sWOFF)}, {s(sw)}, 14")
        if csp == 0: I(f"s_lshl_b32 {s(sT0)}, {s(sCT)}, 7")
        elif csp == 1: I(f"s_lshl_b32 {s(sT0)}, {s(sCT)}, 6")
        else:
            I(f"s_and_b32 {s(sT0)}, {s(sCT)}, 3"); I(f"s_lshl_b32 {s(sT0)}, {s(sT0)}, 6"); I(f"s_lshr_b32 {s(sT1)}, {s(sCT)}, 2"); I(f"s_lshl_b32 {s(sT1)}, {s(sT1)}, 9"); I(f"s_add_u32 {s(sT0)}, {s(sT0)}, {s(sT1)}")
        I(f"s_add_u32 {s(sWOFF)}, {s(sWOFF)}, {s(sT0)}")
    I(f"s_mov_b32 {s(sWOFF2)}, {s(sWOFF)}")
    I(f"s_lshl_b32 {s(sT0)}, {s(sRT)}, 2"); I(f"s_add_u32 {s(sT0)}, {s(sT0)}, {s(sw)}")
    I(f"s_mul_i32 {s(sXOFF)}, {s(sT0)}, {56*1024}"); I(f"s_mul_i32 {s(sXOFF2)}, {s(sT0)}, {131072 + opad}")
    I(f"s_lshl_b32 {s(sM0)}, {s(sw)}, 11")
    I(f"s_mov_b32 {s(sPF)}, 0")
    if helper:
        I(f"s_cmp_lg_u32 {s(sw)}, 4"); I(f"s_cbranch_scc1 L_{name}_main")
        I(f"s_and_b32 {s(sT0)}, {s(sRT)}, 3"); I(f"s_lshl_b32 {s(sT0)}, {s(sT0)}, 4")
        I(f"v_lshl_add_u32 v20, v5, 6, v2"); I(f"v_add_u32 v20, {s(sT0)}, v20"); I("v_lshlrev_b32 v20, 10, v20")
        I(f"s_lshl_b32 {s(sT1)}, {s(sCT)}, 7"); I(f"v_add_u32 v20, {s(sT1)}, v20")
        I("v_lshrrev_b32 v21, 3, v1"); I("v_lshlrev_b32 v21, 11, v21"); I("v_and_b32 v22, 7, v1"); I("v_lshl_add_u32 v21, v22, 7, v21")
        I(f"s_and_b32 {s(sT0)}, {s(sCT)}, 1"); I(f"s_lshl_b32 {s(sT0)}, {s(sT0)}, 10"); I(f"v_add_u32 v21, {s(sT0)}, v21")
        I("v_cmp_gt_u32 vcc, 32, v1"); I("v_mov_b32 v22, 0x7f000000"); I("s_nop 1"); I("v_cndmask_b32 v21, v22, v21, vcc")
        I(f"s_lshr_b32 {s(sT0)}, {s(sCT)}, 1"); I(f"s_lshl_b32 {s(sT1)}, {s(sRT)}, 2"); I(f"s_add_u32 {s(sT0)}, {s(sT0)}, {s(sT1)}")
        I(f"s_mul_i32 {s(sXOFF)}, {s(sT0)}, {56*1024}"); I(f"s_lshl_b32 {s(sXOFF2)}, {s(sT0)}, 17")
        I(f"s_mov_b32 {s(sWOFF)}, 0")
        nb_tot = 23 if with_b else 16
        if not with_b:
            for k in range(4): I(f"s_mov_b32 {s(SW+k)}, {s(SW2+k)}"); I(f"s_mov_b32 {s(SX+k)}, {s(SX2+k)}")
            I(f"s_mov_b32 {s(sXOFF)}, {s(sXOFF2)}")
        def pf(b):
            if with_b and b == 7:
                for k in range(4): I(f"s_mov_b32 {s(SW+k)}, {s(SW2+k)}"); I(f"s_mov_b32 {s(SX+k)}, {s(SX2+k)}")
                I(f"s_mov_b32 {s(sWOFF)}, 0"); I(f"s_mov_b32 {s(sXOFF)}, {s(sXOFF2)}")
            I(f"buffer_load_dword v24, v20, {s(SW,4)}, {s(sWOFF)} offen")
            I(f"buffer_load_dword v25, v21, {s(SX,4)}, {s(sXOFF)} offen")
            if pf64:
                I(f"buffer_load_dword v24, v20, {s(SW,4)}, {s(sWOFF)} offen offset:64")
                I(f"buffer_load_dword v25, v21, {s(SX,4)}, {s(sXOFF)} offen offset:64")
            I("s_waitcnt vmcnt(40)")
            I(f"s_add_u32 {s(sWOFF)}, {s(sWOFF)}, {4*65536}"); I(f"s_add_u32 {s(sXOFF)}, {s(sXOFF)}, {4*2048}")
        for b in range(lead): pf(b)
        for b in range(lead, nb_tot):
            for k in range(4): I("s_barrier")
            pf(b)
        I("s_waitcnt vmcnt(0)")
        I("s_endpgm")
        p.L(f"L_{name}_main")
    if not with_b:
        for k in range(4): I(f"s_mov_b32 {s(SW+k)}, {s(SW2+k)}"); I(f"s_mov_b32 {s(SX+k)}, {s(SX2+k)}")
        I(f"s_mov_b32 {s(sXOFF)}, {s(sXOFF2)}")
    nsw = [0]
    def dma_ops(slot):
        o = (slot & 3)*16384
        g = []
        if wp:
            g.append([Ins(f"s_add_u32 m0, {s(sM0)}, {o}"), Ins("s_nop 0"),
                      Ins(f"buffer_load_dwordx4 {v(VL16)}, {s(SW,4)}, {s(sWOFF)} offen lds")])
            g.append([Ins(f"buffer_load_dwordx4 {v(VL16)}, {s(SW,4)}, {s(sWOFF)} offen offset:1024 lds"),
                      Ins(f"s_add_u32 m0, {s(sM0)}, {o + 8192}"), Ins(f"s_add_u32 {s(sWOFF)}, {s(sWOFF)}, 8192")])
        else:
          g.append([Ins(f"s_add_u32 m0, {s(sM0)}, {o}"), Ins(f"s_add_u32 {s(sT0)}, {s(sWOFF)}, {8192 - 1024}"),
                  Ins(f"buffer_load_dwordx4 {v(VDW)}, {s(SW,4)}, {s(sWOFF)} offen lds")])
          g.append([Ins(f"buffer_load_dwordx4 {v(VDW)}, {s(SW,4)}, {s(sT0)} offen offset:1024 lds"),
                  Ins(f"s_add_u32 m0, {s(sM0)}, {o + 8192}"), Ins(f"s_add_u32 {s(sWOFF)}, {s(sWOFF)}, 65536")])
        g.append([Ins(f"buffer_load_dwordx4 {v(VL16)}, {s(SX,4)}, {s(sXOFF)} offen lds")])
        last = [Ins(f"buffer_load_dwordx4 {v(VL16)}, {s(SX,4)}, {s(sXOFF)} offen offset:1024 lds"), Ins(f"s_add_u32 {s(sXOFF)}, {s(sXOFF)}, 2048")]
        if with_b:
            lab = f"L_{name}_sw{nsw[0]}"; nsw[0] += 1
            last += [Ins(f"s_add_u32 {s(sPF)}, {s(sPF)}, 1"), Ins(f"s_cmp_eq_u32 {s(sPF)}, 28"), Ins(f"s_cbranch_scc0 {lab}")]
            if wp:
                for k in range(4): last += [Ins(f"s_mov_b32 {s(SX+k)}, {s(SX2+k)}")]
                last += [Ins(f"s_mov_b32 {s(sXOFF)}, {s(sXOFF2)}"), Label(lab)]
            else:
                for k in range(4): last += [Ins(f"s_mov_b32 {s(SW+k)}, {s(SW2+k)}"), Ins(f"s_mov_b32 {s(SX+k)}, {s(SX2+k)}")]
                last += [Ins(f"s_mov_b32 {s(sWOFF)}, {s(sWOFF2)}"), Ins(f"s_mov_b32 {s(sXOFF)}, {s(sXOFF2)}"), Label(lab)]
        g.append(last)
        if now: g = [[i for i in x if not (isinstance(i, Ins) and i.op.startswith('buffer') and f"{v(VDW)}," in i.text)] for x in g]
        if nox: g = [[i for i in x if not (isinstance(i, Ins) and i.op.startswith('buffer') and f"{v(VL16)}," in i.text)] for x in g]
        return g
    def read_ops(k, toggled):
        o = k*16384; buf = k & 1; r = []
        for e2 in range(2):
            for cb in range(2):
                for t in range(2):
                    r.append(Ins(f"ds_read_b64_tr_b16 {v(VA + buf*16 + (e2*2+cb)*4 + 2*t, 2)}, {v(VAA+cb)} offset:{o + e2*4096 + t*2048}"))
            for rb2 in range(2):
                r.append(Ins(f"ds_read_b128 {v(VB + buf*16 + (e2*2+rb2)*4, 4)}, {v(VAB)} offset:{o + rb2*2048 + e2*1024}"))
        return r if not nods else []
    I(f"s_lshr_b32 {s(sT0)}, {s(sw)}, 1"); I(f"s_lshl_b32 {s(sT0)}, {s(sT0)}, 1"); I(f"s_lshl_b32 {s(sT1)}, {s(sRT)}, 2"); I(f"s_add_u32 {s(sT0)}, {s(sT0)}, {s(sT1)}")
    if csp == 0:
        I(f"s_and_b32 {s(sT1)}, {s(sw)}, 1"); I(f"s_lshl_b32 s44, {s(sCT)}, 1"); I(f"s_add_u32 {s(sT1)}, {s(sT1)}, s44")
    elif csp == 1:
        I(f"s_and_b32 {s(sT1)}, {s(sw)}, 1"); I(f"s_lshl_b32 {s(sT1)}, {s(sT1)}, 3"); I(f"s_add_u32 {s(sT1)}, {s(sT1)}, {s(sCT)}")
    else:
        I(f"s_and_b32 {s(sT1)}, {s(sw)}, 1"); I(f"s_lshl_b32 {s(sT1)}, {s(sT1)}, 2"); I(f"s_and_b32 s44, {s(sCT)}, 3"); I(f"s_add_u32 {s(sT1)}, {s(sT1)}, s44")
        I(f"s_lshr_b32 s44, {s(sCT)}, 2"); I("s_lshl_b32 s44, s44, 3"); I(f"s_add_u32 {s(sT1)}, {s(sT1)}, s44")
    I(f"s_lshl_b32 s45, {s(sT0)}, 14"); I(f"s_lshl_b32 s46, {s(sT1)}, 10"); I("s_add_u32 s45, s45, s46")
    I(f"buffer_load_dwordx4 v[128:131], {v(VL16)}, {s(SX1,4)}, s45 offen")
    I("s_add_u32 s45, s45, 16384")
    I(f"buffer_load_dwordx4 v[132:135], {v(VL16)}, {s(SX1,4)}, s45 offen")
    I("v_lshlrev_b32 v144, 10, v2"); I("v_lshl_add_u32 v144, v5, 3, v144")
    I(f"s_lshl_b32 s45, {s(sT0)}, 14"); I(f"s_lshl_b32 s46, {s(sT1)}, 6"); I("s_add_u32 s45, s45, s46"); I("s_add_u32 s46, s45, 16384")
    for rb2 in range(2):
        for cb in range(2):
            I(f"buffer_load_dwordx2 {v(136+(rb2*2+cb)*2,2)}, v144, {s(SXIN,4)}, {'s45' if rb2 == 0 else 's46'} offen offset:{cb*32}")
    mid_stamp(I, 0)
    for c in range(D):
        if c == 4 or c == 8: I(f"s_xor_b32 {s(sM0)}, {s(sM0)}, 0x10000")
        for g in dma_ops(c): p.extend(g)
    nper = 4 - 2*now - 2*nox
    I(f"s_waitcnt vmcnt({nper*(D-1)})"); I("s_barrier")
    p.extend(read_ops(0, False))
    def body(acc):
        for k in range(4):
            I(f"s_waitcnt vmcnt({nper*(D-2)}) lgkmcnt(0)")
            if not nobar: I("s_barrier")
            pslot = (k + D) & 7
            pre = []
            if (pslot & 3) == 0: pre = [Ins(f"s_xor_b32 {s(sM0)}, {s(sM0)}, 0x10000")]
            dg = dma_ops(pslot); dg[0] = pre + dg[0]
            if k == 3:
                tog = [Ins(f"v_xor_b32 {v(r)}, 0x10000, {v(r)}") for r in (VAA, VAA+1, VAB)]
            else: tog = []
            rd = read_ops((k + 1) & 3, k == 3)
            p.extend(tog)
            buf = k & 1
            mf = []
            for e2 in range(2):
                for cb in range(2):
                    for rb2 in range(2):
                        d = v(acc + (rb2*2+cb)*4, 4)
                        mf.append(Ins(f"{MFMA} {d}, {v(VA + buf*16 + (e2*2+cb)*4, 4)}, {v(VB + buf*16 + (e2*2+rb2)*4, 4)}, {d}"))
            if nomfma: mf = [Ins("s_nop 0") for _ in mf]
            ri = 0
            for m in range(8):
                p.add(mf[m])
                nr = 2 if m % 2 == 0 else 1
                for _ in range(nr):
                    if ri < len(rd): p.add(rd[ri]); ri += 1
                if m % 2 == 1: p.extend(dg[m >> 1])
            assert ri == len(rd)
    for r in range(ACCB, ACCS + 16): I(f"v_mov_b32 {v(r)}, 0")
    trace_parts = []
    pre_end = len(p.items)
    if with_b:
        I(f"s_mov_b32 {s(sCNT)}, 7")
        p.L(f"L_{name}_loopB"); b0 = len(p.items)
        body(ACCB); b1 = len(p.items)
        I(f"s_sub_u32 {s(sCNT)}, {s(sCNT)}, 1"); I(f"s_cmp_lg_u32 {s(sCNT)}, 0"); I(f"s_cbranch_scc1 L_{name}_loopB")
    mid_stamp(I, 1)
    I(f"s_mov_b32 s47, 0x{f2u(-math.log2(math.e)):x}")
    I("s_nop 7")
    for rb2 in range(2):
        seq = []
        for cb in range(2):
            for r in range(4):
                j = cb*4 + r
                x1src = 128 + rb2*4 + (j >> 1)
                b = ACCB + (rb2*2+cb)*4 + r
                t0 = 146 + j
                q = Prog()
                q.I(f"v_lshlrev_b32 {v(t0)}, 16, {v(x1src)}") if (j & 1) == 0 else q.I(f"v_and_b32 {v(t0)}, 0xffff0000, {v(x1src)}")
                q.I(f"v_add_f32 {v(b)}, {v(b)}, {v(t0)}")
                q.I(f"v_mul_f32 {v(t0)}, s47, {v(b)}")
                q.I(f"v_exp_f32 {v(t0)}, {v(t0)}")
                q.I(f"v_add_f32 {v(t0)}, 1.0, {v(t0)}")
                q.I(f"v_rcp_f32 {v(t0)}, {v(t0)}")
                q.I(f"v_mul_f32 {v(b)}, {v(b)}, {v(t0)}")
                seq.append(q.items)
        p.extend(interleave(seq))
    I(f"s_mov_b32 {s(sCNT)}, 16")
    p.L(f"L_{name}_loopS"); c0 = len(p.items)
    body(ACCS); c1 = len(p.items)
    I(f"s_sub_u32 {s(sCNT)}, {s(sCNT)}, 1"); I(f"s_cmp_lg_u32 {s(sCNT)}, 0"); I(f"s_cbranch_scc1 L_{name}_loopS")
    I("s_waitcnt lgkmcnt(0)")
    mid_stamp(I, 2)
    I("s_nop 7")
    for rb2 in range(2):
        for cb in range(2):
            for r in range(4):
                b = ACCB + (rb2*2+cb)*4 + r; sv = ACCS + (rb2*2+cb)*4 + r
                t1 = 56 + r
                xs = 136 + (rb2*2+cb)*2 + (r >> 1)
                I(f"v_lshlrev_b32 {v(t1)}, 16, {v(xs)}") if (r & 1) == 0 else I(f"v_and_b32 {v(t1)}, 0xffff0000, {v(xs)}")
                I(f"v_fma_f32 {v(sv)}, {v(sv)}, {v(b)}, {v(t1)}")
            x = ACCS + (rb2*2+cb)*4
            I(f"v_cvt_pk_bf16_f32 {v(64+(rb2*2+cb)*2)}, {v(x)}, {v(x+1)}"); I(f"v_cvt_pk_bf16_f32 {v(65+(rb2*2+cb)*2)}, {v(x+2)}, {v(x+3)}")
            I(f"buffer_store_dwordx2 {v(64+(rb2*2+cb)*2,2)}, v144, {s(SOUT,4)}, {'s45' if rb2 == 0 else 's46'} offen offset:{cb*32}" + (" sc1" if osc else ""))
    I("s_waitcnt vmcnt(0)")
    p.L(end); I("s_endpgm")
    items, n = fix_hazards(p.items, name=name); p.items = items
    ins = [i for i in p.items if isinstance(i, Ins)]
    errs = check_hazards(ins + [], name)
    return p.text(), kernel_desc(name, 160, 64, 160), errs

if __name__ == "__main__":
    t, d, e = gen_final(); print(len(t.splitlines()), e[:10])
```

```python
import sys
from asmgen import *
from layout import *
import k_a, k_final
from build import build
if __name__ == "__main__":
    path = sys.argv[1]
    opts = dict(eval(a[2:]) for a in sys.argv if a.startswith('o:'))
    fo = dict(eval(a[2:]) for a in sys.argv if a.startswith('f:'))
    fo.setdefault('helper', False)
    fo['wpad'] = opts.get('wpad', 1024); fo['wp'] = 1 if opts.get('wp', 1) else 0; fo['opad'] = opts.get('opad', 1024)
    DIAG['on'] = 'diag' in sys.argv
    g = k_a.AGen(opts=opts); t, d, errs = g.gen()
    for e in errs[:20]: print(e)
    assert not errs or 'force' in sys.argv
    tt, dd, ee = k_final.gen_final(**fo); assert not ee, ee
    ks = [(t, d), (tt, dd)]
    launches = [("a_kernel", 256, 256, k_a.LDS_BYTES_A), ("final_kernel", 256, 320 if fo.get('helper', True) else 256, 131072)]
    ends = {'a_kernel': 'L_a_end'}
    order = [l[0] for l in launches]
    ks2 = [(diag_wrap(t_, t_.split()[1], order.index(t_.split()[1]), ends.get(t_.split()[1], f'L_{t_.split()[1]}_end')), d_) for (t_, d_) in ks]
    if 'dbgout' in sys.argv:
        t_, d_ = ks2[1]
        inj = f'''final_kernel:
    s_cmp_lg_u32 s2, 0
    s_cbranch_scc1 L_dbg_skip
    s_load_dwordx2 s[60:61], s[0:1], {ARG_WS}
    s_load_dwordx2 s[56:57], s[0:1], {ARG_DBG}
    s_waitcnt lgkmcnt(0)
    s_add_u32 s60, s60, {48*MB}
    s_addc_u32 s61, s61, 0
    s_mov_b32 s62, 0x20000
    s_mov_b32 s63, 0x20000
    s_mov_b32 s58, 256
    s_mov_b32 s59, 0x20000
    v_and_b32 v10, 7, v0
    v_lshlrev_b32 v10, 2, v10
    v_bfe_u32 v11, v0, 3, 1
    v_mul_u32_u24 v11, {133*32}, v11
    v_add_u32 v10, v10, v11
    v_add_u32 v10, 4096, v10
    buffer_load_dword v12, v10, s[60:63], 0 offen
    v_bfe_u32 v11, v0, 3, 1
    v_mul_u32_u24 v11, {133*8}, v11
    buffer_load_dword v13, v11, s[60:63], 0 offen
    s_waitcnt vmcnt(0)
    v_sub_u32 v12, v12, v13
    v_lshlrev_b32 v10, 2, v0
    v_cmp_gt_u32 vcc, 16, v0
    s_and_saveexec_b64 s[54:55], vcc
    s_cbranch_execz L_dbg_noex
    buffer_store_dword v12, v10, s[56:59], 0 offen
L_dbg_noex:
    s_mov_b64 exec, s[54:55]
    s_waitcnt vmcnt(0)
L_dbg_skip:
'''
        ks2[1] = (t_.replace('final_kernel:\n', inj, 1), d_)
    build(ks2, launches, path)
    print(g.stats)
```

```python
import re
from asmgen import *
from layout import *
import k_attn16 as KA
from k_attn16 import *
from k_gemm import gelu_ops, f2u, GC0, GC1, interleave

LDS_S0 = 131072
LDS_BYTES_A = 163840
S_X, S_WS = S_XN, S_O
S_W1, S_W2, S_H, S_DBG = 44, 48, 52, 56
S_PAR, S_CT, S_R01 = 41, 42, 43
S_R23, S_X01, S_X23, S_T2, S_T3, S_M0S, S_SPIN, S_C0, S_C1 = 60, 61, 62, 63, 64, 65, 66, 67, 68
S_WT = 88
V_ONES = 10
V_XR = 2
V_CSQ = 218
V_NMU, V_RS = 230, 234
V_POLL, V_POLLA = 226, 227
V_POLL2, V_POLLA2 = 138, 139
V_D3 = 128
V_A3K = 130
A_J2ACC, A_J2R = 192, 208
A_ST23 = 176
NRQ, LAGQ = 12, 6
def xreg(X, e):
    if e < 8: return a((e*4 + X)*4, 4)
    if e < 12: return a(192 + ((e-8)*4 + X)*4, 4)
    return v(144 + ((e-12)*4 + X)*4, 4)
def hreg(s_, e): return a((e*2 + s_)*4, 4)
J_ACC = lambda s_, nb: 16 + (s_*2 + nb)*4
J_CS = lambda nb: 32 + nb*4
J_SUM = lambda s_: 40 + 4*s_
J_GR = lambda s_: 48 + 4*s_
def ctr_off(kind): return 32*kind

def gelu8(q, x, t, nmu, cs, P0, P1, IR):
    q.I(f"v_fma_f32 {v(x)}, {v(nmu)}, {v(cs)}, {v(x)}")
    q.I(f"v_mul_f32 {v(t)}, {v(x)}, {v(x)}")
    q.I(f"v_fma_f32 {v(t)}, {v(t)}, {v(P1)}, {v(P0)}")
    q.I(f"v_mul_f32 {v(t)}, {v(t)}, {v(x)}")
    q.I(f"v_exp_f32 {v(t)}, {v(t)}")
    q.I(f"v_fma_f32 {v(t)}, {v(t)}, {v(IR)}, {v(IR)}")
    q.I(f"v_rcp_f32 {v(t)}, {v(t)}")
    q.I(f"v_mul_f32 {v(x)}, {v(x)}, {v(t)}")
def gelu_consts(I, r, P0, P1, IR):
    I(f"v_mul_f32 {v(P1)}, {v(r)}, {v(r)}"); I(f"v_rcp_f32 {v(IR)}, {v(r)}")
    I(f"v_mul_f32 {v(P1)}, {v(P1)}, {v(r)}"); I(f"v_mul_f32 {v(P0)}, 0x{f2u(GC0):x}, {v(r)}"); I(f"v_mul_f32 {v(P1)}, 0x{f2u(GC1):x}, {v(P1)}")

class AGen(AttnGen):
    def __init__(self, opts=None):
        opts = dict(opts or {}); opts.setdefault('lsum', 0)
        super().__init__(stamps=False, opts=opts)
        for k_, v_ in dict(j3=1, j3v=2, xmap=1, hrate=1.5, nx0=4, chk=4, mz=1, pfq=1, pfx=0, pf3=0, cpf=1, opad=1024, pfw=0, wp=2, wpl=1, wpad=1024, nopoll=0, ph=(1, 48, 64), st=('j1', 'qp', 'j2', 'ft', 'loop', 'epi')).items(): self.o.setdefault(k_, v_)
        self.vmq = []; self.vm_out = 0; self.lgq = []; self.tail = False; self.wpr = 208 if self.o['wp'] == 2 else 0
    def ms(self, name):
        if name in self.o['st']: mid_stamp(self.I, self.o['st'].index(name))
    def vm(self, tag, n=1): self.vmq += [tag]*n
    def wait_for(self, tag):
        idx = max(i for i, e in enumerate(self.vmq) if e == tag)
        return len(self.vmq) - 1 - idx
    def waitvm(self, tag):
        n = self.wait_for(tag)
        if n < self.vm_out: self.I(f"s_waitcnt vmcnt({n})")
    def emit(self, ins):
        if ins.kind == 'vmem':
            if self.vm_out >= 62: self.p.add(Ins("s_waitcnt vmcnt(54)")); self.vm_out = 54
            self.vm_out += 1
        if ins.op == 's_waitcnt':
            m = re.search(r'vmcnt\((\d+)\)', ins.text)
            if m: self.vm_out = min(self.vm_out, int(m.group(1)))
        self.p.add(ins); return ins

    def prologue_setup(self):
        I = self.I
        I("s_cmp_ge_u32 s2, 256")
        I("s_cbranch_scc1 L_a_end")
        I(f"s_load_dwordx2 {s(S_X,2)}, s[0:1], {ARG_X}")
        I(f"s_load_dwordx2 {s(S_W1,2)}, s[0:1], {ARG_W1}")
        I(f"s_load_dwordx2 {s(S_WQ,2)}, s[0:1], {ARG_WQ}")
        I(f"s_load_dwordx2 {s(S_K,2)}, s[0:1], {ARG_K}")
        I(f"s_load_dwordx2 {s(S_V,2)}, s[0:1], {ARG_V}")
        I(f"s_load_dwordx2 {s(S_W2,2)}, s[0:1], {ARG_W2}")
        I(f"s_load_dwordx2 {s(S_WS,2)}, s[0:1], {ARG_WS}")
        I(f"s_load_dwordx2 {s(S_DBG,2)}, s[0:1], {ARG_DBG}")
        if self.o['wp'] == 2: I(f"s_load_dwordx2 s[92:93], s[0:1], {ARG_W4}"); I(f"s_load_dwordx2 s[94:95], s[0:1], {ARG_WO}")
        I(f"v_lshrrev_b32 v1, 6, v0")
        I(f"s_and_b32 {s(S_T0)}, s2, 7")
        I(f"v_readfirstlane_b32 {s(S_W)}, v1")
        I(f"s_lshr_b32 {s(S_T1)}, s2, 3")
        I(f"s_and_b32 {s(S_HEAD)}, {s(S_T1)}, 3")
        I(f"s_lshl_b32 {s(S_T0)}, {s(S_T0)}, 2")
        I(f"s_add_u32 {s(S_HEAD)}, {s(S_HEAD)}, {s(S_T0)}")
        I(f"s_lshr_b32 {s(S_QB)}, s2, 5")
        if self.o['xmap']:
            I(f"s_bfe_u32 {s(S_PAR)}, {s(S_HEAD)}, 0x10002"); I(f"s_lshr_b32 {s(S_CT)}, {s(S_HEAD)}, 3"); I(f"s_lshl_b32 {s(S_CT)}, {s(S_CT)}, 2")
            I(f"s_and_b32 {s(S_T0)}, {s(S_HEAD)}, 3"); I(f"s_or_b32 {s(S_CT)}, {s(S_CT)}, {s(S_T0)}")
        else:
            I(f"s_and_b32 {s(S_PAR)}, {s(S_HEAD)}, 1"); I(f"s_lshr_b32 {s(S_CT)}, {s(S_HEAD)}, 1")
        I(f"s_lshl_b32 {s(S_T0)}, {s(S_QB)}, 4"); I(f"s_lshl_b32 {s(S_T1)}, {s(S_W)}, 2"); I(f"s_add_u32 {s(S_T0)}, {s(S_T0)}, {s(S_T1)}")
        I(f"s_lshl_b32 {s(S_T1)}, {s(S_PAR)}, 1"); I(f"s_add_u32 {s(S_R01)}, {s(S_T0)}, {s(S_T1)}")
        I(f"s_add_u32 {s(S_R23)}, {s(S_T0)}, 2"); I(f"s_sub_u32 {s(S_R23)}, {s(S_R23)}, {s(S_T1)}")
        I(f"s_lshl_b32 {s(S_X01)}, {s(S_R01)}, 14"); I(f"s_lshl_b32 {s(S_X23)}, {s(S_R23)}, 14")
        I("v_and_b32 v1, 63, v0")
        I(f"v_lshlrev_b32 {v(V_L16)}, 4, v1")
        I("v_and_b32 v2, 15, v1"); I("v_lshrrev_b32 v5, 4, v1")
        I("v_lshrrev_b32 v8, 3, v1"); I("v_and_b32 v9, 7, v1"); I("v_xor_b32 v9, v9, v8"); I("v_lshlrev_b32 v9, 4, v9"); I("v_lshl_add_u32 v3, v8, 10, v9")
        I("v_lshrrev_b32 v8, 2, v1"); I("v_lshlrev_b32 v8, 10, v8"); I("v_and_b32 v9, 3, v1")
        I("v_lshrrev_b32 v4, 5, v1"); I("v_lshlrev_b32 v4, 1, v4"); I("v_xor_b32 v4, v4, v9"); I("v_lshl_add_u32 v6, v4, 4, v8")
        I("v_bfe_u32 v4, v1, 4, 1"); I("v_lshlrev_b32 v4, 1, v4"); I("v_xor_b32 v4, v4, v9"); I(f"v_lshl_add_u32 {v(15)}, v4, 4, v8")
        I("s_waitcnt lgkmcnt(0)")
        def fin(S_, size):
            I(f"s_mov_b32 {s(S_+2)}, {size}"); I(f"s_mov_b32 {s(S_+3)}, 0x20000")
        fin(S_X, "0x200000")
        I(f"s_lshl_b32 {s(S_T0)}, {s(S_HEAD)}, 8")
        I(f"s_add_u32 {s(S_WQ)}, {s(S_WQ)}, {s(S_T0)}"); I(f"s_addc_u32 {s(S_WQ+1)}, {s(S_WQ+1)}, 0")
        I(f"s_sub_u32 {s(S_WQ+2)}, 0x400000, {s(S_T0)}"); I(f"s_mov_b32 {s(S_WQ+3)}, 0x20000")
        I(f"s_lshl_b32 {s(S_T0)}, {s(S_CT)}, 6")
        for S_ in (S_W1, S_W2):
            I(f"s_add_u32 {s(S_)}, {s(S_)}, {s(S_T0)}"); I(f"s_addc_u32 {s(S_+1)}, {s(S_+1)}, 0")
            I(f"s_sub_u32 {s(S_+2)}, 0x80000, {s(S_T0)}"); I(f"s_mov_b32 {s(S_+3)}, 0x20000")
        I(f"s_lshl_b32 {s(S_M0S)}, {s(S_W)}, 13"); I(f"s_add_u32 {s(S_M0S)}, {s(S_M0S)}, {LDS_S0}")
        self.slice_dma(S_W1, 6, 'w1', 'S0')
        I(f"s_lshl_b32 {s(S_T0)}, {s(S_W)}, 12")
        I(f"s_mov_b32 {s(S_M0K)}, {s(S_T0)}")
        I(f"s_add_u32 {s(S_M0V)}, {s(S_T0)}, {LDS_V}")
        for k in range(self.o['nx0']): self.x_dma(0, k)
        if self.o['pfq']:
            I("v_bfe_u32 v4, v1, 1, 4"); I("v_lshlrev_b32 v4, 13, v4"); I("v_and_b32 v7, 1, v1"); I("v_lshl_add_u32 v4, v7, 7, v4")
            I(f"s_lshl_b32 {s(S_T0)}, {s(S_QB)}, 2"); I(f"s_add_u32 {s(S_T0)}, {s(S_T0)}, {s(S_W)}"); I(f"s_lshl_b32 {s(S_T0)}, {s(S_T0)}, 17")
            I(f"buffer_load_dword {v(V_POLL)}, v4, {s(S_WQ,4)}, {s(S_T0)} offen"); self.vm('pf')
        if self.o['pfx']:
            I("v_lshrrev_b32 v4, 3, v1"); I("v_lshlrev_b32 v4, 10, v4"); I("v_and_b32 v7, 7, v1"); I("v_lshl_add_u32 v4, v7, 7, v4")
            I(f"s_and_b32 {s(S_T0)}, {s(S_HEAD)}, 3"); I(f"s_lshl_b32 {s(S_T0)}, {s(S_T0)}, 13"); I(f"s_add_u32 {s(S_T0)}, {s(S_T0)}, {s(S_X23)}")
            I(f"buffer_load_dword {v(225)}, v4, {s(S_X,4)}, {s(S_T0)} offen"); self.vm('pf')
        if self.o['cpf']: self.code_prefetch("a_kernel", "L_final_kernel_end", "L_pc1", 4, 224, 6)
        I("v_and_b32 v1, 63, v0")
        I("v_xor_b32 v4, v5, v2"); I("v_lshlrev_b32 v4, 4, v4"); I("v_lshl_add_u32 v4, v2, 8, v4")
        I(f"s_lshl_b32 {s(S_T2)}, {s(S_W)}, 6"); I(f"v_xor_b32 v4, {s(S_T2)}, v4")
        for s_ in range(4): I(f"v_xor_b32 {v(V_AK+s_)}, {s_ << 6}, v4")
        I("v_lshrrev_b32 v8, 2, v1"); I("v_and_b32 v8, 3, v8")
        I("v_lshl_add_u32 v7, v5, 2, v8")
        I("v_and_b32 v9, 3, v1")
        I("v_and_b32 v4, 7, v7")
        I("v_lshlrev_b32 v10, 8, v7")
        I("v_lshl_add_u32 v11, v4, 5, v10"); I("v_lshl_add_u32 v11, v9, 3, v11")
        I(f"v_add_u32 v11, {LDS_V}, v11")
        for db in range(8): I(f"v_xor_b32 {v(V_AV+db)}, {db << 5}, v11")
        I("v_lshl_add_u32 v10, v5, 3, v8")
        I("v_lshlrev_b32 v12, 1, v4"); I("v_xor_b32 v12, v12, v9"); I("v_lshlrev_b32 v12, 4, v12"); I("v_lshl_add_u32 v12, v10, 8, v12")
        I(f"v_xor_b32 v12, {s(S_T2)}, v12")
        for e in range(4):
            I(f"v_xor_b32 {v(V_AW+e)}, {e << 6}, v12")
            I(f"v_add_u32 {v(V_AWV+e)}, {LDS_V}, {v(V_AW+e)}")
        I("v_and_b32 v12, 1, v5"); I("v_lshlrev_b32 v12, 5, v12"); I("v_lshl_add_u32 v12, v9, 3, v12"); I(f"v_add_u32 v12, {LDS_S0}, v12")
        I(f"v_lshl_add_u32 {v(222)}, v10, 6, v12"); I(f"v_xor_b32 {v(223)}, 32, {v(222)}")
        I(f"v_lshl_add_u32 {v(228)}, v7, 6, v12")
        for jj in range(4):
            I(f"v_add_u32 v8, {4*jj}, v5"); I("v_xor_b32 v8, v8, v2"); I("v_lshlrev_b32 v8, 4, v8")
            I(f"v_lshl_add_u32 {v(V_DK+jj)}, v5, 8, v8")
        for pj in range(2):
            I(f"v_add_u32 v8, {4*pj}, v5"); I("v_lshlrev_b32 v8, 1, v8"); I("v_xor_b32 v8, v8, v2"); I("v_lshlrev_b32 v8, 4, v8")
            I(f"v_lshl_add_u32 {v(V_DV+pj)}, v5, 8, v8")
            I(f"v_lshl_add_u32 {v(V_DW+pj)}, v5, 13, v8")
        I(f"s_lshl_b32 {s(S_T0)}, {s(S_HEAD)}, 19")
        for S_ in (S_K, S_V):
            I(f"s_add_u32 {s(S_)}, {s(S_)}, {s(S_T0)}"); I(f"s_addc_u32 {s(S_+1)}, {s(S_+1)}, 0")
            fin(S_, "0x80000")
        I(f"s_add_u32 {s(S_H)}, {s(S_WS)}, {WS_H}"); I(f"s_addc_u32 {s(S_H+1)}, {s(S_WS+1)}, 0"); fin(S_H, "0x200000")
        fin(S_WS, hex(44*MB)); fin(S_DBG, "0x100")
        I(f"s_lshl_b32 {s(S_T0)}, {s(S_W)}, 12")
        I(f"s_mov_b32 {s(S_KOFF)}, {s(S_T0)}")
        I(f"s_mov_b32 {s(S_VOFF)}, {s(S_T0)}")
        I(f"s_lshl_b32 {s(S_WOFF)}, {s(S_W)}, 17")
        I(f"s_mov_b32 {s(S_THR)}, {'0x41500000' if KA.LSUM else '0x46000000'}")
        I(f"v_mov_b32 {v(V_THR)}, {s(S_THR)}")
        I(f"s_mov_b32 {s(S_SCALE)}, 0x3e0293ee")
        I("v_min_u32 v4, 2, v1"); I(f"v_add_u32 v4, {s(S_QB)}, v4"); I("v_max_u32 v4, 1, v4"); I("v_min_u32 v4, 8, v4"); I("v_subrev_u32 v4, 1, v4")
        I("v_and_b32 v8, 3, v4"); I("v_lshlrev_b32 v8, 6, v8"); I("v_lshrrev_b32 v4, 2, v4"); I(f"v_lshl_add_u32 {v(V_POLLA)}, v4, 2, v8")
        I(f"s_and_b32 {s(S_C0)}, {s(S_QB)}, 3"); I(f"s_lshl_b32 {s(S_C0)}, {s(S_C0)}, 6"); I(f"s_lshr_b32 {s(S_C1)}, {s(S_QB)}, 2"); I(f"s_lshl_b32 {s(S_C1)}, {s(S_C1)}, 2")
        I(f"s_add_u32 {s(S_C0)}, {s(S_C0)}, {s(S_C1)}")
        for k in range(4): I(f"v_mov_b32 {v(V_ONES+k)}, 0x3f803f80")
        I("v_and_b32 v8, 7, v2"); I("v_xor_b32 v8, v8, v5"); I("v_lshlrev_b32 v8, 4, v8"); I("v_lshl_add_u32 v8, v2, 7, v8")
        I(f"v_add_u32 v4, {s(S_M0K)}, v8"); I("v_xor_b32 v5, 64, v4"); I(f"v_add_u32 v6, {LDS_V}, v4"); I(f"v_add_u32 v7, {LDS_V}, v5")

    def x_dma_op(self, half, k, i):
        I = self.I
        reg, slot = self.WSLOT[k]
        s_, j = i >> 1, i & 1
        imm = s_*2048 + j*1024
        I(f"s_add_u32 m0, {s(S_M0K if reg == 'K' else S_M0V)}, {slot*SLOT}")
        I(f"s_add_u32 {s(S_T0)}, {s(S_X01 if half == 0 else S_X23)}, {s_*16384 + j*8192 + k*128 - imm}")
        I(f"buffer_load_dwordx4 v3, {s(S_X,4)}, {s(S_T0)} offen offset:{imm} lds", lds_w=(reg, slot, 'x')); self.vm(('x', half, k))
    def x_dma(self, half, k):
        for i in range(4): self.x_dma_op(half, k, i)
    def x_read(self, half, k):
        reg, slot = self.WSLOT[k]
        for e2 in range(2):
            for s_ in range(2):
                ar = (4 if reg == 'K' else 6) + e2
                self.I(f"ds_read_b128 {xreg(2*half + s_, 2*k + e2)}, {v(ar)} offset:{slot*SLOT + s_*2048}", lds_r=(reg, slot, 'xr')); self.lg(('xr', half, k))
    def x23_stage(self, k0, k1):
        for k in range(k0, k1):
            self.waitvm(('x', 1, k)); self.x_read(1, k)
            if k > k0: self.waitlg(('xr', 1, k-1)); self.wq_dma(k-1)
        self.waitlg(('xr', 1, k1-1)); self.wq_dma(k1-1)
    def lg(self, tag): self.lgq.append(tag)
    def waitlg(self, tag):
        idx = max(i for i, e in enumerate(self.lgq) if e == tag)
        self.I(f"s_waitcnt lgkmcnt({min(15, len(self.lgq) - 1 - idx)})")

    def code_prefetch(self, lo, hi, lab, vt, dst, nper):
        I = self.I
        I(f"s_getpc_b64 {s(S_WT,2)}")
        self.p.L(lab)
        I(f"s_add_u32 {s(S_WT)}, {s(S_WT)}, {lo} - {lab}") ; I(f"s_addc_u32 {s(S_WT+1)}, {s(S_WT+1)}, {'0' if True else ''}") if not lo.startswith('a_kernel') else None
        if lo.startswith('a_kernel'):
            self.p.items.pop()
            I(f"s_sub_u32 {s(S_WT)}, {s(S_WT)}, {lab} - {lo}"); I(f"s_subb_u32 {s(S_WT+1)}, {s(S_WT+1)}, 0")
        I(f"s_lshr_b32 {s(S_T0)}, s2, 3"); I(f"s_lshl_b32 {s(S_T0)}, {s(S_T0)}, 2"); I(f"s_add_u32 {s(S_T0)}, {s(S_T0)}, {s(S_W)}"); I(f"s_mul_i32 {s(S_T0)}, {s(S_T0)}, {nper}")
        I(f"v_lshrrev_b32 {v(vt)}, 4, {v(V_L16)}"); I(f"v_min_u32 {v(vt)}, {nper - 1}, {v(vt)}"); I(f"v_add_u32 {v(vt)}, {s(S_T0)}, {v(vt)}")
        I(f"v_min_u32 {v(vt)}, (({hi} - {lo}) >> 7) - 1, {v(vt)}"); I(f"v_lshlrev_b32 {v(vt)}, 7, {v(vt)}")
        I(f"global_load_dword {v(dst)}, {v(vt)}, {s(S_WT,2)}"); self.vm('cpf')

    def slice_dma_op(self, srd, vo, tag, region, i):
        I = self.I
        h, jj = i >> 2, i & 3
        I(f"s_add_u32 m0, {s(S_M0S)}, {h*4096}")
        I(f"s_lshl_b32 {s(S_T0)}, {s(S_W)}, 17")
        I(f"s_add_u32 {s(S_T0)}, {s(S_T0)}, {(4*h + jj)*16384 - jj*1024}")
        I(f"buffer_load_dwordx4 {v(vo)}, {s(srd,4)}, {s(S_T0)} offen offset:{jj*1024} lds", lds_w=region); self.vm(tag)
    def slice_dma(self, srd, vo, tag, region):
        for i in range(8): self.slice_dma_op(srd, vo, tag, region, i)
    def kv_op(self, which, tile, jj):
        base = S_M0K if which == 'K' else S_M0V
        self.I(f"s_add_u32 m0, {s(base)}, {(tile & 3)*SLOT}")
        self.I("s_nop 0")
        self.emit_dma(which, tile, jj); self.vm(('kv', (which, tile)))
        if jj == 3:
            off = S_KOFF if which == 'K' else S_VOFF
            self.I(f"s_add_u32 {s(off)}, {s(off)}, {SLOT}")

    def wq_dma(self, c):
        reg, slot = self.WSLOT[c]
        base = S_M0K if reg == 'K' else S_M0V
        self.I(f"s_add_u32 m0, {s(base)}, {slot*SLOT}")
        for jj in range(4):
            self.I(f"s_add_u32 {s(S_T0)}, {s(S_WOFF)}, {(64*c + 4*jj)*8192 - jj*1024}")
            self.I(f"buffer_load_dwordx4 {v(V_DW+(jj>>1))}, {s(S_WQ,4)}, {s(S_T0)} offen offset:{jj*1024} lds", lds_w=(reg, slot)); self.vm(('w', c))
    def wread(self, rho):
        phi, t = rho >> 1, rho & 1
        c, e2, nb = phi >> 4, (phi >> 3) & 1, phi & 7
        ep, b = nb >> 1, nb & 1
        reg, slot = self.WSLOT[c]
        ar = (V_AW if reg == 'K' else V_AWV) + ep
        return Ins(f"ds_read_b64_tr_b16 {a(A_WF + 4*(phi % NRQ) + 2*t, 2)}, {v(ar)} offset:{slot*SLOT + e2*8192 + t*1024 + 8*b}", lds_r=(reg, slot))

    def row_stats(self, s_, sum_txt, gr_regs, t=8, t2=9):
        I = self.I
        I(f"v_mov_b32 {v(t)}, 0")
        for r in range(4):
            I(f"s_mov_b32 vcc_lo, 0x{((1 | (1 << 20)) << r):x}"); I(f"s_mov_b32 vcc_hi, 0x{(((1 << 8) | (1 << 28)) << r) & 0xffffffff:x}")
            I(f"v_cndmask_b32 {v(t)}, {v(t)}, {v(gr_regs[r])}, vcc")
        for sw in ('16', '32'):
            I(f"v_mov_b32 {v(t2)}, {v(t)}"); I("s_nop 1"); I(f"v_permlane{sw}_swap_b32 {v(t)}, {v(t2)}"); I("s_nop 0"); I(f"v_add_f32 {v(t)}, {v(t)}, {v(t2)}")
        nm, rs = V_NMU + s_, V_RS + s_
        I(f"v_mul_f32 {v(nm)}, 0xbb000000, {sum_txt}")
        I(f"v_mul_f32 {v(t)}, 0x3b000000, {v(t)}")
        I(f"v_fma_f32 {v(t)}, -{v(nm)}, {v(nm)}, {v(t)}")
        I(f"v_max_f32 {v(t)}, 0, {v(t)}")
        I(f"v_add_f32 {v(t2)}, 0x3727c5ac, {v(t)}")
        I(f"v_rsq_f32 {v(rs)}, {v(t2)}")
        return t

    def j1(self):
        I = self.I
        NF = 32; LA = 4
        AJ = 222
        def rd(phi):
            e, nb = phi >> 1, phi & 1
            for t in range(2):
                self.emit(Ins(f"ds_read_b64_tr_b16 {a(A_WF + 4*(phi % 8) + 2*t, 2)}, {v(AJ+nb)} offset:{e*2048 + t*256}", lds_r='S0')); self.lg(('w1', phi))
        self.ms('s0')
        NX0 = self.o['nx0']
        ops = [(0, k) for k in range(NX0, 8)] + [(1, k) for k in range(8)]
        slot_ops = [[[] for _ in range(4)] for _ in range(8)]
        oi = 0
        for k in range(8):
            n_here = 1 if k + NX0 <= 7 else 2
            for j in range(n_here):
                if oi >= len(ops): break
                half, kk = ops[oi]
                if half == 1 and kk > k: break
                for i in range(4):
                    slot_ops[k][(i + j*4)//n_here if n_here == 2 else i].append(lambda half=half, kk=kk, i=i: self.x_dma_op(half, kk, i))
                oi += 1
        rest = ops[oi:]
        self.waitvm(('x', 0, 0)); self.x_read(0, 0)
        self.ms('x0')
        I("s_barrier")
        for phi in range(LA): rd(phi)
        nread = LA
        for e in range(16):
            k = e >> 1
            if e % 2 == 0:
                if k < 7: self.waitvm(('x', 0, k+1)); self.x_read(0, k+1)
                self.waitlg(('xr', 0, k))
            first = (e == 0)
            def M(d, A, B): I(f"{MFMA} {v(d,4)}, {A}, {B}, {'0' if first else v(d,4)}")
            for s_ in range(2):
                M(J_SUM(s_), v(V_ONES, 4), xreg(s_, e)); M(J_GR(s_), xreg(s_, e), xreg(s_, e))
            for nb in range(2):
                phi = 2*e + nb
                self.waitlg(('w1', phi))
                A = a(A_WF + 4*(phi % 8), 4)
                for s_ in range(2): M(J_ACC(s_, nb), A, xreg(s_, e))
                for f_ in slot_ops[k][2*(e & 1) + nb]: f_()
                M(J_CS(nb), A, v(V_ONES, 4))
                if nread < NF: rd(nread); nread += 1
        for (half, kk) in rest: self.x_dma(half, kk)
        self.ms('j1m')
        self.x23_stage(0, 2)
        self.ms('j1x')
        I("s_nop 7")
        for s_ in range(2):
            t = self.row_stats(s_, v(J_SUM(s_)), [J_GR(s_)+r for r in range(4)])
            I(f"v_mul_f32 {v(t)}, {v(t)}, {v(V_RS+s_)}"); I(f"v_mul_f32 {v(t)}, {v(t)}, {v(V_RS+s_)}")
            I(f"v_add_f32 {v(t)}, 0x3727c5ac, {v(t)}"); I(f"v_rsq_f32 {v(t)}, {v(t)}")
            I("s_nop 0")
            I(f"v_mul_f32 {v(60+s_)}, {v(t)}, {v(V_RS+s_)}")
            gelu_consts(I, 60+s_, 88+3*s_, 89+3*s_, 90+3*s_)
        seqs = []
        for s_ in range(2):
            for nb in range(2):
                for r in range(4):
                    q = Prog(); gelu8(q, J_ACC(s_, nb) + r, 64 + (s_*2+nb)*4 + r, V_NMU+s_, J_CS(nb)+r, 88+3*s_, 89+3*s_, 90+3*s_); seqs.append(q.items)
        self.p.extend(interleave(seqs))
        I(f"s_lshl_b32 {s(S_T0)}, {s(S_CT)}, 10"); I(f"s_add_u32 {s(S_T0)}, {s(S_T0)}, {s(S_X01)}")
        for s_ in range(2):
            for jj in range(4):
                x0 = J_ACC(s_, jj >> 1) + 2*(jj & 1)
                I(f"v_cvt_pk_bf16_f32 {v(80+s_*4+jj)}, {v(x0)}, {v(x0+1)}")
            I(f"buffer_store_dwordx4 {v(80+s_*4,4)}, {v(V_L16)}, {s(S_H,4)}, {s(S_T0)} offen offset:0 sc1" if s_ == 0 else
              f"buffer_store_dwordx4 {v(80+s_*4,4)}, {v(V_L16)}, {s(S_H,4)}, {s(S_T1)} offen offset:0 sc1"); self.vm('hst')
            if s_ == 0: I(f"s_add_u32 {s(S_T1)}, {s(S_T0)}, 16384")
        self.ms('j1s')
        self.x23_stage(2, 8)

    def signal(self, kind, lab):
        I = self.I
        I(f"s_cmp_lg_u32 {s(S_W)}, 0"); I(f"s_cbranch_scc1 {lab}")
        I("s_mov_b64 exec, 1")
        I("v_mov_b32 v8, 1"); I("v_mov_b32 v9, 0")
        I(f"buffer_atomic_add v8, v9, {s(S_DBG,4)}, {s(S_C0)} offen offset:{ctr_off(kind)} sc1")
        I("s_mov_b64 exec, -1")
        self.p.L(lab)
    def poll_issue(self, dst, addr, kind):
        self.I(f"buffer_load_dword {v(dst)}, {v(addr)}, {s(S_DBG,4)}, 0 offen offset:{ctr_off(kind)} sc1")
    def poll_check(self, dst, addr, kind, lab):
        I = self.I
        I(f"v_cmp_gt_u32 vcc, 32, {v(dst)}"); I("s_nop 0")
        I(f"s_cbranch_vccz {lab}_ok")
        save = self.vm_out
        I(f"s_mov_b32 {s(S_SPIN)}, 20000")
        self.p.L(f"{lab}_spin")
        I(f"buffer_load_dword {v(dst)}, {v(addr)}, {s(S_DBG,4)}, 0 offen offset:{ctr_off(kind)} sc1").nowarn = True
        I("s_waitcnt vmcnt(0)")
        I(f"v_cmp_gt_u32 vcc, 32, {v(dst)}"); I("s_nop 0")
        I(f"s_cbranch_vccz {lab}_ok")
        I(f"s_sub_u32 {s(S_SPIN)}, {s(S_SPIN)}, 1"); I(f"s_cmp_lg_u32 {s(S_SPIN)}, 0"); I(f"s_cbranch_scc1 {lab}_spin")
        self.p.L(f"{lab}_ok")
        self.vm_out = save

    def h_ops(self):
        I = self.I
        ops = []
        def setup():
            I(f"v_lshrrev_b32 v0, 4, {v(V_L16)}"); I("v_and_b32 v1, 15, v0"); I("v_and_b32 v8, 48, v0")
        def addr(cg, s_):
            dl = (1, -1, 2, -2)[cg]; dst = 2 + 2*(cg & 1) + s_
            I(f"s_add_u32 {s(S_T2)}, {s(S_R01)}, {s_}"); I(f"s_lshl_b32 {s(S_T2)}, {s(S_T2)}, 4")
            I(f"v_add_u32 v6, {s(S_T2)}, v1")
            I(f"v_subrev_u32 v6, {dl}, v6") if dl > 0 else I(f"v_add_u32 v6, {-dl}, v6")
            I(f"v_ashrrev_i32 v7, 4, v6"); I(f"v_lshlrev_b32 v7, 14, v7")
            I(f"v_and_b32 v6, 15, v6"); I(f"v_add_u32 v6, v6, v8"); I(f"v_lshl_add_u32 {v(dst)}, v6, 4, v7")
        def mk(e, s_):
            def f():
                cg = e >> 2
                if e == 0 and s_ == 0: setup()
                if (e & 3) == 0: addr(cg, s_)
                I(f"s_mov_b32 {s(S_T3)}, {cg*4096}")
                I(f"buffer_load_dwordx4 {hreg(s_, e)}, {v(2 + 2*(cg & 1) + s_)}, {s(S_H,4)}, {s(S_T3)} offen offset:{(e&3)*1024} sc1"); self.vm(('h', e))
            return f
        for e in range(16):
            for s_ in range(2): ops.append(mk(e, s_))
        def mkx(s_, nb):
            def f():
                if s_ == 0 and nb == 0:
                    I("v_lshlrev_b32 v6, 10, v1"); I("v_lshrrev_b32 v7, 1, v8"); I("v_add_u32 v0, v6, v7")
                I(f"s_lshl_b32 {s(S_T2)}, {s(S_CT)}, 6"); I(f"s_add_u32 {s(S_T2)}, {s(S_T2)}, {s(S_X01)}")
                if s_ == 1: I(f"s_add_u32 {s(S_T2)}, {s(S_T2)}, 16384")
                I(f"buffer_load_dwordx2 {v(V_XR + (s_*2+nb)*2, 2)}, v0, {s(S_X,4)}, {s(S_T2)} offen offset:{nb*32}"); self.vm('xr')
            return f
        for s_ in range(2):
            for nb in range(2): ops.append(mkx(s_, nb))
        return ops

    def qproj(self):
        I = self.I; p = self.p
        after_chunk = {0: ('K', 0), 1: ('K', 1), 2: ('V', 0), 3: ('K', 2), 4: ('V', 1), 5: ('V', 2)}
        PH_SIG, PH_POLL, PH_H = self.o['ph']
        PH_CHK = self.o['chk']; assert PH_H > 16*PH_CHK - 6 and PH_POLL < 16*PH_CHK - 6
        qa = []
        for i in range(8): qa.append((1 + i, (lambda i=i: self.slice_dma_op(S_W2, 15, 'w2', 'S0', i))))
        for c_, (w_, t_) in after_chunk.items():
            for jj in range(4): qa.append((16*(c_+1) + 10 + jj, (lambda w_=w_, t_=t_, jj=jj: self.kv_op(w_, t_, jj))))
        hops = self.h_ops()
        RATE = self.o['hrate']
        qb_ = [(PH_H + int(i*RATE), f) for i, f in enumerate(hops)]
        for i, (ph_, f) in enumerate(qb_):
            if i < 32: assert ph_ >= (32 if i < 16 else 64), (i, ph_)
        assert qb_[-1][0] <= 127
        self.waitvm(('w', 0)); I("s_barrier")
        for rho in range(2*LAGQ): self.emit(self.wread(rho))
        nread = 2*LAGQ
        for phi in range(128):
            c, e2, nb = phi >> 4, (phi >> 3) & 1, phi & 7
            e = 2*c + e2
            I(f"s_waitcnt lgkmcnt({nread - 2*(phi+1)})")
            A = a(A_WF + 4*(phi % NRQ), 4)
            for X in range(4):
                d = v(V_QACC + (X*8+nb)*4, 4)
                I(f"{MFMA} {d}, {A}, {xreg(X, e)}, {'0' if e == 0 else d}")
                if X in (0, 2) and nread < 256:
                    if nread % 32 == 0:
                        cn = nread >> 5
                        if cn == PH_SIG: self.waitvm('hst')
                        if cn == PH_CHK and not self.o['nopoll']:
                            self.waitvm('poll')
                            I(f"s_cmp_lg_u32 {s(S_W)}, 0"); I("s_cbranch_scc1 L_p1_ok")
                            self.poll_check(V_POLL, V_POLLA, 0, "L_p1")
                            self.ms('pc')
                        self.waitvm(('w', cn))
                        I("s_barrier")
                        if cn == PH_SIG: self.signal(0, "L_sig1")
                    self.emit(self.wread(nread)); nread += 1
                if X == 1 and qa and qa[0][0] <= phi: qa.pop(0)[1]()
                if X == 3 and qb_ and qb_[0][0] <= phi: qb_.pop(0)[1]()
            if nb < 2:
                d = v(V_CSQ + nb*4, 4)
                I(f"{MFMA} {d}, {A}, {v(V_ONES,4)}, {'0' if e == 0 else d}")
            elif nb < 6:
                k = nb - 2; s_ = k & 1
                d = a(A_ST23 + 4*k, 4)
                Aop = v(V_ONES, 4) if k < 2 else xreg(2+s_, e)
                I(f"{MFMA} {d}, {Aop}, {xreg(2+s_, e)}, {'0' if e == 0 else d}")
            self.ms(f'q{phi}')
            if phi == PH_POLL and not self.o['nopoll']:
                self.poll_issue(V_POLL, V_POLLA, 0); self.vm('poll')
        assert not qa and not qb_, (qa, qb_)
        self.ms('qp')

    def j2(self):
        I = self.I
        I(f"v_xor_b32 {v(229-1+0)}, 0, {v(228)}") if False else None
        I(f"v_xor_b32 v1, 32, {v(228)}")
        NF = 32; LA = 6; NR = 12
        def rd(phi):
            e, nb = phi >> 1, phi & 1
            for t in range(2):
                self.emit(Ins(f"ds_read_b64_tr_b16 {a(A_J2R + 4*(phi % NR) + 2*t, 2)}, {v(228) if nb == 0 else 'v1'} offset:{e*2048 + t*1024}", lds_r='S0'))
        self.waitvm('w2'); I("s_barrier")
        I(f"s_lshl_b32 {s(S_T0)}, {s(S_W)}, 11"); I(f"s_add_u32 {s(S_T0)}, {s(S_T0)}, {3*SLOT}")
        I(f"v_add_u32 v0, {s(S_T0)}, {v(V_L16)}")
        for b in range(2): I(f"ds_write_b128 v0, {v(V_CSQ+4*b,4)} offset:{b*1024}", lds_w=('K', 3))
        for phi in range(LA): rd(phi)
        nread = LA
        for e in range(16):
            if e % 2 == 0: self.waitvm(('h', e + 1))
            for nb in range(2):
                phi = 2*e + nb
                I(f"s_waitcnt lgkmcnt({min(15, 2*(nread - phi - 1))})")
                A = a(A_J2R + 4*(phi % NR), 4)
                for s_ in range(2):
                    d = a(A_J2ACC + (s_*2+nb)*4, 4)
                    I(f"{MFMA} {d}, {A}, {hreg(s_, e)}, {'0' if e == 0 else d}")
                if nread < NF: rd(nread); nread += 1
        for s_ in range(2):
            for r in range(4): I(f"v_accvgpr_read_b32 {v(208+r)}, {a(A_ST23 + 8 + 4*s_ + r)}")
            I(f"v_accvgpr_read_b32 {v(212)}, {a(A_ST23 + 4*s_)}")
            self.row_stats(2+s_, v(212), [208+r for r in range(4)], 213, 214)
        self.waitvm('xr')
        I(f"s_lshl_b32 {s(S_T0)}, {s(S_CT)}, 10"); I(f"s_add_u32 {s(S_T0)}, {s(S_T0)}, {s(S_X01)}"); I(f"s_add_u32 {s(S_T0)}, {s(S_T0)}, {WS_X1}")
        I(f"s_lshl_b32 {s(S_T1)}, {s(S_CT)}, 14"); I(f"s_lshl_b32 {s(S_T2)}, {s(S_R01)}, 7"); I(f"s_add_u32 {s(S_T1)}, {s(S_T1)}, {s(S_T2)}"); I(f"s_add_u32 {s(S_T1)}, {s(S_T1)}, {WS_STAT}")
        for s_ in range(2):
            acc, pk = 208, 216
            for j in range(8): I(f"v_accvgpr_read_b32 {v(acc+j)}, {a(A_J2ACC + s_*8 + j)}")
            if s_ == 0: I("s_waitcnt lgkmcnt(0)")
            for j in range(8):
                src = V_XR + s_*4 + (j >> 1)
                I(f"v_lshlrev_b32 v0, 16, {v(src)}") if (j & 1) == 0 else I(f"v_and_b32 v0, 0xffff0000, {v(src)}")
                I(f"v_add_f32 v0, v0, {v(V_NMU+s_)}")
                I(f"v_fma_f32 {v(acc+j)}, v0, {v(V_RS+s_)}, {v(acc+j)}")
            for jj in range(4): I(f"v_cvt_pk_bf16_f32 {v(pk+4*s_+jj)}, {v(acc+2*jj)}, {v(acc+2*jj+1)}")
            I(f"buffer_store_dwordx4 {v(pk+4*s_,4)}, {v(V_L16)}, {s(S_WS,4)}, {s(S_T0)} offen sc1"); self.vm('x1st')
            if s_ == 0: I(f"s_add_u32 {s(S_T0)}, {s(S_T0)}, 16384")
            sm, sq = 208 + 0, 209
            for jj in range(4):
                I(f"v_lshlrev_b32 v0, 16, {v(pk+4*s_+jj)}"); I(f"v_and_b32 v1, 0xffff0000, {v(pk+4*s_+jj)}")
                if jj == 0:
                    I(f"v_add_f32 {v(sm)}, v0, v1"); I(f"v_mul_f32 {v(sq)}, v0, v0")
                else:
                    I(f"v_add_f32 {v(sm)}, {v(sm)}, v0"); I(f"v_add_f32 {v(sm)}, {v(sm)}, v1"); I(f"v_fmac_f32 {v(sq)}, v0, v0")
                I(f"v_fmac_f32 {v(sq)}, v1, v1")
            for r_ in (sm, sq):
                for sw_ in ('16', '32'):
                    I(f"v_mov_b32 v0, {v(r_)}"); I("s_nop 1"); I(f"v_permlane{sw_}_swap_b32 {v(r_)}, v0"); I("s_nop 0"); I(f"v_add_f32 {v(r_)}, {v(r_)}, v0")
            I(f"v_lshrrev_b32 v0, 1, {v(V_L16)}")
            I("s_mov_b64 exec, 0xffff")
            I(f"buffer_store_dwordx2 {v(sm,2)}, v0, {s(S_WS,4)}, {s(S_T1)} offen offset:{s_*128} sc1"); self.vm('x1st')
            I("s_mov_b64 exec, -1")

    def wp_piece(self, i, store):
        if self.o['wp'] == 2: return self.wp_piece2(i, store)
        I = self.I
        I(f"s_lshl_b32 {s(S_T2)}, s2, 2"); I(f"s_add_u32 {s(S_T2)}, {s(S_T2)}, {s(S_W)}"); I(f"s_mul_i32 {s(S_T2)}, {s(S_T2)}, 6")
        I(f"s_add_u32 {s(S_T2)}, {s(S_T2)}, {i}"); I(f"s_min_u32 {s(S_T2)}, {s(S_T2)}, 5887")
        I(f"s_and_b32 {s(S_T3)}, {s(S_T2)}, 7")
        if not store:
            I(f"s_andn2_b32 {s(S_T0)}, {s(S_T2)}, 7")
            I(f"s_cmp_lt_u32 {s(S_T0)}, 1792")
            p4, po = (92, 94) if self.o['wp'] == 2 else (S_W2, S_H)
            I(f"s_cselect_b32 {s(S_WT)}, {s(p4)}, {s(po)}"); I(f"s_cselect_b32 {s(S_WT+1)}, {s(p4+1)}, {s(po+1)}")
            I(f"s_cselect_b32 {s(S_WT+2)}, {s(S_W2+2)}, {s(S_H+2)}"); I(f"s_cselect_b32 {s(S_T1)}, 0, 1792")
            I(f"s_mov_b32 {s(S_WT+3)}, 0x20000")
            I(f"s_sub_u32 {s(S_T0)}, {s(S_T0)}, {s(S_T1)}"); I(f"s_lshl_b32 {s(S_T0)}, {s(S_T0)}, 10")
            I(f"s_lshl_b32 {s(S_T3)}, {s(S_T3)}, 7"); I(f"s_add_u32 {s(S_T0)}, {s(S_T0)}, {s(S_T3)}")
            I(f"buffer_load_dwordx4 {a(self.wpr + 4*i, 4)}, v9, {s(S_WT,4)}, {s(S_T0)} offen"); self.vm('wpl')
        else:
            I(f"s_mul_i32 {s(S_T3)}, {s(S_T3)}, {92*8192 + self.o['wpad']}"); I(f"s_lshr_b32 {s(S_T2)}, {s(S_T2)}, 3")
            I(f"s_lshl_b32 {s(S_T2)}, {s(S_T2)}, 10"); I(f"s_add_u32 {s(S_T2)}, {s(S_T2)}, {s(S_T3)}"); I(f"s_add_u32 {s(S_T2)}, {s(S_T2)}, {WS_WP}")
            I(f"buffer_store_dwordx4 {a(self.wpr + 4*i, 4)}, {v(V_L16)}, {s(S_WS,4)}, {s(S_T2)} offen"); self.vm('wps')
    def wp_piece2(self, i, store):
        I = self.I
        I(f"s_add_u32 {s(S_T2)}, s69, {i}"); I(f"s_min_u32 {s(S_T2)}, {s(S_T2)}, s86")
        I(f"s_and_b32 {s(S_T3)}, {s(S_T2)}, 7"); I(f"s_lshr_b32 {s(S_T2)}, {s(S_T2)}, 3")
        if not store:
            I(f"s_lshl_b32 {s(S_T2)}, {s(S_T2)}, 13"); I(f"s_lshl_b32 {s(S_T3)}, {s(S_T3)}, 7"); I(f"s_add_u32 {s(S_T2)}, {s(S_T2)}, {s(S_T3)}")
            I(f"buffer_load_dwordx4 {a(self.wpr + 4*i, 4)}, v9, {s(S_WT,4)}, {s(S_T2)} offen"); self.vm('wpl')
        else:
            I(f"s_lshl_b32 {s(S_T2)}, {s(S_T2)}, 10"); I(f"s_mul_i32 {s(S_T3)}, {s(S_T3)}, {92*8192 + self.o['wpad']}")
            I(f"s_add_u32 {s(S_T2)}, {s(S_T2)}, {s(S_T3)}"); I(f"s_add_u32 {s(S_T2)}, {s(S_T2)}, s87")
            I(f"buffer_store_dwordx4 {a(self.wpr + 4*i, 4)}, {v(V_L16)}, {s(S_WS,4)}, {s(S_T2)} offen"); self.vm('wps')
    def wp_select(self):
        I = self.I
        I(f"s_lshl_b32 {s(S_T2)}, s2, 2"); I(f"s_add_u32 {s(S_T2)}, {s(S_T2)}, {s(S_W)}")
        I(f"s_mov_b32 {s(S_T3)}, {4096*1024}"); I(f"s_mov_b32 s86, 4095"); I(f"s_mov_b32 s87, {WS_WP + 224*1024}")
        I(f"s_cmp_lt_u32 {s(S_T2)}, 299")
        I(f"s_cselect_b32 {s(S_WT)}, s92, s94"); I(f"s_cselect_b32 {s(S_WT+1)}, s93, s95")
        I(f"s_cselect_b32 {s(S_WT+2)}, {1792*1024}, {s(S_T3)}"); I(f"s_cselect_b32 s86, 1791, s86"); I(f"s_cselect_b32 s87, {WS_WP}, s87")
        I(f"s_cselect_b32 {s(S_T3)}, 0, 299"); I(f"s_mov_b32 {s(S_WT+3)}, 0x20000")
        I(f"s_sub_u32 {s(S_T2)}, {s(S_T2)}, {s(S_T3)}"); I(f"s_mul_i32 s69, {s(S_T2)}, 6")
    def wp_setup(self):
        I = self.I
        I(f"v_lshrrev_b32 v6, 7, {v(V_L16)}"); I(f"v_bfe_u32 v7, {v(V_L16)}, 4, 3"); I("v_lshrrev_b32 v8, 1, v6"); I("v_lshlrev_b32 v8, 1, v8"); I("v_xor_b32 v8, v8, v7")
        I("v_lshlrev_b32 v8, 4, v8"); I("v_lshl_add_u32 v9, v6, 10, v8")
        I(f"s_mov_b32 {s(S_W2+2)}, {1792*1024}"); I(f"s_mov_b32 {s(S_H+2)}, {4096*1024}")

    def q_convert_and_first_tile(self, sched):
        I = self.I
        if self.o['wp'] == 2 and not self.o['wpl']:
            self.wp_setup(); self.wp_select()
            for i in range(6): self.wp_piece(i, False)
        vmq = self.vmq
        idx = max(max(i for i, e in enumerate(vmq) if e == ('kv', kk)) for kk in (('K', 0), ('K', 1), ('V', 0)))
        I(f"s_waitcnt vmcnt({len(vmq) - 1 - idx}) lgkmcnt(0)")
        I("s_barrier")
        for f in range(8): self.emit(kread(0, f))
        for X in range(4): I(f"v_mul_f32 {v(V_RS+X)}, {s(S_SCALE)}, {v(V_RS+X)}")
        CS = 208
        for h in range(2):
            for k in range(2):
                ep = 2*h + k
                I(f"s_xor_b32 {s(S_T0)}, {s(S_W)}, {ep}"); I(f"s_lshl_b32 {s(S_T0)}, {s(S_T0)}, 11"); I(f"s_add_u32 {s(S_T0)}, {s(S_T0)}, {3*SLOT}")
                I(f"v_add_u32 v{k}, {s(S_T0)}, {v(V_L16)}")
                for b in range(2): I(f"ds_read_b128 {v(CS + (k*2+b)*4, 4)}, v{k} offset:{b*1024}", lds_r=('K', 3))
            I("s_waitcnt lgkmcnt(0)")
            for X in range(4):
                pr = lambda base: v(base + (X & ~1), 2)
                hi = X & 1
                for k in range(2):
                    ep = 2*h + k
                    for b in range(2):
                        base = V_QACC + (X*8 + 2*ep + b)*4
                        for r in range(0, 4, 2):
                            I(f"v_pk_fma_f32 {v(base+r,2)}, {v(CS+(k*2+b)*4+r,2)}, {pr(V_NMU)}, {v(base+r,2)} op_sel:[0,{hi},0] op_sel_hi:[1,{hi},1]")
                        for r in range(0, 4, 2):
                            I(f"v_pk_mul_f32 {v(base+r,2)}, {v(base+r,2)}, {pr(V_RS)} op_sel:[0,{hi}] op_sel_hi:[1,{hi}]")
                        for jj in range(2):
                            I(f"v_cvt_pk_bf16_f32 {v(Qreg(X, ep) + 2*b + jj)}, {v(base+2*jj)}, {v(base+2*jj+1)}")
        I("s_waitcnt lgkmcnt(0)")
        zi = 0
        for z in range(4): I(f"v_mov_b32 v{z}, 0")
        for g in range(32):
            X, kb2, s_ = g >> 3, (g >> 2) & 1, g & 3
            d = v(Sreg(0, X, kb2), 4)
            I(f"{MFMA} {d}, {a(A_KF + (kb2*4+s_)*4, 4)}, {v(Qreg(X, s_), 4)}, {'0' if s_ == 0 else d}")
            if not self.o['mz']:
                for z in range(4):
                    I(f"v_accvgpr_write_b32 {a(A_O + zi)}, 0"); zi += 1
            elif g % 4 == 3:
                I(f"v_mfma_f32_32x32x16_bf16 {a(A_O + 16*(g >> 2), 16)}, v[0:3], v[0:3], 0")
        if KA.LSUM: I(f"v_mfma_f32_32x32x16_bf16 {a(KA.A_L, 16)}, v[0:3], v[0:3], 0")
        for f in range(8): self.emit(kread(1, f))
        if not KA.LSUM:
            for X in range(4): I(f"v_mov_b32 {v(V_L+X)}, 0")
        I("s_nop 3")
        for X in range(4):
            mx, t2 = V_TMP, V_TMP+1
            S0 = Sreg(0, X)
            I(f"v_max3_f32 {v(mx)}, {v(S0)}, {v(S0+1)}, {v(S0+2)}")
            I(f"v_max3_f32 {v(mx)}, {v(mx)}, {v(S0+3)}, {v(S0+4)}")
            I(f"v_max3_f32 {v(mx)}, {v(mx)}, {v(S0+5)}, {v(S0+6)}")
            I(f"v_max_f32 {v(mx)}, {v(mx)}, {v(S0+7)}")
            for sw in ('16', '32'):
                I(f"v_mov_b32 {v(t2)}, {v(mx)}")
                I("s_nop 1")
                I(f"v_permlane{sw}_swap_b32 {v(mx)}, {v(t2)}")
                I("s_nop 0")
                I(f"v_max_f32 {v(mx)}, {v(mx)}, {v(t2)}")
            for r in range(8): I(f"v_sub_f32 {v(S0+r)}, {v(S0+r)}, {v(mx)}")
            for r in range(4): I(f"v_sub_f32 {v(V_NEGM+X*4+r)}, 0, {v(mx)}")
        for g in range(self.G0, NG):
            self.gap_valu(-NG + g, sched)
        I(f"s_waitcnt vmcnt({6 if self.o['wp'] == 2 and not self.o['wpl'] else 0}) lgkmcnt(0)")
        I("s_barrier")
        self.signal(1, "L_sig2")
        if self.o['wp'] == 2 and self.o['wpl']:
            self.wp_setup(); self.wp_select()
            for i in range(6): self.wp_piece(i, False)
        I("v_and_b32 v1, 63, v0") if False else None

    W3SLOT = [('K', 0), ('V', 0), ('K', 1), ('V', 1), ('K', 2), ('V', 2), ('K', 3), ('V', 3)]
    def w3_dma_one(self, c, jj):
        reg, slot = self.W3SLOT[c]
        self.I(f"s_add_u32 {s(S_T0)}, {s(S_WOFF)}, {(64*c + 4*jj)*3584 - jj*1024}")
        self.I(f"buffer_load_dwordx4 {v(V_D3+(jj&1))}, {s(S_W1,4)}, {s(S_T0)} offen offset:{jj*1024} lds", lds_w=(reg, slot))
    def emit_dma(self, which, tile, jj):
        if tile >= 32:
            c = 2*(tile - 32) + (0 if which == 'K' else 1)
            self.w3_dma_one(c, jj); self.vm(('w3', c)); return
        super().emit_dma(which, tile, jj)
        if self.tail: self.vm(('t', tile))
    def j3_setup(self):
        I = self.I
        I(f"s_load_dwordx2 {s(S_W1,2)}, s[0:1], {ARG_W3}")
        if self.o['wp'] == 1: I(f"s_load_dwordx2 {s(S_W2,2)}, s[0:1], {ARG_W4}"); I(f"s_load_dwordx2 {s(S_H,2)}, s[0:1], {ARG_WO}")
        I(f"v_lshrrev_b32 v1, 4, {v(V_L16)}"); I("v_and_b32 v2, 15, v1"); I("v_lshrrev_b32 v5, 4, v1")
        I("v_mul_u32_u24 v9, 3584, v5")
        for pj in range(2):
            I(f"v_add_u32 v8, {4*pj}, v5"); I("v_lshlrev_b32 v8, 1, v8"); I("v_xor_b32 v8, v8, v2"); I("v_min_u32 v8, 13, v8"); I("v_lshlrev_b32 v8, 4, v8")
            I(f"v_add_u32 {v(V_D3+pj)}, v9, v8")
        I(f"v_mov_b32 {v(V_POLLA2)}, {s(S_C0)}")
        I("s_waitcnt lgkmcnt(0)")
        I(f"s_mul_i32 {s(S_T0)}, {s(S_CT)}, 224")
        I(f"s_add_u32 {s(S_W1)}, {s(S_W1)}, {s(S_T0)}"); I(f"s_addc_u32 {s(S_W1+1)}, {s(S_W1+1)}, 0")
        I(f"s_sub_u32 {s(S_W1+2)}, {512*3584}, {s(S_T0)}"); I(f"s_mov_b32 {s(S_W1+3)}, 0x20000")
        I(f"s_mul_i32 {s(S_WOFF)}, {s(S_W)}, {16*3584}")
        self.poll_issue(V_POLL2, V_POLLA2, 1); self.vm('poll2')
        if self.o['pf3']:
            I("v_lshrrev_b32 v2, 2, v1"); I("v_mul_u32_u24 v2, 3584, v2"); I("v_and_b32 v5, 3, v1"); I("v_min_u32 v5, 1, v5"); I("v_lshl_add_u32 v2, v5, 7, v2")
            I(f"s_lshl_b32 {s(S_T0)}, {s(S_QB)}, 2"); I(f"s_add_u32 {s(S_T0)}, {s(S_T0)}, {s(S_W)}"); I(f"s_mul_i32 {s(S_T0)}, {s(S_T0)}, {16*3584}")
            I(f"buffer_load_dword v140, v2, {s(S_W1,4)}, {s(S_T0)} offen"); self.vm('pf3')
            I(f"buffer_load_dword v141, v2, {s(S_W1,4)}, {s(S_T0)} offen offset:92"); self.vm('pf3')
        if self.o['cpf']: self.code_prefetch("L_j3", "L_final_kernel_end", "L_pc2", 2, 142, 2)
        if self.o['wp'] == 1: self.wp_setup()
        if self.o['pfw']:
            I(f"s_load_dwordx2 {s(S_W2,2)}, s[0:1], {ARG_WO}"); I(f"s_load_dwordx2 {s(S_H,2)}, s[0:1], {ARG_W4}")
            I(f"s_lshl_b32 {s(S_T0)}, s2, 2"); I(f"s_add_u32 {s(S_T0)}, {s(S_T0)}, {s(S_W)}")
            I("v_and_b32 v2, 31, v1"); I("v_lshlrev_b32 v2, 7, v2"); I("v_min_u32 v5, 13, v1"); I("v_lshlrev_b32 v5, 7, v5")
            I("s_waitcnt lgkmcnt(0)")
            I(f"s_mov_b32 {s(S_W2+2)}, {4096*1024}"); I(f"s_mov_b32 {s(S_W2+3)}, 0x20000"); I(f"s_mov_b32 {s(S_H+2)}, {1792*1024}"); I(f"s_mov_b32 {s(S_H+3)}, 0x20000")
            I(f"s_lshl_b32 {s(S_T1)}, {s(S_T0)}, 12"); I(f"s_mul_i32 {s(S_T0)}, {s(S_T0)}, {14*128}")
            I(f"buffer_load_dword v140, v2, {s(S_W2,4)}, {s(S_T1)} offen"); self.vm('pfw')
            I(f"buffer_load_dword v141, v5, {s(S_H,4)}, {s(S_T0)} offen"); self.vm('pfw')

    @staticmethod
    def x1reg(s_, e):
        if not KA.LSUM: return a(192 + (e*2 + s_)*4, 4) if e < 8 else v(16 + ((e-8)*2 + s_)*4, 4)
        return a(208 + (e*2 + s_)*4, 4) if e < 6 else v(16 + ((e-6)*2 + s_)*4, 4)
    def x1_op(self, s_, e):
        I = self.I
        I(f"s_add_u32 {s(S_T3)}, {s(S_X01)}, {WS_X1 + s_*16384 + (e & ~3)*1024}")
        I(f"buffer_load_dwordx4 {self.x1reg(s_, e)}, {v(V_L16)}, {s(S_WS,4)}, {s(S_T3)} offen offset:{(e&3)*1024} sc1"); self.vm(('x1', e))
    def st_op(self, k, s_):
        I = self.I
        if k == 0 and s_ == 0:
            I(f"v_lshrrev_b32 v1, 4, {v(V_L16)}"); I("v_and_b32 v2, 15, v1"); I("v_lshrrev_b32 v5, 4, v1")
            I("v_lshlrev_b32 v2, 3, v2"); I("v_lshl_add_u32 v2, v5, 16, v2")
        I(f"s_lshl_b32 {s(S_T2)}, {s(S_R01)}, 7"); I(f"s_add_u32 {s(S_T2)}, {s(S_T2)}, {WS_STAT + k*16384}")
        I(f"buffer_load_dwordx2 {v(208 + (s_*4+k)*2, 2)}, v2, {s(S_WS,4)}, {s(S_T2)} offen offset:{s_*128} sc1"); self.vm('st')

    def o_epilogue_items(self):
        q = []
        A = lambda t: q.append(Ins(t))
        for X in range(4):
            l, t2 = V_L + X, V_TMP + X
            if KA.LSUM: A(f"v_accvgpr_read_b32 {v(l)}, {a(KA.A_L + 4*X)}")
            else:
                for sw in ('16', '32'):
                    A(f"v_mov_b32 {v(t2)}, {v(l)}"); A("s_nop 1"); A(f"v_permlane{sw}_swap_b32 {v(l)}, {v(t2)}"); A("s_nop 0"); A(f"v_add_f32 {v(l)}, {v(l)}, {v(t2)}")
        for X in range(4): A(f"v_rcp_f32 {v(V_L + X)}, {v(V_L + X)}")
        stage = 96 if KA.LSUM else 80; n = 0; NS = 2 if KA.LSUM else 4
        for X in range(4):
            OST = 131072 + self.o['opad']
            A(f"s_lshl_b32 {s(S_OOFF)}, {s(S_HEAD)}, 12"); A(f"s_add_u32 {s(S_OOFF)}, {s(S_OOFF)}, {WS_O + (X & 1)*OST}")
            A(f"s_mul_i32 {s(S_C1)}, {s(S_R01 if X < 2 else S_R23)}, {OST}"); A(f"s_add_u32 {s(S_OOFF)}, {s(S_OOFF)}, {s(S_C1)}")
            for e in range(4):
                f = stage + (n % NS)*12; n += 1
                for j in range(8): A(f"v_accvgpr_read_b32 {v(f+j)}, {a(Oreg(X, 2*e + (j >> 2)) + (j & 3))}")
                for j in range(8): A(f"v_mul_f32 {v(f+j)}, {v(f+j)}, {v(V_L+X)}")
                for jj in range(4): A(f"v_cvt_pk_bf16_f32 {v(f+8+jj)}, {v(f+2*jj)}, {v(f+2*jj+1)}")
                q.append(('vm', f"buffer_store_dwordx4 {v(f+8,4)}, {v(V_L16)}, {s(S_WS,4)}, {s(S_OOFF)} offen offset:{e*1024}", 'ost'))
        return q

    def j3(self):
        I = self.I; p = self.p
        for c in range(7): I(f"v_subrev_u32 {v(V_A3K+c)}, {LDS_V}, {v(V_AV+c)}")
        I(f"s_lshl_b32 {s(S_T0)}, {s(S_W)}, 6")
        for c in range(2):
            I(f"v_xor_b32 {v(140+c)}, {s(S_T0)}, {v(V_AV+c)}"); I(f"v_subrev_u32 {v(142+c)}, {LDS_V}, {v(140+c)}")
        for k in range(4): I(f"v_mov_b32 {v(V_ONES+k)}, 0x3f803f80")
        ACC = lambda s_, cb: 144 + (s_*7 + cb)*4
        CSA = lambda c: 200 + 4*c
        blks = []
        for e in range(16):
            c = e >> 1; reg, slot = self.W3SLOT[c]; off = slot*SLOT + (e & 1)*8192
            for cb in range(7): blks.append((e, (V_AV if reg == 'V' else V_A3K) + cb, cb, False, off, (reg, slot)))
            for cb in range(2): blks.append((e, (140 if reg == 'V' else 142) + cb, cb, True, off, (reg, slot)))
        LA, NR = 9, 16
        vops = []
        for c in (6, 7):
            for jj in range(4):
                def f(c=c, jj=jj):
                    reg, slot = self.W3SLOT[c]
                    I(f"s_add_u32 m0, {s(S_M0K if reg == 'K' else S_M0V)}, {slot*SLOT}")
                    self.w3_dma_one(c, jj); self.vm(('w3', c))
                vops.append(f)
        for e in range(6 if KA.LSUM else 8, 16):
            for s_ in range(2): vops.append(lambda s_=s_, e=e: self.x1_op(s_, e))
        for k in range(4):
            for s_ in range(2): vops.append(lambda k=k, s_=s_: self.st_op(k, s_))
        side = self.o_epilogue_items()
        side.append(('wait', 'st'))
        for s_ in range(2):
            b = 208 + s_*8
            for j in range(2):
                side += [Ins(f"v_add_f32 {v(b+j)}, {v(b+j)}, {v(b+2+j)}"), Ins(f"v_add_f32 {v(b+4+j)}, {v(b+4+j)}, {v(b+6+j)}"), Ins(f"v_add_f32 {v(b+j)}, {v(b+j)}, {v(b+4+j)}")]
                for sw_ in ('16', '32'):
                    side += [Ins(f"v_mov_b32 v0, {v(b+j)}"), Ins("s_nop 1"), Ins(f"v_permlane{sw_}_swap_b32 {v(b+j)}, v0"), Ins("s_nop 0"), Ins(f"v_add_f32 {v(b+j)}, {v(b+j)}, v0")]
            side += [Ins(f"v_mul_f32 {v(b)}, 0xbb000000, {v(b)}"), Ins(f"v_mul_f32 {v(b+1)}, 0x3b000000, {v(b+1)}"),
                     Ins(f"v_fma_f32 {v(b+1)}, -{v(b)}, {v(b)}, {v(b+1)}"), Ins(f"v_max_f32 {v(b+1)}, 0, {v(b+1)}"),
                     Ins(f"v_add_f32 {v(b+1)}, 0x3727c5ac, {v(b+1)}"), Ins(f"v_rsq_f32 {v(b+1)}, {v(b+1)}")]
            q = Prog(); q.I("s_nop 0"); gelu_consts(q.I, b+1, b+2, b+3, b+4); side += q.items
        def drain(n):
            k = 0
            while side and k < n:
                it = side.pop(0)
                if isinstance(it, Ins):
                    self.emit(it); k += 0 if it.op.startswith('s_') else 1
                elif it[0] == 'vm': I(it[1]); self.vm(it[2]); k += 1
                else: self.waitvm(it[1])
        def issue_read(n):
            e, ar, cb, iscs, off, region = blks[n]
            c = e >> 1
            if n == 0 or (blks[n-1][0] >> 1) != c:
                if c in (0, 4, 6):
                    self.waitvm(('w3', {0: 3, 4: 5, 6: 7}[c])); I("s_barrier")
            r = A_WF + (n % NR)*4
            for t in range(2): I(f"ds_read_b64_tr_b16 {a(r+2*t,2)}, {v(ar)} offset:{off + t*4096}", lds_r=region)
        for n in range(LA): issue_read(n)
        nread = LA; nm = 0; nwp = 0; nside0 = len(side)
        for n, (e, ar, cb, iscs, off, region) in enumerate(blks):
            if (n == 0 or blks[n-1][0] != e): self.ms(f'e{e}')
            if (n == 0 or blks[n-1][0] != e) and (e & 1) == 0: self.waitvm(('x1', e + 1)); self.ms(f'w{e}')
            if n % 3 == 0: I(f"s_waitcnt lgkmcnt({max(0, 2*(nread - n - 3))})")
            A = a(A_WF + (n % NR)*4, 4)
            ms_ = [(CSA(cb), v(V_ONES, 4))] if iscs else [(ACC(s_, cb), self.x1reg(s_, e)) for s_ in range(2)]
            for i_, (d, B) in enumerate(ms_):
                I(f"{MFMA} {v(d,4)}, {A}, {B}, {'0' if e == 0 else v(d,4)}"); nm += 1
                if i_ == 0 and nread < len(blks): issue_read(nread); nread += 1
                elif vops and nm % 2 == 0: vops.pop(0)()
                elif self.o['wp'] == 1 and len(side) < nside0 - 110 and not vops and nm % 4 == 2 and nwp < 6:
                    assert not any(isinstance(it, Ins) and 'accvgpr_read' in it.text and int(it.text.split(', a')[1]) < 32 for it in side)
                    self.wp_piece(nwp, False); nwp += 1
                drain(self.o['j3v'] if nm > 4 else 0)
        assert not vops
        drain(10000)
        self.ms('j3m')
        I(f"s_lshl_b32 {s(S_T0)}, {s(S_W)}, 11"); I(f"s_add_u32 {s(S_T0)}, {s(S_T0)}, {LDS_S0}")
        I(f"v_add_u32 v0, {s(S_T0)}, {v(V_L16)}"); I(f"v_add_u32 v1, {LDS_S0}, {v(V_L16)}")
        for c in range(2): I(f"ds_write_b128 v0, {v(CSA(c),4)} offset:{c*1024}", lds_w='S0')
        I("s_waitcnt lgkmcnt(0)"); I("s_barrier")
        CS = 16
        for cb in range(7): I(f"ds_read_b128 {v(CS+cb*4,4)}, v1 offset:{cb*1024}", lds_r='S0')
        if self.o['wp'] == 1:
            assert nwp == 6
            self.waitvm('wpl')
            for i in range(6): self.wp_piece(i, True)
        I(f"s_mul_i32 {s(S_OOFF)}, {s(S_R01)}, {56*1024}"); I(f"s_add_u32 {s(S_OOFF)}, {s(S_OOFF)}, {WS_H2}")
        I(f"s_mul_i32 {s(S_T3)}, {s(S_CT)}, 7")
        for k, dst in ((0, S_T0), (1, S_T1)):
            I(f"s_add_u32 {s(S_T2)}, {s(S_T3)}, {k}"); I(f"s_lshr_b32 {s(dst)}, {s(S_T2)}, 1"); I(f"s_lshl_b32 {s(dst)}, {s(dst)}, 10")
            I(f"s_and_b32 {s(S_T2)}, {s(S_T2)}, 1"); I(f"s_lshl_b32 {s(S_T2)}, {s(S_T2)}, 3"); I(f"s_add_u32 {s(dst)}, {s(dst)}, {s(S_T2)}"); I(f"s_add_u32 {s(dst)}, {s(dst)}, {s(S_OOFF)}")
        I("s_waitcnt lgkmcnt(0)")
        for s_ in range(2):
            b = 208 + s_*8
            T0 = 48 + s_*28
            for half in (range(0, 4), range(4, 7)):
                seqs = []
                for cb in half:
                    for r_ in range(4):
                        q = Prog(); gelu8(q, ACC(s_, cb) + r_, T0 + cb*4 + r_, b, CS+cb*4+r_, b+2, b+3, b+4); seqs.append(q.items)
                p.extend(interleave(seqs))
                for cb in half:
                    x = ACC(s_, cb); o = 104 + (s_*7 + cb)*2
                    I(f"v_cvt_pk_bf16_f32 {v(o)}, {v(x)}, {v(x+1)}"); I(f"v_cvt_pk_bf16_f32 {v(o+1)}, {v(x+2)}, {v(x+3)}")
                    I(f"buffer_store_dwordx2 {v(o,2)}, {v(V_L16)}, {s(S_WS,4)}, {s(S_T0 if cb % 2 == 0 else S_T1)} offen offset:{(cb >> 1)*1024}"); self.vm('h2st')
            if s_ == 0:
                I(f"s_add_u32 {s(S_T0)}, {s(S_T0)}, {56*1024}"); I(f"s_add_u32 {s(S_T1)}, {s(S_T1)}, {56*1024}")

    def gen(self, name="a_kernel"):
        p = self.p; I = self.I
        p.raw(kernel_header(name))
        sched = self.build_valu()
        n0 = len(p.items)
        self.prologue_setup()
        self.j1()
        self.ms('j1')
        self.qproj()
        self.j2()
        self.ms('j2')
        self.q_convert_and_first_tile(sched)
        self.ms('ft')
        pro, npad = fix_hazards(p.items[n0:], name='pro')
        p.items[n0:] = pro
        self.I(f"s_mov_b32 {s(S_CNT)}, 7")
        p.raw(".p2align 6")
        p.L("L_attn_loop")
        loop_start = len(p.items)
        replay_at_entry = list(self.replay)
        for T in range(4):
            self.step(2*T, sched, dma_k=T+3)
            self.step(2*T+1, sched, dma_v=T+3, barrier=True, vmw=8)
        self.I(f"s_sub_u32 {s(S_CNT)}, {s(S_CNT)}, 1")
        self.I(f"s_cmp_lg_u32 {s(S_CNT)}, 0")
        self.I("s_cbranch_scc1 L_attn_loop")
        loop_end = len(p.items)
        ent = [(n, k, ins.text) for (n, k, ins, kind) in replay_at_entry]
        ext = [(n - 8, k, ins.text) for (n, k, ins, kind) in self.replay]
        assert ent == ext
        self.replay = [(n - 8 + 56, k, ins, kind) for (n, k, ins, kind) in self.replay]
        tail_start = len(p.items)
        self.vmq = [('t', 30)]*8; self.vm_out = 8; self.tail = True
        self.j3_setup()
        if self.o['wp'] == 2:
            for i in range(6): self.extra.setdefault((56, 2 + 4*i), []).append(lambda i=i: self.wp_piece(i, True))
        xo = [(s_, e) for e in range(6 if KA.LSUM else 8) for s_ in range(2)]
        for i_, (s_, e) in enumerate(xo):
            self.extra.setdefault((58 + i_ // 4, 34 + 4*(i_ % 4)), []).append(lambda s_=s_, e=e: self.x1_op(s_, e))
        def chk2():
            self.waitvm('poll2')
            I(f"s_cmp_lg_u32 {s(S_W)}, 0"); I("s_cbranch_scc1 L_p2_ok")
            self.poll_check(V_POLL2, V_POLLA2, 1, "L_p2")
        self.extra.setdefault((57, 62), []).append(chk2)
        for T in range(28, 32):
            dk = T + 3
            lastT = (T == 31)
            need = {28: ('cpf' if self.o['cpf'] else 'pfw' if self.o['pfw'] else 'pf3' if self.o['pf3'] else 'poll2'), 29: ('t', 31), 30: ('w3', 1), 31: None}[T]
            self.step(2*T, sched, dma_k=dk)
            self.step(2*T+1, sched, dma_v=dk, barrier=not lastT, vmw=(lambda need=need: min(self.wait_for(need), self.vm_out)), last=lastT)
        self.ms('loop')
        I("s_waitcnt lgkmcnt(0)")
        p.L("L_j3")
        self.j3()
        tail, npad2 = fix_hazards(p.items[tail_start:], name='tail', verbose=True)
        p.items[tail_start:] = tail
        p.L("L_a_end")
        self.I("s_endpgm")
        for (tr, lab, back) in self.tramps:
            p.L(tr); self.I(f"s_call_b64 {s(S_RET,2)}, {lab}"); self.I(f"s_branch {back}")
        for key, (lab, items) in self.rare.items(): p.extend(items)
        ins = lambda seq: [i for i in seq if isinstance(i, Ins) and not i.nowarn]
        body = ins(p.items[loop_start:loop_end])
        def strip_spin(seq):
            out = []; skip = False
            for i in seq:
                if isinstance(i, Label) and i.name.endswith('_spin'): skip = True; continue
                if isinstance(i, Label) and i.name.endswith('_ok'): skip = False; continue
                if isinstance(i, Ins) and not skip: out.append(i)
            return out
        trace = strip_spin(p.items[n0:loop_start]) + body + body + strip_spin(p.items[loop_end:loop_end + len(tail) + 2])
        e1 = check_hazards(trace, name); e2 = check_waitcnt(trace, name)
        self.stats = dict(pro=len(ins(pro)), loop=len(body), tail=len(ins(tail)), npad=npad, npad2=npad2, rare=len(self.rare))
        return p.text(), kernel_desc(name, 512, 96, 256), e1 + e2

if __name__ == "__main__":
    g = AGen(); t, d, errs = g.gen()
    print(g.stats)
    for e in errs[:40]: print(e)
    print(len(errs), "errors")
```

```python
import re
from asmgen import *
from layout import *
import k_attn16 as KA
from k_attn16 import *
from k_gemm import gelu_ops, f2u, GC0, GC1, interleave

LDS_S0 = 131072
LDS_BYTES_A = 163840
S_X, S_WS = S_XN, S_O
S_W1, S_W2, S_H, S_DBG = 44, 48, 52, 56
S_PAR, S_CT, S_R01 = 41, 42, 43
S_R23, S_X01, S_X23, S_T2, S_T3, S_M0S, S_SPIN, S_C0, S_C1 = 60, 61, 62, 63, 64, 65, 66, 67, 68
S_WT = 88
V_ONES = 10
V_XR = 2
V_CSQ = 218
V_NMU, V_RS = 230, 234
V_POLL, V_POLLA = 226, 227
V_POLL2, V_POLLA2 = 138, 139
V_D3 = 128
V_A3K = 130
A_J2ACC, A_J2R = 192, 208
A_ST23 = 176
NRQ, LAGQ = 12, 6
def xreg(X, e):
    if e < 8: return a((e*4 + X)*4, 4)
    if e < 12: return a(192 + ((e-8)*4 + X)*4, 4)
    return v(144 + ((e-12)*4 + X)*4, 4)
def hreg(s_, e): return a((e*2 + s_)*4, 4)
J_ACC = lambda s_, nb: 16 + (s_*2 + nb)*4
J_CS = lambda nb: 32 + nb*4
J_SUM = lambda s_: 40 + 4*s_
J_GR = lambda s_: 48 + 4*s_
def ctr_off(kind): return 32*kind

def gelu8(q, x, t, nmu, cs, P0, P1, IR):
    q.I(f"v_fma_f32 {v(x)}, {v(nmu)}, {v(cs)}, {v(x)}")
    q.I(f"v_mul_f32 {v(t)}, {v(x)}, {v(x)}")
    q.I(f"v_fma_f32 {v(t)}, {v(t)}, {v(P1)}, {v(P0)}")
    q.I(f"v_mul_f32 {v(t)}, {v(t)}, {v(x)}")
    q.I(f"v_exp_f32 {v(t)}, {v(t)}")
    q.I(f"v_fma_f32 {v(t)}, {v(t)}, {v(IR)}, {v(IR)}")
    q.I(f"v_rcp_f32 {v(t)}, {v(t)}")
    q.I(f"v_mul_f32 {v(x)}, {v(x)}, {v(t)}")
def gelu_consts(I, r, P0, P1, IR):
    I(f"v_mul_f32 {v(P1)}, {v(r)}, {v(r)}"); I(f"v_rcp_f32 {v(IR)}, {v(r)}")
    I(f"v_mul_f32 {v(P1)}, {v(P1)}, {v(r)}"); I(f"v_mul_f32 {v(P0)}, 0x{f2u(GC0):x}, {v(r)}"); I(f"v_mul_f32 {v(P1)}, 0x{f2u(GC1):x}, {v(P1)}")

class AGen(AttnGen):
    def __init__(self, opts=None):
        opts = dict(opts or {}); opts.setdefault('lsum', 0)
        super().__init__(stamps=False, opts=opts)
        for k_, v_ in dict(j3=1, j3v=1, xmap=1, hrate=1.5, nx0=4, chk=4, mz=1, pfq=1, pfx=0, pf3=0, cpf=1, opad=1024, pfw=0, wp=2, wpl=1, kst=4, kvl=3, wt=7, wpad=1024, nopoll=0, ph=(1, 48, 64), st=('j1', 'qp', 'j2', 'ft', 'loop', 'epi')).items(): self.o.setdefault(k_, v_)
        self.vmq = []; self.vm_out = 0; self.lgq = []; self.tail = False; self.wpr = 208 if self.o['wp'] == 2 else 0
    def ms(self, name):
        if name in self.o['st']: mid_stamp(self.I, self.o['st'].index(name))
    def vm(self, tag, n=1): self.vmq += [tag]*n
    def wait_for(self, tag):
        idx = max(i for i, e in enumerate(self.vmq) if e == tag)
        return len(self.vmq) - 1 - idx
    def waitvm(self, tag):
        n = self.wait_for(tag)
        if n < self.vm_out: self.I(f"s_waitcnt vmcnt({n})")
    def emit(self, ins):
        if ins.kind == 'vmem':
            if self.vm_out >= 62: self.p.add(Ins("s_waitcnt vmcnt(54)")); self.vm_out = 54
            self.vm_out += 1
        if ins.op == 's_waitcnt':
            m = re.search(r'vmcnt\((\d+)\)', ins.text)
            if m: self.vm_out = min(self.vm_out, int(m.group(1)))
        self.p.add(ins); return ins

    def prologue_setup(self):
        I = self.I
        I("s_cmp_ge_u32 s2, 256")
        I("s_cbranch_scc1 L_a_end")
        I(f"s_load_dwordx2 {s(S_X,2)}, s[0:1], {ARG_X}")
        I(f"s_load_dwordx2 {s(S_W1,2)}, s[0:1], {ARG_W1}")
        I(f"s_load_dwordx2 {s(S_WQ,2)}, s[0:1], {ARG_WQ}")
        I(f"s_load_dwordx2 {s(S_K,2)}, s[0:1], {ARG_K}")
        I(f"s_load_dwordx2 {s(S_V,2)}, s[0:1], {ARG_V}")
        I(f"s_load_dwordx2 {s(S_W2,2)}, s[0:1], {ARG_W2}")
        I(f"s_load_dwordx2 {s(S_WS,2)}, s[0:1], {ARG_WS}")
        I(f"s_load_dwordx2 {s(S_DBG,2)}, s[0:1], {ARG_DBG}")
        if self.o['wp'] == 2: I(f"s_load_dwordx2 s[92:93], s[0:1], {ARG_W4}"); I(f"s_load_dwordx2 s[94:95], s[0:1], {ARG_WO}")
        I(f"v_lshrrev_b32 v1, 6, v0")
        I(f"s_and_b32 {s(S_T0)}, s2, 7")
        I(f"v_readfirstlane_b32 {s(S_W)}, v1")
        I(f"s_lshr_b32 {s(S_T1)}, s2, 3")
        I(f"s_and_b32 {s(S_HEAD)}, {s(S_T1)}, 3")
        I(f"s_lshl_b32 {s(S_T0)}, {s(S_T0)}, 2")
        I(f"s_add_u32 {s(S_HEAD)}, {s(S_HEAD)}, {s(S_T0)}")
        I(f"s_lshr_b32 {s(S_QB)}, s2, 5")
        if self.o['xmap']:
            I(f"s_bfe_u32 {s(S_PAR)}, {s(S_HEAD)}, 0x10002"); I(f"s_lshr_b32 {s(S_CT)}, {s(S_HEAD)}, 3"); I(f"s_lshl_b32 {s(S_CT)}, {s(S_CT)}, 2")
            I(f"s_and_b32 {s(S_T0)}, {s(S_HEAD)}, 3"); I(f"s_or_b32 {s(S_CT)}, {s(S_CT)}, {s(S_T0)}")
        else:
            I(f"s_and_b32 {s(S_PAR)}, {s(S_HEAD)}, 1"); I(f"s_lshr_b32 {s(S_CT)}, {s(S_HEAD)}, 1")
        I(f"s_lshl_b32 {s(S_T0)}, {s(S_QB)}, 4"); I(f"s_lshl_b32 {s(S_T1)}, {s(S_W)}, 2"); I(f"s_add_u32 {s(S_T0)}, {s(S_T0)}, {s(S_T1)}")
        I(f"s_lshl_b32 {s(S_T1)}, {s(S_PAR)}, 1"); I(f"s_add_u32 {s(S_R01)}, {s(S_T0)}, {s(S_T1)}")
        I(f"s_add_u32 {s(S_R23)}, {s(S_T0)}, 2"); I(f"s_sub_u32 {s(S_R23)}, {s(S_R23)}, {s(S_T1)}")
        I(f"s_lshl_b32 {s(S_X01)}, {s(S_R01)}, 14"); I(f"s_lshl_b32 {s(S_X23)}, {s(S_R23)}, 14")
        I("v_and_b32 v1, 63, v0")
        I(f"v_lshlrev_b32 {v(V_L16)}, 4, v1")
        I("v_and_b32 v2, 15, v1"); I("v_lshrrev_b32 v5, 4, v1")
        I("v_lshrrev_b32 v8, 3, v1"); I("v_and_b32 v9, 7, v1"); I("v_xor_b32 v9, v9, v8"); I("v_lshlrev_b32 v9, 4, v9"); I("v_lshl_add_u32 v3, v8, 10, v9")
        I("v_lshrrev_b32 v8, 2, v1"); I("v_lshlrev_b32 v8, 10, v8"); I("v_and_b32 v9, 3, v1")
        I("v_lshrrev_b32 v4, 5, v1"); I("v_lshlrev_b32 v4, 1, v4"); I("v_xor_b32 v4, v4, v9"); I("v_lshl_add_u32 v6, v4, 4, v8")
        I("v_bfe_u32 v4, v1, 4, 1"); I("v_lshlrev_b32 v4, 1, v4"); I("v_xor_b32 v4, v4, v9"); I(f"v_lshl_add_u32 {v(15)}, v4, 4, v8")
        I("s_waitcnt lgkmcnt(0)")
        def fin(S_, size):
            I(f"s_mov_b32 {s(S_+2)}, {size}"); I(f"s_mov_b32 {s(S_+3)}, 0x20000")
        fin(S_X, "0x200000")
        I(f"s_lshl_b32 {s(S_T0)}, {s(S_HEAD)}, 8")
        I(f"s_add_u32 {s(S_WQ)}, {s(S_WQ)}, {s(S_T0)}"); I(f"s_addc_u32 {s(S_WQ+1)}, {s(S_WQ+1)}, 0")
        I(f"s_sub_u32 {s(S_WQ+2)}, 0x400000, {s(S_T0)}"); I(f"s_mov_b32 {s(S_WQ+3)}, 0x20000")
        I(f"s_lshl_b32 {s(S_T0)}, {s(S_CT)}, 6")
        for S_ in (S_W1, S_W2):
            I(f"s_add_u32 {s(S_)}, {s(S_)}, {s(S_T0)}"); I(f"s_addc_u32 {s(S_+1)}, {s(S_+1)}, 0")
            I(f"s_sub_u32 {s(S_+2)}, 0x80000, {s(S_T0)}"); I(f"s_mov_b32 {s(S_+3)}, 0x20000")
        I(f"s_lshl_b32 {s(S_M0S)}, {s(S_W)}, 13"); I(f"s_add_u32 {s(S_M0S)}, {s(S_M0S)}, {LDS_S0}")
        self.slice_dma(S_W1, 6, 'w1', 'S0')
        I(f"s_lshl_b32 {s(S_T0)}, {s(S_W)}, 12")
        I(f"s_mov_b32 {s(S_M0K)}, {s(S_T0)}")
        I(f"s_add_u32 {s(S_M0V)}, {s(S_T0)}, {LDS_V}")
        for k in range(self.o['nx0']): self.x_dma(0, k)
        if self.o['pfq']:
            I("v_bfe_u32 v4, v1, 1, 4"); I("v_lshlrev_b32 v4, 13, v4"); I("v_and_b32 v7, 1, v1"); I("v_lshl_add_u32 v4, v7, 7, v4")
            I(f"s_lshl_b32 {s(S_T0)}, {s(S_QB)}, 2"); I(f"s_add_u32 {s(S_T0)}, {s(S_T0)}, {s(S_W)}"); I(f"s_lshl_b32 {s(S_T0)}, {s(S_T0)}, 17")
            I(f"buffer_load_dword {v(V_POLL)}, v4, {s(S_WQ,4)}, {s(S_T0)} offen"); self.vm('pf')
        if self.o['pfx']:
            I("v_lshrrev_b32 v4, 3, v1"); I("v_lshlrev_b32 v4, 10, v4"); I("v_and_b32 v7, 7, v1"); I("v_lshl_add_u32 v4, v7, 7, v4")
            I(f"s_and_b32 {s(S_T0)}, {s(S_HEAD)}, 3"); I(f"s_lshl_b32 {s(S_T0)}, {s(S_T0)}, 13"); I(f"s_add_u32 {s(S_T0)}, {s(S_T0)}, {s(S_X23)}")
            I(f"buffer_load_dword {v(225)}, v4, {s(S_X,4)}, {s(S_T0)} offen"); self.vm('pf')
        if self.o['cpf']: self.code_prefetch("a_kernel", "L_final_kernel_end", "L_pc1", 4, 224, 6)
        I("v_and_b32 v1, 63, v0")
        I("v_xor_b32 v4, v5, v2"); I("v_lshlrev_b32 v4, 4, v4"); I("v_lshl_add_u32 v4, v2, 8, v4")
        I(f"s_lshl_b32 {s(S_T2)}, {s(S_W)}, 6"); I(f"v_xor_b32 v4, {s(S_T2)}, v4")
        for s_ in range(4): I(f"v_xor_b32 {v(V_AK+s_)}, {s_ << 6}, v4")
        I("v_lshrrev_b32 v8, 2, v1"); I("v_and_b32 v8, 3, v8")
        I("v_lshl_add_u32 v7, v5, 2, v8")
        I("v_and_b32 v9, 3, v1")
        I("v_and_b32 v4, 7, v7")
        I("v_lshlrev_b32 v10, 8, v7")
        I("v_lshl_add_u32 v11, v4, 5, v10"); I("v_lshl_add_u32 v11, v9, 3, v11")
        I(f"v_add_u32 v11, {LDS_V}, v11")
        for db in range(8): I(f"v_xor_b32 {v(V_AV+db)}, {db << 5}, v11")
        I("v_lshl_add_u32 v10, v5, 3, v8")
        I("v_lshlrev_b32 v12, 1, v4"); I("v_xor_b32 v12, v12, v9"); I("v_lshlrev_b32 v12, 4, v12"); I("v_lshl_add_u32 v12, v10, 8, v12")
        I(f"v_xor_b32 v12, {s(S_T2)}, v12")
        for e in range(4):
            I(f"v_xor_b32 {v(V_AW+e)}, {e << 6}, v12")
            I(f"v_add_u32 {v(V_AWV+e)}, {LDS_V}, {v(V_AW+e)}")
        I("v_and_b32 v12, 1, v5"); I("v_lshlrev_b32 v12, 5, v12"); I("v_lshl_add_u32 v12, v9, 3, v12"); I(f"v_add_u32 v12, {LDS_S0}, v12")
        I(f"v_lshl_add_u32 {v(222)}, v10, 6, v12"); I(f"v_xor_b32 {v(223)}, 32, {v(222)}")
        I(f"v_lshl_add_u32 {v(228)}, v7, 6, v12")
        for jj in range(4):
            I(f"v_add_u32 v8, {4*jj}, v5"); I("v_xor_b32 v8, v8, v2"); I("v_lshlrev_b32 v8, 4, v8")
            I(f"v_lshl_add_u32 {v(V_DK+jj)}, v5, 8, v8")
        for pj in range(2):
            I(f"v_add_u32 v8, {4*pj}, v5"); I("v_lshlrev_b32 v8, 1, v8"); I("v_xor_b32 v8, v8, v2"); I("v_lshlrev_b32 v8, 4, v8")
            I(f"v_lshl_add_u32 {v(V_DV+pj)}, v5, 8, v8")
            I(f"v_lshl_add_u32 {v(V_DW+pj)}, v5, 13, v8")
        I(f"s_lshl_b32 {s(S_T0)}, {s(S_HEAD)}, 19")
        for S_ in (S_K, S_V):
            I(f"s_add_u32 {s(S_)}, {s(S_)}, {s(S_T0)}"); I(f"s_addc_u32 {s(S_+1)}, {s(S_+1)}, 0")
            fin(S_, "0x80000")
        I(f"s_add_u32 {s(S_H)}, {s(S_WS)}, {WS_H}"); I(f"s_addc_u32 {s(S_H+1)}, {s(S_WS+1)}, 0"); fin(S_H, "0x200000")
        fin(S_WS, hex(44*MB)); fin(S_DBG, "0x100")
        I(f"s_lshl_b32 {s(S_T0)}, {s(S_W)}, 12")
        I(f"s_mov_b32 {s(S_KOFF)}, {s(S_T0)}")
        I(f"s_mov_b32 {s(S_VOFF)}, {s(S_T0)}")
        I(f"s_lshl_b32 {s(S_WOFF)}, {s(S_W)}, 17")
        I(f"s_mov_b32 {s(S_THR)}, {'0x41500000' if KA.LSUM else '0x46000000'}")
        I(f"v_mov_b32 {v(V_THR)}, {s(S_THR)}")
        I(f"s_mov_b32 {s(S_SCALE)}, 0x3e0293ee")
        I("v_min_u32 v4, 2, v1"); I(f"v_add_u32 v4, {s(S_QB)}, v4"); I("v_max_u32 v4, 1, v4"); I("v_min_u32 v4, 8, v4"); I("v_subrev_u32 v4, 1, v4")
        I("v_and_b32 v8, 3, v4"); I("v_lshlrev_b32 v8, 6, v8"); I("v_lshrrev_b32 v4, 2, v4"); I(f"v_lshl_add_u32 {v(V_POLLA)}, v4, 2, v8")
        I(f"s_and_b32 {s(S_C0)}, {s(S_QB)}, 3"); I(f"s_lshl_b32 {s(S_C0)}, {s(S_C0)}, 6"); I(f"s_lshr_b32 {s(S_C1)}, {s(S_QB)}, 2"); I(f"s_lshl_b32 {s(S_C1)}, {s(S_C1)}, 2")
        I(f"s_add_u32 {s(S_C0)}, {s(S_C0)}, {s(S_C1)}")
        for k in range(4): I(f"v_mov_b32 {v(V_ONES+k)}, 0x3f803f80")
        I("v_and_b32 v8, 7, v2"); I("v_xor_b32 v8, v8, v5"); I("v_lshlrev_b32 v8, 4, v8"); I("v_lshl_add_u32 v8, v2, 7, v8")
        I(f"v_add_u32 v4, {s(S_M0K)}, v8"); I("v_xor_b32 v5, 64, v4"); I(f"v_add_u32 v6, {LDS_V}, v4"); I(f"v_add_u32 v7, {LDS_V}, v5")

    def x_dma_op(self, half, k, i):
        I = self.I
        reg, slot = self.WSLOT[k]
        s_, j = i >> 1, i & 1
        imm = s_*2048 + j*1024
        I(f"s_add_u32 m0, {s(S_M0K if reg == 'K' else S_M0V)}, {slot*SLOT}")
        I(f"s_add_u32 {s(S_T0)}, {s(S_X01 if half == 0 else S_X23)}, {s_*16384 + j*8192 + k*128 - imm}")
        I(f"buffer_load_dwordx4 v3, {s(S_X,4)}, {s(S_T0)} offen offset:{imm} lds", lds_w=(reg, slot, 'x')); self.vm(('x', half, k))
    def x_dma(self, half, k):
        for i in range(4): self.x_dma_op(half, k, i)
    def x_read(self, half, k):
        reg, slot = self.WSLOT[k]
        for e2 in range(2):
            for s_ in range(2):
                ar = (4 if reg == 'K' else 6) + e2
                self.I(f"ds_read_b128 {xreg(2*half + s_, 2*k + e2)}, {v(ar)} offset:{slot*SLOT + s_*2048}", lds_r=(reg, slot, 'xr')); self.lg(('xr', half, k))
    def x23_stage(self, k0, k1):
        for k in range(k0, k1):
            self.waitvm(('x', 1, k)); self.x_read(1, k)
            if k > k0: self.waitlg(('xr', 1, k-1)); self.wq_dma(k-1)
        self.waitlg(('xr', 1, k1-1)); self.wq_dma(k1-1)
    def lg(self, tag): self.lgq.append(tag)
    def waitlg(self, tag):
        idx = max(i for i, e in enumerate(self.lgq) if e == tag)
        self.I(f"s_waitcnt lgkmcnt({min(15, len(self.lgq) - 1 - idx)})")

    def code_prefetch(self, lo, hi, lab, vt, dst, nper):
        I = self.I
        I(f"s_getpc_b64 {s(S_WT,2)}")
        self.p.L(lab)
        I(f"s_add_u32 {s(S_WT)}, {s(S_WT)}, {lo} - {lab}") ; I(f"s_addc_u32 {s(S_WT+1)}, {s(S_WT+1)}, {'0' if True else ''}") if not lo.startswith('a_kernel') else None
        if lo.startswith('a_kernel'):
            self.p.items.pop()
            I(f"s_sub_u32 {s(S_WT)}, {s(S_WT)}, {lab} - {lo}"); I(f"s_subb_u32 {s(S_WT+1)}, {s(S_WT+1)}, 0")
        I(f"s_lshr_b32 {s(S_T0)}, s2, 3"); I(f"s_lshl_b32 {s(S_T0)}, {s(S_T0)}, 2"); I(f"s_add_u32 {s(S_T0)}, {s(S_T0)}, {s(S_W)}"); I(f"s_mul_i32 {s(S_T0)}, {s(S_T0)}, {nper}")
        I(f"v_lshrrev_b32 {v(vt)}, 4, {v(V_L16)}"); I(f"v_min_u32 {v(vt)}, {nper - 1}, {v(vt)}"); I(f"v_add_u32 {v(vt)}, {s(S_T0)}, {v(vt)}")
        I(f"v_min_u32 {v(vt)}, (({hi} - {lo}) >> 7) - 1, {v(vt)}"); I(f"v_lshlrev_b32 {v(vt)}, 7, {v(vt)}")
        I(f"global_load_dword {v(dst)}, {v(vt)}, {s(S_WT,2)}"); self.vm('cpf')

    def slice_dma_op(self, srd, vo, tag, region, i):
        I = self.I
        h, jj = i >> 2, i & 3
        I(f"s_add_u32 m0, {s(S_M0S)}, {h*4096}")
        I(f"s_lshl_b32 {s(S_T0)}, {s(S_W)}, 17")
        I(f"s_add_u32 {s(S_T0)}, {s(S_T0)}, {(4*h + jj)*16384 - jj*1024}")
        I(f"buffer_load_dwordx4 {v(vo)}, {s(srd,4)}, {s(S_T0)} offen offset:{jj*1024} lds", lds_w=region); self.vm(tag)
    def slice_dma(self, srd, vo, tag, region):
        for i in range(8): self.slice_dma_op(srd, vo, tag, region, i)
    def kv_op(self, which, tile, jj):
        base = S_M0K if which == 'K' else S_M0V
        self.I(f"s_add_u32 m0, {s(base)}, {(tile & 3)*SLOT}")
        self.I("s_nop 0")
        self.emit_dma(which, tile, jj); self.vm(('kv', (which, tile)))
        if jj == 3:
            off = S_KOFF if which == 'K' else S_VOFF
            self.I(f"s_add_u32 {s(off)}, {s(off)}, {SLOT}")

    def wq_dma_op(self, c, jj):
        reg, slot = self.WSLOT[c]
        base = S_M0K if reg == 'K' else S_M0V
        self.I(f"s_add_u32 m0, {s(base)}, {slot*SLOT}")
        self.I(f"s_add_u32 {s(S_T0)}, {s(S_WOFF)}, {(64*c + 4*jj)*8192 - jj*1024}")
        self.I(f"buffer_load_dwordx4 {v(V_DW+(jj>>1))}, {s(S_WQ,4)}, {s(S_T0)} offen offset:{jj*1024} lds", lds_w=(reg, slot)); self.vm(('w', c))
    def wq_dma(self, c):
        for jj in range(4): self.wq_dma_op(c, jj)
    def wread(self, rho):
        phi, t = rho >> 1, rho & 1
        c, e2, nb = phi >> 4, (phi >> 3) & 1, phi & 7
        ep, b = nb >> 1, nb & 1
        reg, slot = self.WSLOT[c]
        ar = (V_AW if reg == 'K' else V_AWV) + ep
        return Ins(f"ds_read_b64_tr_b16 {a(A_WF + 4*(phi % NRQ) + 2*t, 2)}, {v(ar)} offset:{slot*SLOT + e2*8192 + t*1024 + 8*b}", lds_r=(reg, slot))

    def row_stats(self, s_, sum_txt, gr_regs, t=8, t2=9):
        I = self.I
        I(f"v_mov_b32 {v(t)}, 0")
        for r in range(4):
            I(f"s_mov_b32 vcc_lo, 0x{((1 | (1 << 20)) << r):x}"); I(f"s_mov_b32 vcc_hi, 0x{(((1 << 8) | (1 << 28)) << r) & 0xffffffff:x}")
            I(f"v_cndmask_b32 {v(t)}, {v(t)}, {v(gr_regs[r])}, vcc")
        for sw in ('16', '32'):
            I(f"v_mov_b32 {v(t2)}, {v(t)}"); I("s_nop 1"); I(f"v_permlane{sw}_swap_b32 {v(t)}, {v(t2)}"); I("s_nop 0"); I(f"v_add_f32 {v(t)}, {v(t)}, {v(t2)}")
        nm, rs = V_NMU + s_, V_RS + s_
        I(f"v_mul_f32 {v(nm)}, 0xbb000000, {sum_txt}")
        I(f"v_mul_f32 {v(t)}, 0x3b000000, {v(t)}")
        I(f"v_fma_f32 {v(t)}, -{v(nm)}, {v(nm)}, {v(t)}")
        I(f"v_max_f32 {v(t)}, 0, {v(t)}")
        I(f"v_add_f32 {v(t2)}, 0x3727c5ac, {v(t)}")
        I(f"v_rsq_f32 {v(rs)}, {v(t2)}")
        return t

    def j1(self):
        I = self.I
        NF = 32; LA = 4
        AJ = 222
        def rd(phi):
            e, nb = phi >> 1, phi & 1
            for t in range(2):
                self.emit(Ins(f"ds_read_b64_tr_b16 {a(A_WF + 4*(phi % 8) + 2*t, 2)}, {v(AJ+nb)} offset:{e*2048 + t*256}", lds_r='S0')); self.lg(('w1', phi))
        self.ms('s0')
        NX0 = self.o['nx0']
        ops = [(0, k) for k in range(NX0, 8)] + [(1, k) for k in range(8)]
        slot_ops = [[[] for _ in range(4)] for _ in range(8)]
        oi = 0
        for k in range(8):
            n_here = 1 if k + NX0 <= 7 else 2
            for j in range(n_here):
                if oi >= len(ops): break
                half, kk = ops[oi]
                if half == 1 and kk > k: break
                for i in range(4):
                    slot_ops[k][(i + j*4)//n_here if n_here == 2 else i].append(lambda half=half, kk=kk, i=i: self.x_dma_op(half, kk, i))
                oi += 1
        rest = ops[oi:]
        self.waitvm(('x', 0, 0)); self.x_read(0, 0)
        self.ms('x0')
        I("s_barrier")
        for phi in range(LA): rd(phi)
        nread = LA
        for e in range(16):
            k = e >> 1
            if e % 2 == 0:
                if k < 7: self.waitvm(('x', 0, k+1)); self.x_read(0, k+1)
                self.waitlg(('xr', 0, k))
            first = (e == 0)
            def M(d, A, B): I(f"{MFMA} {v(d,4)}, {A}, {B}, {'0' if first else v(d,4)}")
            for s_ in range(2):
                M(J_SUM(s_), v(V_ONES, 4), xreg(s_, e)); M(J_GR(s_), xreg(s_, e), xreg(s_, e))
            for nb in range(2):
                phi = 2*e + nb
                self.waitlg(('w1', phi))
                A = a(A_WF + 4*(phi % 8), 4)
                for s_ in range(2): M(J_ACC(s_, nb), A, xreg(s_, e))
                for f_ in slot_ops[k][2*(e & 1) + nb]: f_()
                M(J_CS(nb), A, v(V_ONES, 4))
                if nread < NF: rd(nread); nread += 1
        for (half, kk) in rest: self.x_dma(half, kk)
        self.ms('j1m')
        self.x23_stage(0, 2)
        self.ms('j1x')
        I("s_nop 7")
        for s_ in range(2):
            t = self.row_stats(s_, v(J_SUM(s_)), [J_GR(s_)+r for r in range(4)])
            I(f"v_mul_f32 {v(t)}, {v(t)}, {v(V_RS+s_)}"); I(f"v_mul_f32 {v(t)}, {v(t)}, {v(V_RS+s_)}")
            I(f"v_add_f32 {v(t)}, 0x3727c5ac, {v(t)}"); I(f"v_rsq_f32 {v(t)}, {v(t)}")
            I("s_nop 0")
            I(f"v_mul_f32 {v(60+s_)}, {v(t)}, {v(V_RS+s_)}")
            gelu_consts(I, 60+s_, 88+3*s_, 89+3*s_, 90+3*s_)
        seqs = []
        for s_ in range(2):
            for nb in range(2):
                for r in range(4):
                    q = Prog(); gelu8(q, J_ACC(s_, nb) + r, 64 + (s_*2+nb)*4 + r, V_NMU+s_, J_CS(nb)+r, 88+3*s_, 89+3*s_, 90+3*s_); seqs.append(q.items)
        self.p.extend(interleave(seqs))
        I(f"s_lshl_b32 {s(S_T0)}, {s(S_CT)}, 10"); I(f"s_add_u32 {s(S_T0)}, {s(S_T0)}, {s(S_X01)}")
        for s_ in range(2):
            for jj in range(4):
                x0 = J_ACC(s_, jj >> 1) + 2*(jj & 1)
                I(f"v_cvt_pk_bf16_f32 {v(80+s_*4+jj)}, {v(x0)}, {v(x0+1)}")
            I(f"buffer_store_dwordx4 {v(80+s_*4,4)}, {v(V_L16)}, {s(S_H,4)}, {s(S_T0)} offen offset:0 sc1" if s_ == 0 else
              f"buffer_store_dwordx4 {v(80+s_*4,4)}, {v(V_L16)}, {s(S_H,4)}, {s(S_T1)} offen offset:0 sc1"); self.vm('hst')
            if s_ == 0: I(f"s_add_u32 {s(S_T1)}, {s(S_T0)}, 16384")
        self.ms('j1s')
        self.x23_stage(2, self.o['kst'])

    def signal(self, kind, lab):
        I = self.I
        I(f"s_cmp_lg_u32 {s(S_W)}, 0"); I(f"s_cbranch_scc1 {lab}")
        I("s_mov_b64 exec, 1")
        I("v_mov_b32 v8, 1"); I("v_mov_b32 v9, 0")
        I(f"buffer_atomic_add v8, v9, {s(S_DBG,4)}, {s(S_C0)} offen offset:{ctr_off(kind)} sc1")
        I("s_mov_b64 exec, -1")
        self.p.L(lab)
    def poll_issue(self, dst, addr, kind):
        self.I(f"buffer_load_dword {v(dst)}, {v(addr)}, {s(S_DBG,4)}, 0 offen offset:{ctr_off(kind)} sc1")
    def poll_check(self, dst, addr, kind, lab):
        I = self.I
        I(f"v_cmp_gt_u32 vcc, 32, {v(dst)}"); I("s_nop 0")
        I(f"s_cbranch_vccz {lab}_ok")
        save = self.vm_out
        I(f"s_mov_b32 {s(S_SPIN)}, 20000")
        self.p.L(f"{lab}_spin")
        I(f"buffer_load_dword {v(dst)}, {v(addr)}, {s(S_DBG,4)}, 0 offen offset:{ctr_off(kind)} sc1").nowarn = True
        I("s_waitcnt vmcnt(0)")
        I(f"v_cmp_gt_u32 vcc, 32, {v(dst)}"); I("s_nop 0")
        I(f"s_cbranch_vccz {lab}_ok")
        I(f"s_sub_u32 {s(S_SPIN)}, {s(S_SPIN)}, 1"); I(f"s_cmp_lg_u32 {s(S_SPIN)}, 0"); I(f"s_cbranch_scc1 {lab}_spin")
        self.p.L(f"{lab}_ok")
        self.vm_out = save

    def h_ops(self):
        I = self.I
        ops = []
        def setup():
            I(f"v_lshrrev_b32 v0, 4, {v(V_L16)}"); I("v_and_b32 v1, 15, v0"); I("v_and_b32 v8, 48, v0")
        def addr(cg, s_):
            dl = (1, -1, 2, -2)[cg]; dst = 2 + 2*(cg & 1) + s_
            I(f"s_add_u32 {s(S_T2)}, {s(S_R01)}, {s_}"); I(f"s_lshl_b32 {s(S_T2)}, {s(S_T2)}, 4")
            I(f"v_add_u32 v6, {s(S_T2)}, v1")
            I(f"v_subrev_u32 v6, {dl}, v6") if dl > 0 else I(f"v_add_u32 v6, {-dl}, v6")
            I(f"v_ashrrev_i32 v7, 4, v6"); I(f"v_lshlrev_b32 v7, 14, v7")
            I(f"v_and_b32 v6, 15, v6"); I(f"v_add_u32 v6, v6, v8"); I(f"v_lshl_add_u32 {v(dst)}, v6, 4, v7")
        def mk(e, s_):
            def f():
                cg = e >> 2
                if e == 0 and s_ == 0: setup()
                if (e & 3) == 0: addr(cg, s_)
                I(f"s_mov_b32 {s(S_T3)}, {cg*4096}")
                I(f"buffer_load_dwordx4 {hreg(s_, e)}, {v(2 + 2*(cg & 1) + s_)}, {s(S_H,4)}, {s(S_T3)} offen offset:{(e&3)*1024} sc1"); self.vm(('h', e))
            return f
        for e in range(16):
            for s_ in range(2): ops.append(mk(e, s_))
        def mkx(s_, nb):
            def f():
                if s_ == 0 and nb == 0:
                    I("v_lshlrev_b32 v6, 10, v1"); I("v_lshrrev_b32 v7, 1, v8"); I("v_add_u32 v0, v6, v7")
                I(f"s_lshl_b32 {s(S_T2)}, {s(S_CT)}, 6"); I(f"s_add_u32 {s(S_T2)}, {s(S_T2)}, {s(S_X01)}")
                if s_ == 1: I(f"s_add_u32 {s(S_T2)}, {s(S_T2)}, 16384")
                I(f"buffer_load_dwordx2 {v(V_XR + (s_*2+nb)*2, 2)}, v0, {s(S_X,4)}, {s(S_T2)} offen offset:{nb*32}"); self.vm('xr')
            return f
        for s_ in range(2):
            for nb in range(2): ops.append(mkx(s_, nb))
        return ops

    def qproj(self):
        I = self.I; p = self.p
        after_chunk = {0: ('K', 0), 1: ('K', 1), 2: ('V', 0), 3: ('K', 2), 4: ('V', 1), 5: ('V', 2)}
        self.late_kv = []
        if self.o['kvl']:
            for c_ in list(after_chunk)[6 - self.o['kvl']:]: self.late_kv.append(after_chunk.pop(c_))
        PH_SIG, PH_POLL, PH_H = self.o['ph']
        PH_CHK = self.o['chk']; assert PH_H > 16*PH_CHK - 6 and PH_POLL < 16*PH_CHK - 6
        qa = []
        KST = self.o['kst']
        t_ = 1
        if KST < 8:
            ks = list(range(KST, 8))
            def rd_(k): return lambda: (self.waitvm(('x', 1, k)), self.x_read(1, k))
            def wq_(k, jj):
                def f():
                    if jj == 0: self.waitlg(('xr', 1, k))
                    self.wq_dma_op(k, jj)
                return f
            seq = []
            for i, k in enumerate(ks):
                seq.append(rd_(k))
                if i >= 1: seq += [wq_(ks[i-1], jj) for jj in range(4)]
            seq += [wq_(ks[-1], jj) for jj in range(4)]
            for f in seq: qa.append((t_, f)); t_ += 1
        for i in range(8): qa.append((t_ + i, (lambda i=i: self.slice_dma_op(S_W2, 15, 'w2', 'S0', i))))
        for c_, (w_, tt_) in after_chunk.items():
            for jj in range(4): qa.append((16*(c_+1) + 10 + jj, (lambda w_=w_, tt_=tt_, jj=jj: self.kv_op(w_, tt_, jj))))
        qa.sort(key=lambda x: x[0])
        hops = self.h_ops()
        RATE = self.o['hrate']
        qb_ = [(PH_H + int(i*RATE), f) for i, f in enumerate(hops)]
        for i, (ph_, f) in enumerate(qb_):
            if i < 32: assert ph_ >= (32 if i < 16 else 64), (i, ph_)
        assert qb_[-1][0] <= 127
        self.waitvm(('w', 0)); I("s_barrier")
        for rho in range(2*LAGQ): self.emit(self.wread(rho)); self.lg(('wq', rho >> 1))
        nread = 2*LAGQ
        for phi in range(128):
            c, e2, nb = phi >> 4, (phi >> 3) & 1, phi & 7
            e = 2*c + e2
            self.waitlg(('wq', phi))
            A = a(A_WF + 4*(phi % NRQ), 4)
            for X in range(4):
                d = v(V_QACC + (X*8+nb)*4, 4)
                I(f"{MFMA} {d}, {A}, {xreg(X, e)}, {'0' if e == 0 else d}")
                if X in (0, 2) and nread < 256:
                    if nread % 32 == 0:
                        cn = nread >> 5
                        if cn == PH_SIG: self.waitvm('hst')
                        if cn == PH_CHK and not self.o['nopoll']:
                            self.waitvm('poll')
                            I(f"s_cmp_lg_u32 {s(S_W)}, 0"); I("s_cbranch_scc1 L_p1_ok")
                            self.poll_check(V_POLL, V_POLLA, 0, "L_p1")
                            self.ms('pc')
                        self.waitvm(('w', cn))
                        I("s_barrier")
                        if cn == PH_SIG: self.signal(0, "L_sig1")
                    self.emit(self.wread(nread)); self.lg(('wq', nread >> 1)); nread += 1
                if X == 1 and qa and qa[0][0] <= phi: qa.pop(0)[1]()
                if X == 3 and qb_ and qb_[0][0] <= phi: qb_.pop(0)[1]()
            if nb < 2:
                d = v(V_CSQ + nb*4, 4)
                I(f"{MFMA} {d}, {A}, {v(V_ONES,4)}, {'0' if e == 0 else d}")
            elif nb < 6:
                k = nb - 2; s_ = k & 1
                d = a(A_ST23 + 4*k, 4)
                Aop = v(V_ONES, 4) if k < 2 else xreg(2+s_, e)
                I(f"{MFMA} {d}, {Aop}, {xreg(2+s_, e)}, {'0' if e == 0 else d}")
            self.ms(f'q{phi}')
            if phi == PH_POLL and not self.o['nopoll']:
                self.poll_issue(V_POLL, V_POLLA, 0); self.vm('poll')
        assert not qa and not qb_, (qa, qb_)
        self.ms('qp')

    def j2(self):
        I = self.I
        I(f"v_xor_b32 {v(229-1+0)}, 0, {v(228)}") if False else None
        I(f"v_xor_b32 v1, 32, {v(228)}")
        NF = 32; LA = 6; NR = 12
        def rd(phi):
            e, nb = phi >> 1, phi & 1
            for t in range(2):
                self.emit(Ins(f"ds_read_b64_tr_b16 {a(A_J2R + 4*(phi % NR) + 2*t, 2)}, {v(228) if nb == 0 else 'v1'} offset:{e*2048 + t*1024}", lds_r='S0'))
        self.waitvm('w2'); I("s_barrier")
        I(f"s_lshl_b32 {s(S_T0)}, {s(S_W)}, 11"); I(f"s_add_u32 {s(S_T0)}, {s(S_T0)}, {3*SLOT}")
        I(f"v_add_u32 v0, {s(S_T0)}, {v(V_L16)}")
        for b in range(2): I(f"ds_write_b128 v0, {v(V_CSQ+4*b,4)} offset:{b*1024}", lds_w=('K', 3))
        for phi in range(LA): rd(phi)
        nread = LA
        lkv = [(lambda w_=w_, t_=t_, jj=jj: self.kv_op(w_, t_, jj)) for (w_, t_) in self.late_kv for jj in range(4)]
        for e in range(16):
            if e % 2 == 0: self.waitvm(('h', e + 1))
            for nb in range(2):
                phi = 2*e + nb
                I(f"s_waitcnt lgkmcnt({min(15, 2*(nread - phi - 1))})")
                A = a(A_J2R + 4*(phi % NR), 4)
                for s_ in range(2):
                    d = a(A_J2ACC + (s_*2+nb)*4, 4)
                    I(f"{MFMA} {d}, {A}, {hreg(s_, e)}, {'0' if e == 0 else d}")
                if nread < NF: rd(nread); nread += 1
                if lkv: lkv.pop(0)()
        assert not lkv
        for s_ in range(2):
            for r in range(4): I(f"v_accvgpr_read_b32 {v(208+r)}, {a(A_ST23 + 8 + 4*s_ + r)}")
            I(f"v_accvgpr_read_b32 {v(212)}, {a(A_ST23 + 4*s_)}")
            self.row_stats(2+s_, v(212), [208+r for r in range(4)], 213, 214)
        self.waitvm('xr')
        I(f"s_lshl_b32 {s(S_T0)}, {s(S_CT)}, 10"); I(f"s_add_u32 {s(S_T0)}, {s(S_T0)}, {s(S_X01)}"); I(f"s_add_u32 {s(S_T0)}, {s(S_T0)}, {WS_X1}")
        I(f"s_lshl_b32 {s(S_T1)}, {s(S_CT)}, 14"); I(f"s_lshl_b32 {s(S_T2)}, {s(S_R01)}, 7"); I(f"s_add_u32 {s(S_T1)}, {s(S_T1)}, {s(S_T2)}"); I(f"s_add_u32 {s(S_T1)}, {s(S_T1)}, {WS_STAT}")
        for s_ in range(2):
            acc, pk = 208, 216
            for j in range(8): I(f"v_accvgpr_read_b32 {v(acc+j)}, {a(A_J2ACC + s_*8 + j)}")
            if s_ == 0: I("s_waitcnt lgkmcnt(0)")
            for j in range(8):
                src = V_XR + s_*4 + (j >> 1)
                I(f"v_lshlrev_b32 v0, 16, {v(src)}") if (j & 1) == 0 else I(f"v_and_b32 v0, 0xffff0000, {v(src)}")
                I(f"v_add_f32 v0, v0, {v(V_NMU+s_)}")
                I(f"v_fma_f32 {v(acc+j)}, v0, {v(V_RS+s_)}, {v(acc+j)}")
            for jj in range(4): I(f"v_cvt_pk_bf16_f32 {v(pk+4*s_+jj)}, {v(acc+2*jj)}, {v(acc+2*jj+1)}")
            I(f"buffer_store_dwordx4 {v(pk+4*s_,4)}, {v(V_L16)}, {s(S_WS,4)}, {s(S_T0)} offen sc1"); self.vm('x1st')
            if s_ == 0: I(f"s_add_u32 {s(S_T0)}, {s(S_T0)}, 16384")
            sm, sq = 208 + 0, 209
            for jj in range(4):
                I(f"v_lshlrev_b32 v0, 16, {v(pk+4*s_+jj)}"); I(f"v_and_b32 v1, 0xffff0000, {v(pk+4*s_+jj)}")
                if jj == 0:
                    I(f"v_add_f32 {v(sm)}, v0, v1"); I(f"v_mul_f32 {v(sq)}, v0, v0")
                else:
                    I(f"v_add_f32 {v(sm)}, {v(sm)}, v0"); I(f"v_add_f32 {v(sm)}, {v(sm)}, v1"); I(f"v_fmac_f32 {v(sq)}, v0, v0")
                I(f"v_fmac_f32 {v(sq)}, v1, v1")
            for r_ in (sm, sq):
                for sw_ in ('16', '32'):
                    I(f"v_mov_b32 v0, {v(r_)}"); I("s_nop 1"); I(f"v_permlane{sw_}_swap_b32 {v(r_)}, v0"); I("s_nop 0"); I(f"v_add_f32 {v(r_)}, {v(r_)}, v0")
            I(f"v_lshrrev_b32 v0, 1, {v(V_L16)}")
            I("s_mov_b64 exec, 0xffff")
            I(f"buffer_store_dwordx2 {v(sm,2)}, v0, {s(S_WS,4)}, {s(S_T1)} offen offset:{s_*128} sc1"); self.vm('x1st')
            I("s_mov_b64 exec, -1")

    def wp_piece(self, i, store):
        if self.o['wp'] == 2: return self.wp_piece2(i, store)
        I = self.I
        I(f"s_lshl_b32 {s(S_T2)}, s2, 2"); I(f"s_add_u32 {s(S_T2)}, {s(S_T2)}, {s(S_W)}"); I(f"s_mul_i32 {s(S_T2)}, {s(S_T2)}, 6")
        I(f"s_add_u32 {s(S_T2)}, {s(S_T2)}, {i}"); I(f"s_min_u32 {s(S_T2)}, {s(S_T2)}, 5887")
        I(f"s_and_b32 {s(S_T3)}, {s(S_T2)}, 7")
        if not store:
            I(f"s_andn2_b32 {s(S_T0)}, {s(S_T2)}, 7")
            I(f"s_cmp_lt_u32 {s(S_T0)}, 1792")
            p4, po = (92, 94) if self.o['wp'] == 2 else (S_W2, S_H)
            I(f"s_cselect_b32 {s(S_WT)}, {s(p4)}, {s(po)}"); I(f"s_cselect_b32 {s(S_WT+1)}, {s(p4+1)}, {s(po+1)}")
            I(f"s_cselect_b32 {s(S_WT+2)}, {s(S_W2+2)}, {s(S_H+2)}"); I(f"s_cselect_b32 {s(S_T1)}, 0, 1792")
            I(f"s_mov_b32 {s(S_WT+3)}, 0x20000")
            I(f"s_sub_u32 {s(S_T0)}, {s(S_T0)}, {s(S_T1)}"); I(f"s_lshl_b32 {s(S_T0)}, {s(S_T0)}, 10")
            I(f"s_lshl_b32 {s(S_T3)}, {s(S_T3)}, 7"); I(f"s_add_u32 {s(S_T0)}, {s(S_T0)}, {s(S_T3)}")
            I(f"buffer_load_dwordx4 {a(self.wpr + 4*i, 4)}, v9, {s(S_WT,4)}, {s(S_T0)} offen"); self.vm('wpl')
        else:
            I(f"s_mul_i32 {s(S_T3)}, {s(S_T3)}, {92*8192 + self.o['wpad']}"); I(f"s_lshr_b32 {s(S_T2)}, {s(S_T2)}, 3")
            I(f"s_lshl_b32 {s(S_T2)}, {s(S_T2)}, 10"); I(f"s_add_u32 {s(S_T2)}, {s(S_T2)}, {s(S_T3)}"); I(f"s_add_u32 {s(S_T2)}, {s(S_T2)}, {WS_WP}")
            I(f"buffer_store_dwordx4 {a(self.wpr + 4*i, 4)}, {v(V_L16)}, {s(S_WS,4)}, {s(S_T2)} offen" + (" sc1" if self.o['wt'] & 4 else "")); self.vm('wps')
    def wp_piece2(self, i, store):
        I = self.I
        I(f"s_add_u32 {s(S_T2)}, s69, {i}"); I(f"s_min_u32 {s(S_T2)}, {s(S_T2)}, s86")
        I(f"s_and_b32 {s(S_T3)}, {s(S_T2)}, 7"); I(f"s_lshr_b32 {s(S_T2)}, {s(S_T2)}, 3")
        if not store:
            I(f"s_lshl_b32 {s(S_T2)}, {s(S_T2)}, 13"); I(f"s_lshl_b32 {s(S_T3)}, {s(S_T3)}, 7"); I(f"s_add_u32 {s(S_T2)}, {s(S_T2)}, {s(S_T3)}")
            I(f"buffer_load_dwordx4 {a(self.wpr + 4*i, 4)}, v9, {s(S_WT,4)}, {s(S_T2)} offen"); self.vm('wpl')
        else:
            I(f"s_lshl_b32 {s(S_T2)}, {s(S_T2)}, 10"); I(f"s_mul_i32 {s(S_T3)}, {s(S_T3)}, {92*8192 + self.o['wpad']}")
            I(f"s_add_u32 {s(S_T2)}, {s(S_T2)}, {s(S_T3)}"); I(f"s_add_u32 {s(S_T2)}, {s(S_T2)}, s87")
            I(f"buffer_store_dwordx4 {a(self.wpr + 4*i, 4)}, {v(V_L16)}, {s(S_WS,4)}, {s(S_T2)} offen" + (" sc1" if self.o['wt'] & 4 else "")); self.vm('wps')
    def wp_select(self):
        I = self.I
        I(f"s_lshl_b32 {s(S_T2)}, s2, 2"); I(f"s_add_u32 {s(S_T2)}, {s(S_T2)}, {s(S_W)}")
        I(f"s_mov_b32 {s(S_T3)}, {4096*1024}"); I(f"s_mov_b32 s86, 4095"); I(f"s_mov_b32 s87, {WS_WP + 224*1024}")
        I(f"s_cmp_lt_u32 {s(S_T2)}, 299")
        I(f"s_cselect_b32 {s(S_WT)}, s92, s94"); I(f"s_cselect_b32 {s(S_WT+1)}, s93, s95")
        I(f"s_cselect_b32 {s(S_WT+2)}, {1792*1024}, {s(S_T3)}"); I(f"s_cselect_b32 s86, 1791, s86"); I(f"s_cselect_b32 s87, {WS_WP}, s87")
        I(f"s_cselect_b32 {s(S_T3)}, 0, 299"); I(f"s_mov_b32 {s(S_WT+3)}, 0x20000")
        I(f"s_sub_u32 {s(S_T2)}, {s(S_T2)}, {s(S_T3)}"); I(f"s_mul_i32 s69, {s(S_T2)}, 6")
    def wp_setup(self):
        I = self.I
        I(f"v_lshrrev_b32 v6, 7, {v(V_L16)}"); I(f"v_bfe_u32 v7, {v(V_L16)}, 4, 3"); I("v_lshrrev_b32 v8, 1, v6"); I("v_lshlrev_b32 v8, 1, v8"); I("v_xor_b32 v8, v8, v7")
        I("v_lshlrev_b32 v8, 4, v8"); I("v_lshl_add_u32 v9, v6, 10, v8")
        I(f"s_mov_b32 {s(S_W2+2)}, {1792*1024}"); I(f"s_mov_b32 {s(S_H+2)}, {4096*1024}")

    def q_convert_and_first_tile(self, sched):
        I = self.I
        if self.o['wp'] == 2 and not self.o['wpl']:
            self.wp_setup(); self.wp_select()
            for i in range(6): self.wp_piece(i, False)
        vmq = self.vmq
        idx = max(max(i for i, e in enumerate(vmq) if e == ('kv', kk)) for kk in (('K', 0), ('K', 1), ('V', 0)))
        I(f"s_waitcnt vmcnt({len(vmq) - 1 - idx}) lgkmcnt(0)")
        I("s_barrier")
        for f in range(8): self.emit(kread(0, f))
        for X in range(4): I(f"v_mul_f32 {v(V_RS+X)}, {s(S_SCALE)}, {v(V_RS+X)}")
        CS = 208
        for h in range(2):
            for k in range(2):
                ep = 2*h + k
                I(f"s_xor_b32 {s(S_T0)}, {s(S_W)}, {ep}"); I(f"s_lshl_b32 {s(S_T0)}, {s(S_T0)}, 11"); I(f"s_add_u32 {s(S_T0)}, {s(S_T0)}, {3*SLOT}")
                I(f"v_add_u32 v{k}, {s(S_T0)}, {v(V_L16)}")
                for b in range(2): I(f"ds_read_b128 {v(CS + (k*2+b)*4, 4)}, v{k} offset:{b*1024}", lds_r=('K', 3))
            I("s_waitcnt lgkmcnt(0)")
            for X in range(4):
                pr = lambda base: v(base + (X & ~1), 2)
                hi = X & 1
                for k in range(2):
                    ep = 2*h + k
                    for b in range(2):
                        base = V_QACC + (X*8 + 2*ep + b)*4
                        for r in range(0, 4, 2):
                            I(f"v_pk_fma_f32 {v(base+r,2)}, {v(CS+(k*2+b)*4+r,2)}, {pr(V_NMU)}, {v(base+r,2)} op_sel:[0,{hi},0] op_sel_hi:[1,{hi},1]")
                        for r in range(0, 4, 2):
                            I(f"v_pk_mul_f32 {v(base+r,2)}, {v(base+r,2)}, {pr(V_RS)} op_sel:[0,{hi}] op_sel_hi:[1,{hi}]")
                        for jj in range(2):
                            I(f"v_cvt_pk_bf16_f32 {v(Qreg(X, ep) + 2*b + jj)}, {v(base+2*jj)}, {v(base+2*jj+1)}")
        I("s_waitcnt lgkmcnt(0)")
        zi = 0
        for z in range(4): I(f"v_mov_b32 v{z}, 0")
        for g in range(32):
            X, kb2, s_ = g >> 3, (g >> 2) & 1, g & 3
            d = v(Sreg(0, X, kb2), 4)
            I(f"{MFMA} {d}, {a(A_KF + (kb2*4+s_)*4, 4)}, {v(Qreg(X, s_), 4)}, {'0' if s_ == 0 else d}")
            if not self.o['mz']:
                for z in range(4):
                    I(f"v_accvgpr_write_b32 {a(A_O + zi)}, 0"); zi += 1
            elif g % 4 == 3:
                I(f"v_mfma_f32_32x32x16_bf16 {a(A_O + 16*(g >> 2), 16)}, v[0:3], v[0:3], 0")
        if KA.LSUM: I(f"v_mfma_f32_32x32x16_bf16 {a(KA.A_L, 16)}, v[0:3], v[0:3], 0")
        for f in range(8): self.emit(kread(1, f))
        if not KA.LSUM:
            for X in range(4): I(f"v_mov_b32 {v(V_L+X)}, 0")
        I("s_nop 3")
        for X in range(4):
            mx, t2 = V_TMP, V_TMP+1
            S0 = Sreg(0, X)
            I(f"v_max3_f32 {v(mx)}, {v(S0)}, {v(S0+1)}, {v(S0+2)}")
            I(f"v_max3_f32 {v(mx)}, {v(mx)}, {v(S0+3)}, {v(S0+4)}")
            I(f"v_max3_f32 {v(mx)}, {v(mx)}, {v(S0+5)}, {v(S0+6)}")
            I(f"v_max_f32 {v(mx)}, {v(mx)}, {v(S0+7)}")
            for sw in ('16', '32'):
                I(f"v_mov_b32 {v(t2)}, {v(mx)}")
                I("s_nop 1")
                I(f"v_permlane{sw}_swap_b32 {v(mx)}, {v(t2)}")
                I("s_nop 0")
                I(f"v_max_f32 {v(mx)}, {v(mx)}, {v(t2)}")
            for r in range(8): I(f"v_sub_f32 {v(S0+r)}, {v(S0+r)}, {v(mx)}")
            for r in range(4): I(f"v_sub_f32 {v(V_NEGM+X*4+r)}, 0, {v(mx)}")
        for g in range(self.G0, NG):
            self.gap_valu(-NG + g, sched)
        I(f"s_waitcnt vmcnt({6 if self.o['wp'] == 2 and not self.o['wpl'] else 0}) lgkmcnt(0)")
        I("s_barrier")
        self.signal(1, "L_sig2")
        if self.o['wp'] == 2 and self.o['wpl']:
            self.wp_setup(); self.wp_select()
            for i in range(6): self.wp_piece(i, False)
        I("v_and_b32 v1, 63, v0") if False else None

    W3SLOT = [('K', 0), ('V', 0), ('K', 1), ('V', 1), ('K', 2), ('V', 2), ('K', 3), ('V', 3)]
    def w3_dma_one(self, c, jj):
        reg, slot = self.W3SLOT[c]
        self.I(f"s_add_u32 {s(S_T0)}, {s(S_WOFF)}, {(64*c + 4*jj)*3584 - jj*1024}")
        self.I(f"buffer_load_dwordx4 {v(V_D3+(jj&1))}, {s(S_W1,4)}, {s(S_T0)} offen offset:{jj*1024} lds", lds_w=(reg, slot))
    def emit_dma(self, which, tile, jj):
        if tile >= 32:
            c = 2*(tile - 32) + (0 if which == 'K' else 1)
            self.w3_dma_one(c, jj); self.vm(('w3', c)); return
        super().emit_dma(which, tile, jj)
        if self.tail: self.vm(('t', tile))
    def j3_setup(self):
        I = self.I
        I(f"s_load_dwordx2 {s(S_W1,2)}, s[0:1], {ARG_W3}")
        if self.o['wp'] == 1: I(f"s_load_dwordx2 {s(S_W2,2)}, s[0:1], {ARG_W4}"); I(f"s_load_dwordx2 {s(S_H,2)}, s[0:1], {ARG_WO}")
        I(f"v_lshrrev_b32 v1, 4, {v(V_L16)}"); I("v_and_b32 v2, 15, v1"); I("v_lshrrev_b32 v5, 4, v1")
        I("v_mul_u32_u24 v9, 3584, v5")
        for pj in range(2):
            I(f"v_add_u32 v8, {4*pj}, v5"); I("v_lshlrev_b32 v8, 1, v8"); I("v_xor_b32 v8, v8, v2"); I("v_min_u32 v8, 13, v8"); I("v_lshlrev_b32 v8, 4, v8")
            I(f"v_add_u32 {v(V_D3+pj)}, v9, v8")
        I(f"v_mov_b32 {v(V_POLLA2)}, {s(S_C0)}")
        I("s_waitcnt lgkmcnt(0)")
        I(f"s_mul_i32 {s(S_T0)}, {s(S_CT)}, 224")
        I(f"s_add_u32 {s(S_W1)}, {s(S_W1)}, {s(S_T0)}"); I(f"s_addc_u32 {s(S_W1+1)}, {s(S_W1+1)}, 0")
        I(f"s_sub_u32 {s(S_W1+2)}, {512*3584}, {s(S_T0)}"); I(f"s_mov_b32 {s(S_W1+3)}, 0x20000")
        I(f"s_mul_i32 {s(S_WOFF)}, {s(S_W)}, {16*3584}")
        self.poll_issue(V_POLL2, V_POLLA2, 1); self.vm('poll2')
        if self.o['pf3']:
            I("v_lshrrev_b32 v2, 2, v1"); I("v_mul_u32_u24 v2, 3584, v2"); I("v_and_b32 v5, 3, v1"); I("v_min_u32 v5, 1, v5"); I("v_lshl_add_u32 v2, v5, 7, v2")
            I(f"s_lshl_b32 {s(S_T0)}, {s(S_QB)}, 2"); I(f"s_add_u32 {s(S_T0)}, {s(S_T0)}, {s(S_W)}"); I(f"s_mul_i32 {s(S_T0)}, {s(S_T0)}, {16*3584}")
            I(f"buffer_load_dword v140, v2, {s(S_W1,4)}, {s(S_T0)} offen"); self.vm('pf3')
            I(f"buffer_load_dword v141, v2, {s(S_W1,4)}, {s(S_T0)} offen offset:92"); self.vm('pf3')
        if self.o['cpf']: self.code_prefetch("L_j3", "L_final_kernel_end", "L_pc2", 2, 142, 2)
        if self.o['wp'] == 1: self.wp_setup()
        if self.o['pfw']:
            I(f"s_load_dwordx2 {s(S_W2,2)}, s[0:1], {ARG_WO}"); I(f"s_load_dwordx2 {s(S_H,2)}, s[0:1], {ARG_W4}")
            I(f"s_lshl_b32 {s(S_T0)}, s2, 2"); I(f"s_add_u32 {s(S_T0)}, {s(S_T0)}, {s(S_W)}")
            I("v_and_b32 v2, 31, v1"); I("v_lshlrev_b32 v2, 7, v2"); I("v_min_u32 v5, 13, v1"); I("v_lshlrev_b32 v5, 7, v5")
            I("s_waitcnt lgkmcnt(0)")
            I(f"s_mov_b32 {s(S_W2+2)}, {4096*1024}"); I(f"s_mov_b32 {s(S_W2+3)}, 0x20000"); I(f"s_mov_b32 {s(S_H+2)}, {1792*1024}"); I(f"s_mov_b32 {s(S_H+3)}, 0x20000")
            I(f"s_lshl_b32 {s(S_T1)}, {s(S_T0)}, 12"); I(f"s_mul_i32 {s(S_T0)}, {s(S_T0)}, {14*128}")
            I(f"buffer_load_dword v140, v2, {s(S_W2,4)}, {s(S_T1)} offen"); self.vm('pfw')
            I(f"buffer_load_dword v141, v5, {s(S_H,4)}, {s(S_T0)} offen"); self.vm('pfw')

    @staticmethod
    def x1reg(s_, e):
        if not KA.LSUM: return a(192 + (e*2 + s_)*4, 4) if e < 8 else v(16 + ((e-8)*2 + s_)*4, 4)
        return a(208 + (e*2 + s_)*4, 4) if e < 6 else v(16 + ((e-6)*2 + s_)*4, 4)
    def x1_op(self, s_, e):
        I = self.I
        I(f"s_add_u32 {s(S_T3)}, {s(S_X01)}, {WS_X1 + s_*16384 + (e & ~3)*1024}")
        I(f"buffer_load_dwordx4 {self.x1reg(s_, e)}, {v(V_L16)}, {s(S_WS,4)}, {s(S_T3)} offen offset:{(e&3)*1024} sc1"); self.vm(('x1', e))
    def st_op(self, k, s_):
        I = self.I
        if k == 0 and s_ == 0:
            I(f"v_lshrrev_b32 v1, 4, {v(V_L16)}"); I("v_and_b32 v2, 15, v1"); I("v_lshrrev_b32 v5, 4, v1")
            I("v_lshlrev_b32 v2, 3, v2"); I("v_lshl_add_u32 v2, v5, 16, v2")
        I(f"s_lshl_b32 {s(S_T2)}, {s(S_R01)}, 7"); I(f"s_add_u32 {s(S_T2)}, {s(S_T2)}, {WS_STAT + k*16384}")
        I(f"buffer_load_dwordx2 {v(208 + (s_*4+k)*2, 2)}, v2, {s(S_WS,4)}, {s(S_T2)} offen offset:{s_*128} sc1"); self.vm('st')

    def o_epilogue_items(self):
        q = []
        A = lambda t: q.append(Ins(t))
        for X in range(4):
            l, t2 = V_L + X, V_TMP + X
            if KA.LSUM: A(f"v_accvgpr_read_b32 {v(l)}, {a(KA.A_L + 4*X)}")
            else:
                for sw in ('16', '32'):
                    A(f"v_mov_b32 {v(t2)}, {v(l)}"); A("s_nop 1"); A(f"v_permlane{sw}_swap_b32 {v(l)}, {v(t2)}"); A("s_nop 0"); A(f"v_add_f32 {v(l)}, {v(l)}, {v(t2)}")
        for X in range(4): A(f"v_rcp_f32 {v(V_L + X)}, {v(V_L + X)}")
        stage = 96 if KA.LSUM else 80; n = 0; NS = 2 if KA.LSUM else 4
        for X in range(4):
            OST = 131072 + self.o['opad']
            A(f"s_lshl_b32 {s(S_OOFF)}, {s(S_HEAD)}, 12"); A(f"s_add_u32 {s(S_OOFF)}, {s(S_OOFF)}, {WS_O + (X & 1)*OST}")
            A(f"s_mul_i32 {s(S_C1)}, {s(S_R01 if X < 2 else S_R23)}, {OST}"); A(f"s_add_u32 {s(S_OOFF)}, {s(S_OOFF)}, {s(S_C1)}")
            for e in range(4):
                f = stage + (n % NS)*12; n += 1
                for j in range(8): A(f"v_accvgpr_read_b32 {v(f+j)}, {a(Oreg(X, 2*e + (j >> 2)) + (j & 3))}")
                for j in range(8): A(f"v_mul_f32 {v(f+j)}, {v(f+j)}, {v(V_L+X)}")
                for jj in range(4): A(f"v_cvt_pk_bf16_f32 {v(f+8+jj)}, {v(f+2*jj)}, {v(f+2*jj+1)}")
                q.append(('vm', f"buffer_store_dwordx4 {v(f+8,4)}, {v(V_L16)}, {s(S_WS,4)}, {s(S_OOFF)} offen offset:{e*1024}" + (" sc1" if self.o['wt'] & 1 else ""), 'ost'))
        return q

    def j3(self):
        I = self.I; p = self.p
        for c in range(7): I(f"v_subrev_u32 {v(V_A3K+c)}, {LDS_V}, {v(V_AV+c)}")
        I(f"s_lshl_b32 {s(S_T0)}, {s(S_W)}, 6")
        for c in range(2):
            I(f"v_xor_b32 {v(140+c)}, {s(S_T0)}, {v(V_AV+c)}"); I(f"v_subrev_u32 {v(142+c)}, {LDS_V}, {v(140+c)}")
        for k in range(4): I(f"v_mov_b32 {v(V_ONES+k)}, 0x3f803f80")
        ACC = lambda s_, cb: 144 + (s_*7 + cb)*4
        CSA = lambda c: 200 + 4*c
        blks = []
        for e in range(16):
            c = e >> 1; reg, slot = self.W3SLOT[c]; off = slot*SLOT + (e & 1)*8192
            for cb in range(7): blks.append((e, (V_AV if reg == 'V' else V_A3K) + cb, cb, False, off, (reg, slot)))
            for cb in range(2): blks.append((e, (140 if reg == 'V' else 142) + cb, cb, True, off, (reg, slot)))
        LA, NR = 9, 16
        vops = []
        for c in (6, 7):
            for jj in range(4):
                def f(c=c, jj=jj):
                    reg, slot = self.W3SLOT[c]
                    I(f"s_add_u32 m0, {s(S_M0K if reg == 'K' else S_M0V)}, {slot*SLOT}")
                    self.w3_dma_one(c, jj); self.vm(('w3', c))
                vops.append(f)
        for e in range(6 if KA.LSUM else 8, 16):
            for s_ in range(2): vops.append(lambda s_=s_, e=e: self.x1_op(s_, e))
        for k in range(4):
            for s_ in range(2): vops.append(lambda k=k, s_=s_: self.st_op(k, s_))
        side = self.o_epilogue_items()
        side.append(('wait', 'st'))
        for s_ in range(2):
            b = 208 + s_*8
            for j in range(2):
                side += [Ins(f"v_add_f32 {v(b+j)}, {v(b+j)}, {v(b+2+j)}"), Ins(f"v_add_f32 {v(b+4+j)}, {v(b+4+j)}, {v(b+6+j)}"), Ins(f"v_add_f32 {v(b+j)}, {v(b+j)}, {v(b+4+j)}")]
                for sw_ in ('16', '32'):
                    side += [Ins(f"v_mov_b32 v0, {v(b+j)}"), Ins("s_nop 1"), Ins(f"v_permlane{sw_}_swap_b32 {v(b+j)}, v0"), Ins("s_nop 0"), Ins(f"v_add_f32 {v(b+j)}, {v(b+j)}, v0")]
            side += [Ins(f"v_mul_f32 {v(b)}, 0xbb000000, {v(b)}"), Ins(f"v_mul_f32 {v(b+1)}, 0x3b000000, {v(b+1)}"),
                     Ins(f"v_fma_f32 {v(b+1)}, -{v(b)}, {v(b)}, {v(b+1)}"), Ins(f"v_max_f32 {v(b+1)}, 0, {v(b+1)}"),
                     Ins(f"v_add_f32 {v(b+1)}, 0x3727c5ac, {v(b+1)}"), Ins(f"v_rsq_f32 {v(b+1)}, {v(b+1)}")]
            q = Prog(); q.I("s_nop 0"); gelu_consts(q.I, b+1, b+2, b+3, b+4); side += q.items
        def drain(n):
            k = 0
            while side and k < n:
                it = side.pop(0)
                if isinstance(it, Ins):
                    self.emit(it); k += 0 if it.op.startswith('s_') else 1
                elif it[0] == 'vm': I(it[1]); self.vm(it[2]); k += 1
                else: self.waitvm(it[1])
        def issue_read(n):
            e, ar, cb, iscs, off, region = blks[n]
            c = e >> 1
            if n == 0 or (blks[n-1][0] >> 1) != c:
                if c in (0, 4, 6):
                    self.waitvm(('w3', {0: 3, 4: 5, 6: 7}[c])); I("s_barrier")
            r = A_WF + (n % NR)*4
            for t in range(2): I(f"ds_read_b64_tr_b16 {a(r+2*t,2)}, {v(ar)} offset:{off + t*4096}", lds_r=region)
        for n in range(LA): issue_read(n)
        nread = LA; nm = 0; nwp = 0; nside0 = len(side)
        for n, (e, ar, cb, iscs, off, region) in enumerate(blks):
            if (n == 0 or blks[n-1][0] != e): self.ms(f'e{e}')
            if (n == 0 or blks[n-1][0] != e) and (e & 1) == 0: self.waitvm(('x1', e + 1)); self.ms(f'w{e}')
            if n % 3 == 0: I(f"s_waitcnt lgkmcnt({max(0, 2*(nread - n - 3))})")
            A = a(A_WF + (n % NR)*4, 4)
            ms_ = [(CSA(cb), v(V_ONES, 4))] if iscs else [(ACC(s_, cb), self.x1reg(s_, e)) for s_ in range(2)]
            for i_, (d, B) in enumerate(ms_):
                I(f"{MFMA} {v(d,4)}, {A}, {B}, {'0' if e == 0 else v(d,4)}"); nm += 1
                if i_ == 0 and nread < len(blks): issue_read(nread); nread += 1
                elif vops and nm % 2 == 0: vops.pop(0)()
                elif self.o['wp'] == 1 and len(side) < nside0 - 110 and not vops and nm % 4 == 2 and nwp < 6:
                    assert not any(isinstance(it, Ins) and 'accvgpr_read' in it.text and int(it.text.split(', a')[1]) < 32 for it in side)
                    self.wp_piece(nwp, False); nwp += 1
                drain(self.o['j3v'] if nm > 4 else 0)
        assert not vops
        drain(10000)
        self.ms('j3m')
        I(f"s_lshl_b32 {s(S_T0)}, {s(S_W)}, 11"); I(f"s_add_u32 {s(S_T0)}, {s(S_T0)}, {LDS_S0}")
        I(f"v_add_u32 v0, {s(S_T0)}, {v(V_L16)}"); I(f"v_add_u32 v1, {LDS_S0}, {v(V_L16)}")
        for c in range(2): I(f"ds_write_b128 v0, {v(CSA(c),4)} offset:{c*1024}", lds_w='S0')
        I("s_waitcnt lgkmcnt(0)"); I("s_barrier")
        CS = 16
        for cb in range(7): I(f"ds_read_b128 {v(CS+cb*4,4)}, v1 offset:{cb*1024}", lds_r='S0')
        if self.o['wp'] == 1:
            assert nwp == 6
            self.waitvm('wpl')
            for i in range(6): self.wp_piece(i, True)
        I(f"s_mul_i32 {s(S_OOFF)}, {s(S_R01)}, {56*1024}"); I(f"s_add_u32 {s(S_OOFF)}, {s(S_OOFF)}, {WS_H2}")
        I(f"s_mul_i32 {s(S_T3)}, {s(S_CT)}, 7")
        for k, dst in ((0, S_T0), (1, S_T1)):
            I(f"s_add_u32 {s(S_T2)}, {s(S_T3)}, {k}"); I(f"s_lshr_b32 {s(dst)}, {s(S_T2)}, 1"); I(f"s_lshl_b32 {s(dst)}, {s(dst)}, 10")
            I(f"s_and_b32 {s(S_T2)}, {s(S_T2)}, 1"); I(f"s_lshl_b32 {s(S_T2)}, {s(S_T2)}, 3"); I(f"s_add_u32 {s(dst)}, {s(dst)}, {s(S_T2)}"); I(f"s_add_u32 {s(dst)}, {s(dst)}, {s(S_OOFF)}")
        I("s_waitcnt lgkmcnt(0)")
        for s_ in range(2):
            b = 208 + s_*8
            T0 = 48 + s_*28
            for half in (range(0, 4), range(4, 7)):
                seqs = []
                for cb in half:
                    for r_ in range(4):
                        q = Prog(); gelu8(q, ACC(s_, cb) + r_, T0 + cb*4 + r_, b, CS+cb*4+r_, b+2, b+3, b+4); seqs.append(q.items)
                p.extend(interleave(seqs))
                for cb in half:
                    x = ACC(s_, cb); o = 104 + (s_*7 + cb)*2
                    I(f"v_cvt_pk_bf16_f32 {v(o)}, {v(x)}, {v(x+1)}"); I(f"v_cvt_pk_bf16_f32 {v(o+1)}, {v(x+2)}, {v(x+3)}")
            sc = " sc1" if self.o['wt'] & 2 else ""
            O_ = lambda cb: 104 + (s_*7 + cb)*2
            I(f"s_bitcmp1_b32 {s(S_CT)}, 0"); I(f"s_cbranch_scc1 L_h2odd{s_}")
            for m in range(3): I(f"buffer_store_dwordx4 {v(O_(2*m),4)}, {v(V_L16)}, {s(S_WS,4)}, {s(S_T0)} offen offset:{m*1024}{sc}")
            I(f"buffer_store_dwordx2 {v(O_(6),2)}, {v(V_L16)}, {s(S_WS,4)}, {s(S_T0)} offen offset:3072{sc}")
            I(f"s_branch L_h2done{s_}")
            p.L(f"L_h2odd{s_}")
            I(f"buffer_store_dwordx2 {v(O_(0),2)}, {v(V_L16)}, {s(S_WS,4)}, {s(S_T0)} offen{sc}")
            for m in range(3): I(f"buffer_store_dwordx4 {v(O_(2*m+1),4)}, {v(V_L16)}, {s(S_WS,4)}, {s(S_T1)} offen offset:{m*1024}{sc}")
            p.L(f"L_h2done{s_}")
            if s_ == 0:
                I(f"s_add_u32 {s(S_T0)}, {s(S_T0)}, {56*1024}"); I(f"s_add_u32 {s(S_T1)}, {s(S_T1)}, {56*1024}")

    def gen(self, name="a_kernel"):
        p = self.p; I = self.I
        p.raw(kernel_header(name))
        sched = self.build_valu()
        n0 = len(p.items)
        self.prologue_setup()
        self.j1()
        self.ms('j1')
        self.qproj()
        self.j2()
        self.ms('j2')
        self.q_convert_and_first_tile(sched)
        self.ms('ft')
        pro, npad = fix_hazards(p.items[n0:], name='pro')
        p.items[n0:] = pro
        self.I(f"s_mov_b32 {s(S_CNT)}, 7")
        p.raw(".p2align 6")
        p.L("L_attn_loop")
        loop_start = len(p.items)
        replay_at_entry = list(self.replay)
        for T in range(4):
            self.step(2*T, sched, dma_k=T+3)
            self.step(2*T+1, sched, dma_v=T+3, barrier=True, vmw=8)
        self.I(f"s_sub_u32 {s(S_CNT)}, {s(S_CNT)}, 1")
        self.I(f"s_cmp_lg_u32 {s(S_CNT)}, 0")
        self.I("s_cbranch_scc1 L_attn_loop")
        loop_end = len(p.items)
        ent = [(n, k, ins.text) for (n, k, ins, kind) in replay_at_entry]
        ext = [(n - 8, k, ins.text) for (n, k, ins, kind) in self.replay]
        assert ent == ext
        self.replay = [(n - 8 + 56, k, ins, kind) for (n, k, ins, kind) in self.replay]
        tail_start = len(p.items)
        self.vmq = [('t', 30)]*8; self.vm_out = 8; self.tail = True
        self.j3_setup()
        if self.o['wp'] == 2:
            for i in range(6): self.extra.setdefault((56, 2 + 4*i), []).append(lambda i=i: self.wp_piece(i, True))
        xo = [(s_, e) for e in range(6 if KA.LSUM else 8) for s_ in range(2)]
        for i_, (s_, e) in enumerate(xo):
            self.extra.setdefault((58 + i_ // 4, 34 + 4*(i_ % 4)), []).append(lambda s_=s_, e=e: self.x1_op(s_, e))
        def chk2():
            self.waitvm('poll2')
            I(f"s_cmp_lg_u32 {s(S_W)}, 0"); I("s_cbranch_scc1 L_p2_ok")
            self.poll_check(V_POLL2, V_POLLA2, 1, "L_p2")
        self.extra.setdefault((57, 62), []).append(chk2)
        for T in range(28, 32):
            dk = T + 3
            lastT = (T == 31)
            need = {28: ('cpf' if self.o['cpf'] else 'pfw' if self.o['pfw'] else 'pf3' if self.o['pf3'] else 'poll2'), 29: ('t', 31), 30: ('w3', 1), 31: None}[T]
            self.step(2*T, sched, dma_k=dk)
            self.step(2*T+1, sched, dma_v=dk, barrier=not lastT, vmw=(lambda need=need: min(self.wait_for(need), self.vm_out)), last=lastT)
        self.ms('loop')
        I("s_waitcnt lgkmcnt(0)")
        p.L("L_j3")
        self.j3()
        tail, npad2 = fix_hazards(p.items[tail_start:], name='tail', verbose=True)
        p.items[tail_start:] = tail
        p.L("L_a_end")
        self.I("s_endpgm")
        for (tr, lab, back) in self.tramps:
            p.L(tr); self.I(f"s_call_b64 {s(S_RET,2)}, {lab}"); self.I(f"s_branch {back}")
        for key, (lab, items) in self.rare.items(): p.extend(items)
        ins = lambda seq: [i for i in seq if isinstance(i, Ins) and not i.nowarn]
        body = ins(p.items[loop_start:loop_end])
        def strip_spin(seq):
            out = []; skip = False
            for i in seq:
                if isinstance(i, Label) and i.name.endswith('_spin'): skip = True; continue
                if isinstance(i, Label) and i.name.endswith('_ok'): skip = False; continue
                if isinstance(i, Ins) and not skip: out.append(i)
            return out
        trace = strip_spin(p.items[n0:loop_start]) + body + body + strip_spin(p.items[loop_end:loop_end + len(tail) + 2])
        e1 = check_hazards(trace, name); e2 = check_waitcnt(trace, name)
        self.stats = dict(pro=len(ins(pro)), loop=len(body), tail=len(ins(tail)), npad=npad, npad2=npad2, rare=len(self.rare))
        return p.text(), kernel_desc(name, 512, 96, 256), e1 + e2

if __name__ == "__main__":
    g = AGen(); t, d, errs = g.gen()
    print(g.stats)
    for e in errs[:40]: print(e)
    print(len(errs), "errors")
```

```python
from asmgen import *
from layout import *
import math
from k_gemm import f2u, interleave
MFMA = "v_mfma_f32_16x16x32_bf16"
def gen_final(name="final_kernel", with_b=True, lds_bytes=131072, helper=True, lead=6, nods=0, nomfma=0, now=0, nox=0, nobar=0, D=5, pf64=0, same=0, map=0, wp=1, wpad=0, csp=0, opad=0, osc=0, peel=1):
    p = Prog(); I = p.I
    p.raw(kernel_header(name))
    end = f"L_{name}_end"
    SW, SX = 4, 8
    SW2, SX2 = 12, 16
    SX1, SXIN, SOUT = 20, 24, 28
    sw, sT0, sT1, sWOFF, sXOFF, sM0, sPF, sCNT, sWOFF2, sXOFF2, sRT, sCT = 32, 33, 34, 35, 36, 37, 38, 39, 40, 41, 42, 43
    VAA = 16
    VAB = 18
    VDW = 19
    VL16 = 14
    VA = 32
    VB = 64
    ACCB, ACCS = 96, 112
    I("s_cmp_ge_u32 s2, 256"); I(f"s_cbranch_scc1 {end}")
    I(f"s_load_dwordx2 {s(SW,2)}, s[0:1], {ARG_W4}")
    I(f"s_load_dwordx2 {s(SW2,2)}, s[0:1], {ARG_WO}")
    I(f"s_load_dwordx2 {s(SX,2)}, s[0:1], {ARG_WS}")
    I(f"s_load_dwordx2 {s(SXIN,2)}, s[0:1], {ARG_X}")
    I(f"s_load_dwordx2 {s(SOUT,2)}, s[0:1], {ARG_OUT}")
    I("v_lshrrev_b32 v1, 6, v0"); I("s_nop 0"); I(f"v_readfirstlane_b32 {s(sw)}, v1")
    I("v_and_b32 v1, 63, v0"); I(f"v_lshlrev_b32 {v(VL16)}, 4, v1")
    I(f"s_and_b32 {s(sT0)}, s2, 7"); I(f"s_lshr_b32 {s(sT1)}, s2, 3")
    I(f"s_and_b32 {s(sCT)}, {s(sT1)}, 7"); I(f"s_lshr_b32 {s(sT1)}, {s(sT1)}, 3")
    I(f"s_lshl_b32 {s(sT0)}, {s(sT0)}, 2"); I(f"s_add_u32 {s(sRT)}, {s(sT0)}, {s(sT1)}")
    if map == 1:
        I(f"s_and_b32 {s(sT0)}, s2, 7"); I(f"s_lshr_b32 {s(sT1)}, s2, 3")
        I(f"s_and_b32 {s(sCT)}, {s(sT1)}, 3"); I(f"s_lshr_b32 {s(sT1)}, {s(sT1)}, 2")
        I(f"s_and_b32 s44, {s(sT0)}, 1"); I("s_lshl_b32 s44, s44, 2"); I(f"s_add_u32 {s(sCT)}, {s(sCT)}, s44")
        I(f"s_lshr_b32 {s(sT0)}, {s(sT0)}, 1"); I(f"s_lshl_b32 {s(sT0)}, {s(sT0)}, 3"); I(f"s_add_u32 {s(sRT)}, {s(sT0)}, {s(sT1)}")
    if same == 1: I(f"s_mov_b32 {s(sRT)}, 0"); I(f"s_mov_b32 {s(sCT)}, 0")
    if same == 2: I(f"s_mov_b32 {s(sRT)}, 0")
    if same == 3: I(f"s_mov_b32 {s(sCT)}, 0")
    I("v_and_b32 v2, 15, v1"); I("v_lshrrev_b32 v5, 4, v1")
    I("v_lshrrev_b32 v6, 2, v1"); I("v_and_b32 v6, 3, v6")
    I("v_lshl_add_u32 v7, v5, 2, v6")
    I("v_lshrrev_b32 v8, 1, v7"); I("v_and_b32 v8, 3, v8")
    I("v_and_b32 v9, 3, v1")
    I("v_lshlrev_b32 v10, 7, v7"); I("v_lshl_add_u32 v10, v8, 5, v10"); I("v_lshl_add_u32 v10, v9, 3, v10")
    I(f"s_and_b32 {s(sT0)}, {s(sw)}, 1"); I(f"s_lshl_b32 {s(sT0)}, {s(sT0)}, 1")
    for cb in range(2):
        I(f"s_add_u32 {s(sT1)}, {s(sT0)}, {cb}"); I(f"s_lshl_b32 {s(sT1)}, {s(sT1)}, 5"); I(f"v_xor_b32 {v(VAA+cb)}, {s(sT1)}, v10")
    I(f"s_lshr_b32 {s(sT0)}, {s(sw)}, 1"); I(f"s_lshl_b32 {s(sT0)}, {s(sT0)}, 12"); I(f"s_add_u32 {s(sT0)}, {s(sT0)}, 8192")
    I(f"v_add_u32 {v(VAB)}, {s(sT0)}, {v(VL16)}")
    I("v_lshrrev_b32 v6, 3, v1"); I("v_and_b32 v7, 7, v1"); I("v_lshrrev_b32 v8, 1, v6"); I("v_lshlrev_b32 v8, 1, v8"); I("v_xor_b32 v8, v8, v7")
    if csp:
        I("v_lshrrev_b32 v9, 2, v8"); I("v_and_b32 v8, 3, v8"); I("v_lshlrev_b32 v8, 4, v8"); I(f"v_lshl_add_u32 v8, v9, {9 if csp == 1 else 8}, v8")
        I(f"v_lshl_add_u32 {v(VDW)}, v6, 10, v8")
    else:
        I("v_lshlrev_b32 v8, 4, v8"); I(f"v_lshl_add_u32 {v(VDW)}, v6, 10, v8")
    I("s_waitcnt lgkmcnt(0)")
    def srd(dst, lo, off, size):
        if off is not None:
            I(f"s_add_u32 {s(dst)}, {s(lo)}, {off}"); I(f"s_addc_u32 {s(dst+1)}, {s(lo+1)}, 0")
        I(f"s_mov_b32 {s(dst+2)}, {size}"); I(f"s_mov_b32 {s(dst+3)}, 0x20000")
    srd(SX2, SX, WS_O, 18*MB); srd(SX1, SX, WS_X1, 2*MB); srd(SX, SX, WS_H2, 2048*1792*2)
    if wp:
        assert not helper and with_b
        I(f"s_mul_i32 {s(sT0)}, {s(sCT)}, {92*8192 + wpad}"); I(f"s_add_u32 {s(sT0)}, {s(sT0)}, {WS_WP}")
        I(f"s_add_u32 {s(SW)}, {s(SX1)}, {s(sT0)}"); I(f"s_addc_u32 {s(SW+1)}, {s(SX1+1)}, 0")
        I(f"s_sub_u32 {s(SW)}, {s(SW)}, {WS_X1}"); I(f"s_subb_u32 {s(SW+1)}, {s(SW+1)}, 0")
        I(f"s_mov_b32 {s(SW+2)}, {92*8192}"); I(f"s_mov_b32 {s(SW+3)}, 0x20000")
    else:
        srd(SW, SW, None, 1792*1024); srd(SW2, SW2, None, 4096*1024)
    srd(SXIN, SXIN, None, 2*MB); srd(SOUT, SOUT, None, 2*MB)
    if wp: I(f"s_lshl_b32 {s(sWOFF)}, {s(sw)}, 11")
    else:
        I(f"s_lshl_b32 {s(sWOFF)}, {s(sw)}, 14")
        if csp == 0: I(f"s_lshl_b32 {s(sT0)}, {s(sCT)}, 7")
        elif csp == 1: I(f"s_lshl_b32 {s(sT0)}, {s(sCT)}, 6")
        else:
            I(f"s_and_b32 {s(sT0)}, {s(sCT)}, 3"); I(f"s_lshl_b32 {s(sT0)}, {s(sT0)}, 6"); I(f"s_lshr_b32 {s(sT1)}, {s(sCT)}, 2"); I(f"s_lshl_b32 {s(sT1)}, {s(sT1)}, 9"); I(f"s_add_u32 {s(sT0)}, {s(sT0)}, {s(sT1)}")
        I(f"s_add_u32 {s(sWOFF)}, {s(sWOFF)}, {s(sT0)}")
    I(f"s_mov_b32 {s(sWOFF2)}, {s(sWOFF)}")
    I(f"s_lshl_b32 {s(sT0)}, {s(sRT)}, 2"); I(f"s_add_u32 {s(sT0)}, {s(sT0)}, {s(sw)}")
    I(f"s_mul_i32 {s(sXOFF)}, {s(sT0)}, {56*1024}"); I(f"s_mul_i32 {s(sXOFF2)}, {s(sT0)}, {131072 + opad}")
    I(f"s_lshl_b32 {s(sM0)}, {s(sw)}, 11")
    I(f"s_mov_b32 {s(sPF)}, 0")
    if helper:
        I(f"s_cmp_lg_u32 {s(sw)}, 4"); I(f"s_cbranch_scc1 L_{name}_main")
        I(f"s_and_b32 {s(sT0)}, {s(sRT)}, 3"); I(f"s_lshl_b32 {s(sT0)}, {s(sT0)}, 4")
        I(f"v_lshl_add_u32 v20, v5, 6, v2"); I(f"v_add_u32 v20, {s(sT0)}, v20"); I("v_lshlrev_b32 v20, 10, v20")
        I(f"s_lshl_b32 {s(sT1)}, {s(sCT)}, 7"); I(f"v_add_u32 v20, {s(sT1)}, v20")
        I("v_lshrrev_b32 v21, 3, v1"); I("v_lshlrev_b32 v21, 11, v21"); I("v_and_b32 v22, 7, v1"); I("v_lshl_add_u32 v21, v22, 7, v21")
        I(f"s_and_b32 {s(sT0)}, {s(sCT)}, 1"); I(f"s_lshl_b32 {s(sT0)}, {s(sT0)}, 10"); I(f"v_add_u32 v21, {s(sT0)}, v21")
        I("v_cmp_gt_u32 vcc, 32, v1"); I("v_mov_b32 v22, 0x7f000000"); I("s_nop 1"); I("v_cndmask_b32 v21, v22, v21, vcc")
        I(f"s_lshr_b32 {s(sT0)}, {s(sCT)}, 1"); I(f"s_lshl_b32 {s(sT1)}, {s(sRT)}, 2"); I(f"s_add_u32 {s(sT0)}, {s(sT0)}, {s(sT1)}")
        I(f"s_mul_i32 {s(sXOFF)}, {s(sT0)}, {56*1024}"); I(f"s_lshl_b32 {s(sXOFF2)}, {s(sT0)}, 17")
        I(f"s_mov_b32 {s(sWOFF)}, 0")
        nb_tot = 23 if with_b else 16
        if not with_b:
            for k in range(4): I(f"s_mov_b32 {s(SW+k)}, {s(SW2+k)}"); I(f"s_mov_b32 {s(SX+k)}, {s(SX2+k)}")
            I(f"s_mov_b32 {s(sXOFF)}, {s(sXOFF2)}")
        def pf(b):
            if with_b and b == 7:
                for k in range(4): I(f"s_mov_b32 {s(SW+k)}, {s(SW2+k)}"); I(f"s_mov_b32 {s(SX+k)}, {s(SX2+k)}")
                I(f"s_mov_b32 {s(sWOFF)}, 0"); I(f"s_mov_b32 {s(sXOFF)}, {s(sXOFF2)}")
            I(f"buffer_load_dword v24, v20, {s(SW,4)}, {s(sWOFF)} offen")
            I(f"buffer_load_dword v25, v21, {s(SX,4)}, {s(sXOFF)} offen")
            if pf64:
                I(f"buffer_load_dword v24, v20, {s(SW,4)}, {s(sWOFF)} offen offset:64")
                I(f"buffer_load_dword v25, v21, {s(SX,4)}, {s(sXOFF)} offen offset:64")
            I("s_waitcnt vmcnt(40)")
            I(f"s_add_u32 {s(sWOFF)}, {s(sWOFF)}, {4*65536}"); I(f"s_add_u32 {s(sXOFF)}, {s(sXOFF)}, {4*2048}")
        for b in range(lead): pf(b)
        for b in range(lead, nb_tot):
            for k in range(4): I("s_barrier")
            pf(b)
        I("s_waitcnt vmcnt(0)")
        I("s_endpgm")
        p.L(f"L_{name}_main")
    if not with_b:
        for k in range(4): I(f"s_mov_b32 {s(SW+k)}, {s(SW2+k)}"); I(f"s_mov_b32 {s(SX+k)}, {s(SX2+k)}")
        I(f"s_mov_b32 {s(sXOFF)}, {s(sXOFF2)}")
    nsw = [0]
    def dma_ops(slot):
        o = (slot & 3)*16384
        g = []
        if wp:
            g.append([Ins(f"s_add_u32 m0, {s(sM0)}, {o}"), Ins("s_nop 0"),
                      Ins(f"buffer_load_dwordx4 {v(VL16)}, {s(SW,4)}, {s(sWOFF)} offen lds")])
            g.append([Ins(f"buffer_load_dwordx4 {v(VL16)}, {s(SW,4)}, {s(sWOFF)} offen offset:1024 lds"),
                      Ins(f"s_add_u32 m0, {s(sM0)}, {o + 8192}"), Ins(f"s_add_u32 {s(sWOFF)}, {s(sWOFF)}, 8192")])
        else:
          g.append([Ins(f"s_add_u32 m0, {s(sM0)}, {o}"), Ins(f"s_add_u32 {s(sT0)}, {s(sWOFF)}, {8192 - 1024}"),
                  Ins(f"buffer_load_dwordx4 {v(VDW)}, {s(SW,4)}, {s(sWOFF)} offen lds")])
          g.append([Ins(f"buffer_load_dwordx4 {v(VDW)}, {s(SW,4)}, {s(sT0)} offen offset:1024 lds"),
                  Ins(f"s_add_u32 m0, {s(sM0)}, {o + 8192}"), Ins(f"s_add_u32 {s(sWOFF)}, {s(sWOFF)}, 65536")])
        g.append([Ins(f"buffer_load_dwordx4 {v(VL16)}, {s(SX,4)}, {s(sXOFF)} offen lds")])
        last = [Ins(f"buffer_load_dwordx4 {v(VL16)}, {s(SX,4)}, {s(sXOFF)} offen offset:1024 lds"), Ins(f"s_add_u32 {s(sXOFF)}, {s(sXOFF)}, 2048")]
        if with_b:
            lab = f"L_{name}_sw{nsw[0]}"; nsw[0] += 1
            last += [Ins(f"s_add_u32 {s(sPF)}, {s(sPF)}, 1"), Ins(f"s_cmp_eq_u32 {s(sPF)}, 28"), Ins(f"s_cbranch_scc0 {lab}")]
            if wp:
                for k in range(4): last += [Ins(f"s_mov_b32 {s(SX+k)}, {s(SX2+k)}")]
                last += [Ins(f"s_mov_b32 {s(sXOFF)}, {s(sXOFF2)}"), Label(lab)]
            else:
                for k in range(4): last += [Ins(f"s_mov_b32 {s(SW+k)}, {s(SW2+k)}"), Ins(f"s_mov_b32 {s(SX+k)}, {s(SX2+k)}")]
                last += [Ins(f"s_mov_b32 {s(sWOFF)}, {s(sWOFF2)}"), Ins(f"s_mov_b32 {s(sXOFF)}, {s(sXOFF2)}"), Label(lab)]
        g.append(last)
        if now: g = [[i for i in x if not (isinstance(i, Ins) and i.op.startswith('buffer') and f"{v(VDW)}," in i.text)] for x in g]
        if nox: g = [[i for i in x if not (isinstance(i, Ins) and i.op.startswith('buffer') and f"{v(VL16)}," in i.text)] for x in g]
        return g
    def read_ops(k, toggled):
        o = k*16384; buf = k & 1; r = []
        for e2 in range(2):
            for cb in range(2):
                for t in range(2):
                    r.append(Ins(f"ds_read_b64_tr_b16 {v(VA + buf*16 + (e2*2+cb)*4 + 2*t, 2)}, {v(VAA+cb)} offset:{o + e2*4096 + t*2048}"))
            for rb2 in range(2):
                r.append(Ins(f"ds_read_b128 {v(VB + buf*16 + (e2*2+rb2)*4, 4)}, {v(VAB)} offset:{o + rb2*2048 + e2*1024}"))
        return r if not nods else []
    I(f"s_lshr_b32 {s(sT0)}, {s(sw)}, 1"); I(f"s_lshl_b32 {s(sT0)}, {s(sT0)}, 1"); I(f"s_lshl_b32 {s(sT1)}, {s(sRT)}, 2"); I(f"s_add_u32 {s(sT0)}, {s(sT0)}, {s(sT1)}")
    if csp == 0:
        I(f"s_and_b32 {s(sT1)}, {s(sw)}, 1"); I(f"s_lshl_b32 s44, {s(sCT)}, 1"); I(f"s_add_u32 {s(sT1)}, {s(sT1)}, s44")
    elif csp == 1:
        I(f"s_and_b32 {s(sT1)}, {s(sw)}, 1"); I(f"s_lshl_b32 {s(sT1)}, {s(sT1)}, 3"); I(f"s_add_u32 {s(sT1)}, {s(sT1)}, {s(sCT)}")
    else:
        I(f"s_and_b32 {s(sT1)}, {s(sw)}, 1"); I(f"s_lshl_b32 {s(sT1)}, {s(sT1)}, 2"); I(f"s_and_b32 s44, {s(sCT)}, 3"); I(f"s_add_u32 {s(sT1)}, {s(sT1)}, s44")
        I(f"s_lshr_b32 s44, {s(sCT)}, 2"); I("s_lshl_b32 s44, s44, 3"); I(f"s_add_u32 {s(sT1)}, {s(sT1)}, s44")
    I(f"s_lshl_b32 s45, {s(sT0)}, 14"); I(f"s_lshl_b32 s46, {s(sT1)}, 10"); I("s_add_u32 s45, s45, s46")
    I(f"buffer_load_dwordx4 v[128:131], {v(VL16)}, {s(SX1,4)}, s45 offen")
    I("s_add_u32 s45, s45, 16384")
    I(f"buffer_load_dwordx4 v[132:135], {v(VL16)}, {s(SX1,4)}, s45 offen")
    I("v_lshlrev_b32 v144, 10, v2"); I("v_lshl_add_u32 v144, v5, 3, v144")
    I(f"s_lshl_b32 s45, {s(sT0)}, 14"); I(f"s_lshl_b32 s46, {s(sT1)}, 6"); I("s_add_u32 s45, s45, s46"); I("s_add_u32 s46, s45, 16384")
    for rb2 in range(2):
        for cb in range(2):
            I(f"buffer_load_dwordx2 {v(136+(rb2*2+cb)*2,2)}, v144, {s(SXIN,4)}, {'s45' if rb2 == 0 else 's46'} offen offset:{cb*32}")
    mid_stamp(I, 0)
    for c in range(D):
        if c == 4 or c == 8: I(f"s_xor_b32 {s(sM0)}, {s(sM0)}, 0x10000")
        for g in dma_ops(c): p.extend(g)
    nper = 4 - 2*now - 2*nox
    I(f"s_waitcnt vmcnt({nper*(D-1)})"); I("s_barrier")
    p.extend(read_ops(0, False))
    def body(acc, side=None):
        side = side if side is not None else []
        for k in range(4):
            I(f"s_waitcnt vmcnt({nper*(D-2)}) lgkmcnt(0)")
            if not nobar: I("s_barrier")
            pslot = (k + D) & 7
            pre = []
            if (pslot & 3) == 0: pre = [Ins(f"s_xor_b32 {s(sM0)}, {s(sM0)}, 0x10000")]
            dg = dma_ops(pslot); dg[0] = pre + dg[0]
            if k == 3:
                tog = [Ins(f"v_xor_b32 {v(r)}, 0x10000, {v(r)}") for r in (VAA, VAA+1, VAB)]
            else: tog = []
            rd = read_ops((k + 1) & 3, k == 3)
            p.extend(tog)
            buf = k & 1
            mf = []
            for e2 in range(2):
                for cb in range(2):
                    for rb2 in range(2):
                        d = v(acc + (rb2*2+cb)*4, 4)
                        mf.append(Ins(f"{MFMA} {d}, {v(VA + buf*16 + (e2*2+cb)*4, 4)}, {v(VB + buf*16 + (e2*2+rb2)*4, 4)}, {d}"))
            if nomfma: mf = [Ins("s_nop 0") for _ in mf]
            ri = 0
            for m in range(8):
                p.add(mf[m])
                nr = 2 if m % 2 == 0 else 1
                for _ in range(nr):
                    if ri < len(rd): p.add(rd[ri]); ri += 1
                if m % 2 == 1: p.extend(dg[m >> 1])
                for _ in range(4):
                    if side: p.add(side.pop(0))
            assert ri == len(rd)
        assert not side
    for r in range(ACCB, ACCS + 16): I(f"v_mov_b32 {v(r)}, 0")
    trace_parts = []
    pre_end = len(p.items)
    if with_b:
        I(f"s_mov_b32 {s(sCNT)}, 7")
        p.L(f"L_{name}_loopB"); b0 = len(p.items)
        body(ACCB); b1 = len(p.items)
        I(f"s_sub_u32 {s(sCNT)}, {s(sCNT)}, 1"); I(f"s_cmp_lg_u32 {s(sCNT)}, 0"); I(f"s_cbranch_scc1 L_{name}_loopB")
    mid_stamp(I, 1)
    I(f"s_mov_b32 s47, 0x{f2u(-math.log2(math.e)):x}")
    gate = []
    for rb2 in range(2):
        seq = []
        for cb in range(2):
            for r in range(4):
                j = cb*4 + r
                x1src = 128 + rb2*4 + (j >> 1)
                b = ACCB + (rb2*2+cb)*4 + r
                t0 = 146 + j
                q = Prog()
                q.I(f"v_lshlrev_b32 {v(t0)}, 16, {v(x1src)}") if (j & 1) == 0 else q.I(f"v_and_b32 {v(t0)}, 0xffff0000, {v(x1src)}")
                q.I(f"v_add_f32 {v(b)}, {v(b)}, {v(t0)}")
                q.I(f"v_mul_f32 {v(t0)}, s47, {v(b)}")
                q.I(f"v_exp_f32 {v(t0)}, {v(t0)}")
                q.I(f"v_add_f32 {v(t0)}, 1.0, {v(t0)}")
                q.I(f"v_rcp_f32 {v(t0)}, {v(t0)}")
                q.I(f"v_mul_f32 {v(b)}, {v(b)}, {v(t0)}")
                seq.append(q.items)
        gate += interleave(seq)
    if peel:
        body(ACCS, [Ins("s_nop 0")]*8 + gate)
    else:
        I("s_nop 7"); p.extend(gate)
    I(f"s_mov_b32 {s(sCNT)}, {15 if peel else 16}")
    p.L(f"L_{name}_loopS"); c0 = len(p.items)
    body(ACCS); c1 = len(p.items)
    I(f"s_sub_u32 {s(sCNT)}, {s(sCNT)}, 1"); I(f"s_cmp_lg_u32 {s(sCNT)}, 0"); I(f"s_cbranch_scc1 L_{name}_loopS")
    I("s_waitcnt lgkmcnt(0)")
    mid_stamp(I, 2)
    I("s_nop 7")
    for rb2 in range(2):
        for cb in range(2):
            for r in range(4):
                b = ACCB + (rb2*2+cb)*4 + r; sv = ACCS + (rb2*2+cb)*4 + r
                t1 = 56 + r
                xs = 136 + (rb2*2+cb)*2 + (r >> 1)
                I(f"v_lshlrev_b32 {v(t1)}, 16, {v(xs)}") if (r & 1) == 0 else I(f"v_and_b32 {v(t1)}, 0xffff0000, {v(xs)}")
                I(f"v_fma_f32 {v(sv)}, {v(sv)}, {v(b)}, {v(t1)}")
            x = ACCS + (rb2*2+cb)*4
            I(f"v_cvt_pk_bf16_f32 {v(64+(rb2*2+cb)*2)}, {v(x)}, {v(x+1)}"); I(f"v_cvt_pk_bf16_f32 {v(65+(rb2*2+cb)*2)}, {v(x+2)}, {v(x+3)}")
            I(f"buffer_store_dwordx2 {v(64+(rb2*2+cb)*2,2)}, v144, {s(SOUT,4)}, {'s45' if rb2 == 0 else 's46'} offen offset:{cb*32}" + (" sc1" if osc else ""))
    I("s_waitcnt vmcnt(0)")
    p.L(end); I("s_endpgm")
    items, n = fix_hazards(p.items, name=name); p.items = items
    ins = [i for i in p.items if isinstance(i, Ins)]
    errs = check_hazards(ins + [], name)
    return p.text(), kernel_desc(name, 160, 64, 160), errs

if __name__ == "__main__":
    t, d, e = gen_final(); print(len(t.splitlines()), e[:10])
```

```python
import re
from asmgen import *
from layout import *
import k_attn16 as KA
from k_attn16 import *
from k_gemm import gelu_ops, f2u, GC0, GC1, interleave

LDS_S0 = 131072
LDS_BYTES_A = 163840
S_X, S_WS = S_XN, S_O
S_W1, S_W2, S_H, S_DBG = 44, 48, 52, 56
S_PAR, S_CT, S_R01 = 41, 42, 43
S_R23, S_X01, S_X23, S_T2, S_T3, S_M0S, S_SPIN, S_C0, S_C1 = 60, 61, 62, 63, 64, 65, 66, 67, 68
S_WT = 88
V_ONES = 10
V_XR = 2
V_CSQ = 218
V_NMU, V_RS = 230, 234
V_POLL, V_POLLA = 226, 227
V_POLL2, V_POLLA2 = 138, 139
V_D3 = 128
V_A3K = 130
A_J2ACC, A_J2R = 192, 208
A_ST23 = 176
NRQ, LAGQ = 12, 6
def xreg(X, e):
    if e < 8: return a((e*4 + X)*4, 4)
    if e < 12: return a(192 + ((e-8)*4 + X)*4, 4)
    return v(144 + ((e-12)*4 + X)*4, 4)
def hreg(s_, e): return a((e*2 + s_)*4, 4)
J_ACC = lambda s_, nb: 16 + (s_*2 + nb)*4
J_CS = lambda nb: 32 + nb*4
J_SUM = lambda s_: 40 + 4*s_
J_GR = lambda s_: 48 + 4*s_
def ctr_off(kind): return 32*kind

def gelu8(q, x, t, nmu, cs, P0, P1, IR):
    q.I(f"v_fma_f32 {v(x)}, {v(nmu)}, {v(cs)}, {v(x)}")
    q.I(f"v_mul_f32 {v(t)}, {v(x)}, {v(x)}")
    q.I(f"v_fma_f32 {v(t)}, {v(t)}, {v(P1)}, {v(P0)}")
    q.I(f"v_mul_f32 {v(t)}, {v(t)}, {v(x)}")
    q.I(f"v_exp_f32 {v(t)}, {v(t)}")
    q.I(f"v_fma_f32 {v(t)}, {v(t)}, {v(IR)}, {v(IR)}")
    q.I(f"v_rcp_f32 {v(t)}, {v(t)}")
    q.I(f"v_mul_f32 {v(x)}, {v(x)}, {v(t)}")
def gelu_consts(I, r, P0, P1, IR):
    I(f"v_mul_f32 {v(P1)}, {v(r)}, {v(r)}"); I(f"v_rcp_f32 {v(IR)}, {v(r)}")
    I(f"v_mul_f32 {v(P1)}, {v(P1)}, {v(r)}"); I(f"v_mul_f32 {v(P0)}, 0x{f2u(GC0):x}, {v(r)}"); I(f"v_mul_f32 {v(P1)}, 0x{f2u(GC1):x}, {v(P1)}")

class AGen(AttnGen):
    def __init__(self, opts=None):
        opts = dict(opts or {}); opts.setdefault('lsum', 0)
        super().__init__(stamps=False, opts=opts)
        for k_, v_ in dict(j3=1, j3v=1, xmap=1, hrate=1.3, nx0=4, chk=5, mz=1, pfq=1, pfx=0, pf3=0, cpf=1, opad=1024, pfw=0, wp=2, wpl=1, kst=4, kvl=3, wt=7, shs=1, wpad=1024, nopoll=0, ph=(1, 66, 76), st=('j1', 'qp', 'j2', 'ft', 'loop', 'epi')).items(): self.o.setdefault(k_, v_)
        self.vmq = []; self.vm_out = 0; self.lgq = []; self.tail = False; self.wpr = 208 if self.o['wp'] == 2 else 0
    def ms(self, name):
        if name in self.o['st']: mid_stamp(self.I, self.o['st'].index(name))
    def vm(self, tag, n=1): self.vmq += [tag]*n
    def wait_for(self, tag):
        idx = max(i for i, e in enumerate(self.vmq) if e == tag)
        return len(self.vmq) - 1 - idx
    def waitvm(self, tag):
        n = self.wait_for(tag)
        if n < self.vm_out: self.I(f"s_waitcnt vmcnt({n})")
    def emit(self, ins):
        if ins.kind == 'vmem':
            if self.vm_out >= 62: self.p.add(Ins("s_waitcnt vmcnt(54)")); self.vm_out = 54
            self.vm_out += 1
        if ins.op == 's_waitcnt':
            m = re.search(r'vmcnt\((\d+)\)', ins.text)
            if m: self.vm_out = min(self.vm_out, int(m.group(1)))
        self.p.add(ins); return ins

    def prologue_setup(self):
        I = self.I
        I("s_cmp_ge_u32 s2, 256")
        I("s_cbranch_scc1 L_a_end")
        I(f"s_load_dwordx2 {s(S_X,2)}, s[0:1], {ARG_X}")
        I(f"s_load_dwordx2 {s(S_W1,2)}, s[0:1], {ARG_W1}")
        I(f"s_load_dwordx2 {s(S_WQ,2)}, s[0:1], {ARG_WQ}")
        I(f"s_load_dwordx2 {s(S_K,2)}, s[0:1], {ARG_K}")
        I(f"s_load_dwordx2 {s(S_V,2)}, s[0:1], {ARG_V}")
        I(f"s_load_dwordx2 {s(S_W2,2)}, s[0:1], {ARG_W2}")
        I(f"s_load_dwordx2 {s(S_WS,2)}, s[0:1], {ARG_WS}")
        I(f"s_load_dwordx2 {s(S_DBG,2)}, s[0:1], {ARG_DBG}")
        if self.o['wp'] == 2: I(f"s_load_dwordx2 s[92:93], s[0:1], {ARG_W4}"); I(f"s_load_dwordx2 s[94:95], s[0:1], {ARG_WO}")
        I(f"v_lshrrev_b32 v1, 6, v0")
        I(f"s_and_b32 {s(S_T0)}, s2, 7")
        I(f"v_readfirstlane_b32 {s(S_W)}, v1")
        I(f"s_lshr_b32 {s(S_T1)}, s2, 3")
        I(f"s_and_b32 {s(S_HEAD)}, {s(S_T1)}, 3")
        I(f"s_lshl_b32 {s(S_T0)}, {s(S_T0)}, 2")
        I(f"s_add_u32 {s(S_HEAD)}, {s(S_HEAD)}, {s(S_T0)}")
        I(f"s_lshr_b32 {s(S_QB)}, s2, 5")
        if self.o['xmap']:
            I(f"s_bfe_u32 {s(S_PAR)}, {s(S_HEAD)}, 0x10002"); I(f"s_lshr_b32 {s(S_CT)}, {s(S_HEAD)}, 3"); I(f"s_lshl_b32 {s(S_CT)}, {s(S_CT)}, 2")
            I(f"s_and_b32 {s(S_T0)}, {s(S_HEAD)}, 3"); I(f"s_or_b32 {s(S_CT)}, {s(S_CT)}, {s(S_T0)}")
        else:
            I(f"s_and_b32 {s(S_PAR)}, {s(S_HEAD)}, 1"); I(f"s_lshr_b32 {s(S_CT)}, {s(S_HEAD)}, 1")
        I(f"s_lshl_b32 {s(S_T0)}, {s(S_QB)}, 4"); I(f"s_lshl_b32 {s(S_T1)}, {s(S_W)}, 2"); I(f"s_add_u32 {s(S_T0)}, {s(S_T0)}, {s(S_T1)}")
        I(f"s_lshl_b32 {s(S_T1)}, {s(S_PAR)}, 1"); I(f"s_add_u32 {s(S_R01)}, {s(S_T0)}, {s(S_T1)}")
        I(f"s_add_u32 {s(S_R23)}, {s(S_T0)}, 2"); I(f"s_sub_u32 {s(S_R23)}, {s(S_R23)}, {s(S_T1)}")
        I(f"s_lshl_b32 {s(S_X01)}, {s(S_R01)}, 14"); I(f"s_lshl_b32 {s(S_X23)}, {s(S_R23)}, 14")
        I("v_and_b32 v1, 63, v0")
        I(f"v_lshlrev_b32 {v(V_L16)}, 4, v1")
        I("v_and_b32 v2, 15, v1"); I("v_lshrrev_b32 v5, 4, v1")
        I("v_lshrrev_b32 v8, 3, v1"); I("v_and_b32 v9, 7, v1"); I("v_xor_b32 v9, v9, v8"); I("v_lshlrev_b32 v9, 4, v9"); I("v_lshl_add_u32 v3, v8, 10, v9")
        I("v_lshrrev_b32 v8, 2, v1"); I("v_lshlrev_b32 v8, 10, v8"); I("v_and_b32 v9, 3, v1")
        I("v_lshrrev_b32 v4, 5, v1"); I("v_lshlrev_b32 v4, 1, v4"); I("v_xor_b32 v4, v4, v9"); I("v_lshl_add_u32 v6, v4, 4, v8")
        I("v_bfe_u32 v4, v1, 4, 1"); I("v_lshlrev_b32 v4, 1, v4"); I("v_xor_b32 v4, v4, v9"); I(f"v_lshl_add_u32 {v(15)}, v4, 4, v8")
        I("s_waitcnt lgkmcnt(0)")
        def fin(S_, size):
            I(f"s_mov_b32 {s(S_+2)}, {size}"); I(f"s_mov_b32 {s(S_+3)}, 0x20000")
        fin(S_X, "0x200000")
        I(f"s_lshl_b32 {s(S_T0)}, {s(S_HEAD)}, 8")
        I(f"s_add_u32 {s(S_WQ)}, {s(S_WQ)}, {s(S_T0)}"); I(f"s_addc_u32 {s(S_WQ+1)}, {s(S_WQ+1)}, 0")
        I(f"s_sub_u32 {s(S_WQ+2)}, 0x400000, {s(S_T0)}"); I(f"s_mov_b32 {s(S_WQ+3)}, 0x20000")
        I(f"s_lshl_b32 {s(S_T0)}, {s(S_CT)}, 6")
        for S_ in (S_W1, S_W2):
            I(f"s_add_u32 {s(S_)}, {s(S_)}, {s(S_T0)}"); I(f"s_addc_u32 {s(S_+1)}, {s(S_+1)}, 0")
            I(f"s_sub_u32 {s(S_+2)}, 0x80000, {s(S_T0)}"); I(f"s_mov_b32 {s(S_+3)}, 0x20000")
        I(f"s_lshl_b32 {s(S_M0S)}, {s(S_W)}, 13"); I(f"s_add_u32 {s(S_M0S)}, {s(S_M0S)}, {LDS_S0}")
        self.slice_dma(S_W1, 6, 'w1', 'S0')
        I(f"s_lshl_b32 {s(S_T0)}, {s(S_W)}, 12")
        I(f"s_mov_b32 {s(S_M0K)}, {s(S_T0)}")
        I(f"s_add_u32 {s(S_M0V)}, {s(S_T0)}, {LDS_V}")
        for k in range(self.o['nx0']): self.x_dma(0, k)
        if self.o['pfq']:
            I("v_bfe_u32 v4, v1, 1, 4"); I("v_lshlrev_b32 v4, 13, v4"); I("v_and_b32 v7, 1, v1"); I("v_lshl_add_u32 v4, v7, 7, v4")
            I(f"s_lshl_b32 {s(S_T0)}, {s(S_QB)}, 2"); I(f"s_add_u32 {s(S_T0)}, {s(S_T0)}, {s(S_W)}"); I(f"s_lshl_b32 {s(S_T0)}, {s(S_T0)}, 17")
            I(f"buffer_load_dword {v(V_POLL)}, v4, {s(S_WQ,4)}, {s(S_T0)} offen"); self.vm('pf')
        if self.o['pfx']:
            I("v_lshrrev_b32 v4, 3, v1"); I("v_lshlrev_b32 v4, 10, v4"); I("v_and_b32 v7, 7, v1"); I("v_lshl_add_u32 v4, v7, 7, v4")
            I(f"s_and_b32 {s(S_T0)}, {s(S_HEAD)}, 3"); I(f"s_lshl_b32 {s(S_T0)}, {s(S_T0)}, 13"); I(f"s_add_u32 {s(S_T0)}, {s(S_T0)}, {s(S_X23)}")
            I(f"buffer_load_dword {v(225)}, v4, {s(S_X,4)}, {s(S_T0)} offen"); self.vm('pf')
        if self.o['cpf']: self.code_prefetch("a_kernel", "L_final_kernel_end", "L_pc1", 4, 224, 6)
        I("v_and_b32 v1, 63, v0")
        I("v_xor_b32 v4, v5, v2"); I("v_lshlrev_b32 v4, 4, v4"); I("v_lshl_add_u32 v4, v2, 8, v4")
        I(f"s_lshl_b32 {s(S_T2)}, {s(S_W)}, 6"); I(f"v_xor_b32 v4, {s(S_T2)}, v4")
        for s_ in range(4): I(f"v_xor_b32 {v(V_AK+s_)}, {s_ << 6}, v4")
        I("v_lshrrev_b32 v8, 2, v1"); I("v_and_b32 v8, 3, v8")
        I("v_lshl_add_u32 v7, v5, 2, v8")
        I("v_and_b32 v9, 3, v1")
        I("v_and_b32 v4, 7, v7")
        I("v_lshlrev_b32 v10, 8, v7")
        I("v_lshl_add_u32 v11, v4, 5, v10"); I("v_lshl_add_u32 v11, v9, 3, v11")
        I(f"v_add_u32 v11, {LDS_V}, v11")
        for db in range(8): I(f"v_xor_b32 {v(V_AV+db)}, {db << 5}, v11")
        I("v_lshl_add_u32 v10, v5, 3, v8")
        I("v_lshlrev_b32 v12, 1, v4"); I("v_xor_b32 v12, v12, v9"); I("v_lshlrev_b32 v12, 4, v12"); I("v_lshl_add_u32 v12, v10, 8, v12")
        I(f"v_xor_b32 v12, {s(S_T2)}, v12")
        for e in range(4):
            I(f"v_xor_b32 {v(V_AW+e)}, {e << 6}, v12")
            I(f"v_add_u32 {v(V_AWV+e)}, {LDS_V}, {v(V_AW+e)}")
        I("v_and_b32 v12, 1, v5"); I("v_lshlrev_b32 v12, 5, v12"); I("v_lshl_add_u32 v12, v9, 3, v12"); I(f"v_add_u32 v12, {LDS_S0}, v12")
        I(f"v_lshl_add_u32 {v(222)}, v10, 6, v12"); I(f"v_xor_b32 {v(223)}, 32, {v(222)}")
        I(f"v_lshl_add_u32 {v(228)}, v7, 6, v12")
        for jj in range(4):
            I(f"v_add_u32 v8, {4*jj}, v5"); I("v_xor_b32 v8, v8, v2"); I("v_lshlrev_b32 v8, 4, v8")
            I(f"v_lshl_add_u32 {v(V_DK+jj)}, v5, 8, v8")
        for pj in range(2):
            I(f"v_add_u32 v8, {4*pj}, v5"); I("v_lshlrev_b32 v8, 1, v8"); I("v_xor_b32 v8, v8, v2"); I("v_lshlrev_b32 v8, 4, v8")
            I(f"v_lshl_add_u32 {v(V_DV+pj)}, v5, 8, v8")
            I(f"v_lshl_add_u32 {v(V_DW+pj)}, v5, 13, v8")
        I(f"s_lshl_b32 {s(S_T0)}, {s(S_HEAD)}, 19")
        for S_ in (S_K, S_V):
            I(f"s_add_u32 {s(S_)}, {s(S_)}, {s(S_T0)}"); I(f"s_addc_u32 {s(S_+1)}, {s(S_+1)}, 0")
            fin(S_, "0x80000")
        I(f"s_add_u32 {s(S_H)}, {s(S_WS)}, {WS_H}"); I(f"s_addc_u32 {s(S_H+1)}, {s(S_WS+1)}, 0"); fin(S_H, "0x200000")
        fin(S_WS, hex(44*MB)); fin(S_DBG, "0x100")
        I(f"s_lshl_b32 {s(S_T0)}, {s(S_W)}, 12")
        I(f"s_mov_b32 {s(S_KOFF)}, {s(S_T0)}")
        I(f"s_mov_b32 {s(S_VOFF)}, {s(S_T0)}")
        I(f"s_lshl_b32 {s(S_WOFF)}, {s(S_W)}, 17")
        I(f"s_mov_b32 {s(S_THR)}, {'0x41500000' if KA.LSUM else '0x46000000'}")
        I(f"v_mov_b32 {v(V_THR)}, {s(S_THR)}")
        I(f"s_mov_b32 {s(S_SCALE)}, 0x3e0293ee")
        I("v_min_u32 v4, 2, v1"); I(f"v_add_u32 v4, {s(S_QB)}, v4"); I("v_max_u32 v4, 1, v4"); I("v_min_u32 v4, 8, v4"); I("v_subrev_u32 v4, 1, v4")
        I("v_and_b32 v8, 3, v4"); I("v_lshlrev_b32 v8, 6, v8"); I("v_lshrrev_b32 v4, 2, v4"); I(f"v_lshl_add_u32 {v(V_POLLA)}, v4, 2, v8")
        I(f"s_and_b32 {s(S_C0)}, {s(S_QB)}, 3"); I(f"s_lshl_b32 {s(S_C0)}, {s(S_C0)}, 6"); I(f"s_lshr_b32 {s(S_C1)}, {s(S_QB)}, 2"); I(f"s_lshl_b32 {s(S_C1)}, {s(S_C1)}, 2")
        I(f"s_add_u32 {s(S_C0)}, {s(S_C0)}, {s(S_C1)}")
        for k in range(4): I(f"v_mov_b32 {v(V_ONES+k)}, 0x3f803f80")
        I("v_and_b32 v8, 7, v2"); I("v_xor_b32 v8, v8, v5"); I("v_lshlrev_b32 v8, 4, v8"); I("v_lshl_add_u32 v8, v2, 7, v8")
        I(f"v_add_u32 v4, {s(S_M0K)}, v8"); I("v_xor_b32 v5, 64, v4"); I(f"v_add_u32 v6, {LDS_V}, v4"); I(f"v_add_u32 v7, {LDS_V}, v5")

    def x_dma_op(self, half, k, i):
        I = self.I
        reg, slot = self.WSLOT[k]
        s_, j = i >> 1, i & 1
        imm = s_*2048 + j*1024
        I(f"s_add_u32 m0, {s(S_M0K if reg == 'K' else S_M0V)}, {slot*SLOT}")
        I(f"s_add_u32 {s(S_T0)}, {s(S_X01 if half == 0 else S_X23)}, {s_*16384 + j*8192 + k*128 - imm}")
        I(f"buffer_load_dwordx4 v3, {s(S_X,4)}, {s(S_T0)} offen offset:{imm} lds", lds_w=(reg, slot, 'x')); self.vm(('x', half, k))
    def x_dma(self, half, k):
        for i in range(4): self.x_dma_op(half, k, i)
    def x_read(self, half, k):
        reg, slot = self.WSLOT[k]
        for e2 in range(2):
            for s_ in range(2):
                ar = (4 if reg == 'K' else 6) + e2
                self.I(f"ds_read_b128 {xreg(2*half + s_, 2*k + e2)}, {v(ar)} offset:{slot*SLOT + s_*2048}", lds_r=(reg, slot, 'xr')); self.lg(('xr', half, k))
    def x23_stage(self, k0, k1):
        for k in range(k0, k1):
            self.waitvm(('x', 1, k)); self.x_read(1, k)
            if k > k0: self.waitlg(('xr', 1, k-1)); self.wq_dma(k-1)
        self.waitlg(('xr', 1, k1-1)); self.wq_dma(k1-1)
    def lg(self, tag): self.lgq.append(tag)
    def waitlg(self, tag):
        idx = max(i for i, e in enumerate(self.lgq) if e == tag)
        self.I(f"s_waitcnt lgkmcnt({min(15, len(self.lgq) - 1 - idx)})")

    def code_prefetch(self, lo, hi, lab, vt, dst, nper):
        I = self.I
        I(f"s_getpc_b64 {s(S_WT,2)}")
        self.p.L(lab)
        I(f"s_add_u32 {s(S_WT)}, {s(S_WT)}, {lo} - {lab}") ; I(f"s_addc_u32 {s(S_WT+1)}, {s(S_WT+1)}, {'0' if True else ''}") if not lo.startswith('a_kernel') else None
        if lo.startswith('a_kernel'):
            self.p.items.pop()
            I(f"s_sub_u32 {s(S_WT)}, {s(S_WT)}, {lab} - {lo}"); I(f"s_subb_u32 {s(S_WT+1)}, {s(S_WT+1)}, 0")
        I(f"s_lshr_b32 {s(S_T0)}, s2, 3"); I(f"s_lshl_b32 {s(S_T0)}, {s(S_T0)}, 2"); I(f"s_add_u32 {s(S_T0)}, {s(S_T0)}, {s(S_W)}"); I(f"s_mul_i32 {s(S_T0)}, {s(S_T0)}, {nper}")
        I(f"v_lshrrev_b32 {v(vt)}, 4, {v(V_L16)}"); I(f"v_min_u32 {v(vt)}, {nper - 1}, {v(vt)}"); I(f"v_add_u32 {v(vt)}, {s(S_T0)}, {v(vt)}")
        I(f"v_min_u32 {v(vt)}, (({hi} - {lo}) >> 7) - 1, {v(vt)}"); I(f"v_lshlrev_b32 {v(vt)}, 7, {v(vt)}")
        I(f"global_load_dword {v(dst)}, {v(vt)}, {s(S_WT,2)}"); self.vm('cpf')

    def slice_dma_op(self, srd, vo, tag, region, i):
        I = self.I
        h, jj = i >> 2, i & 3
        I(f"s_add_u32 m0, {s(S_M0S)}, {h*4096}")
        I(f"s_lshl_b32 {s(S_T0)}, {s(S_W)}, 17")
        I(f"s_add_u32 {s(S_T0)}, {s(S_T0)}, {(4*h + jj)*16384 - jj*1024}")
        I(f"buffer_load_dwordx4 {v(vo)}, {s(srd,4)}, {s(S_T0)} offen offset:{jj*1024} lds", lds_w=region); self.vm(tag)
    def slice_dma(self, srd, vo, tag, region):
        for i in range(8): self.slice_dma_op(srd, vo, tag, region, i)
    def kv_op(self, which, tile, jj):
        base = S_M0K if which == 'K' else S_M0V
        self.I(f"s_add_u32 m0, {s(base)}, {(tile & 3)*SLOT}")
        self.I("s_nop 0")
        self.emit_dma(which, tile, jj); self.vm(('kv', (which, tile)))
        if jj == 3:
            off = S_KOFF if which == 'K' else S_VOFF
            self.I(f"s_add_u32 {s(off)}, {s(off)}, {SLOT}")

    def wq_dma_op(self, c, jj):
        reg, slot = self.WSLOT[c]
        base = S_M0K if reg == 'K' else S_M0V
        self.I(f"s_add_u32 m0, {s(base)}, {slot*SLOT}")
        self.I(f"s_add_u32 {s(S_T0)}, {s(S_WOFF)}, {(64*c + 4*jj)*8192 - jj*1024}")
        self.I(f"buffer_load_dwordx4 {v(V_DW+(jj>>1))}, {s(S_WQ,4)}, {s(S_T0)} offen offset:{jj*1024} lds", lds_w=(reg, slot)); self.vm(('w', c))
    def wq_dma(self, c):
        for jj in range(4): self.wq_dma_op(c, jj)
    def wread(self, rho):
        phi, t = rho >> 1, rho & 1
        c, e2, nb = phi >> 4, (phi >> 3) & 1, phi & 7
        ep, b = nb >> 1, nb & 1
        reg, slot = self.WSLOT[c]
        ar = (V_AW if reg == 'K' else V_AWV) + ep
        return Ins(f"ds_read_b64_tr_b16 {a(A_WF + 4*(phi % NRQ) + 2*t, 2)}, {v(ar)} offset:{slot*SLOT + e2*8192 + t*1024 + 8*b}", lds_r=(reg, slot))

    def row_stats(self, s_, sum_txt, gr_regs, t=8, t2=9):
        I = self.I
        I(f"v_mov_b32 {v(t)}, 0")
        for r in range(4):
            I(f"s_mov_b32 vcc_lo, 0x{((1 | (1 << 20)) << r):x}"); I(f"s_mov_b32 vcc_hi, 0x{(((1 << 8) | (1 << 28)) << r) & 0xffffffff:x}")
            I(f"v_cndmask_b32 {v(t)}, {v(t)}, {v(gr_regs[r])}, vcc")
        for sw in ('16', '32'):
            I(f"v_mov_b32 {v(t2)}, {v(t)}"); I("s_nop 1"); I(f"v_permlane{sw}_swap_b32 {v(t)}, {v(t2)}"); I("s_nop 0"); I(f"v_add_f32 {v(t)}, {v(t)}, {v(t2)}")
        nm, rs = V_NMU + s_, V_RS + s_
        I(f"v_mul_f32 {v(nm)}, 0xbb000000, {sum_txt}")
        I(f"v_mul_f32 {v(t)}, 0x3b000000, {v(t)}")
        I(f"v_fma_f32 {v(t)}, -{v(nm)}, {v(nm)}, {v(t)}")
        I(f"v_max_f32 {v(t)}, 0, {v(t)}")
        I(f"v_add_f32 {v(t2)}, 0x3727c5ac, {v(t)}")
        I(f"v_rsq_f32 {v(rs)}, {v(t2)}")
        return t

    def j1(self):
        I = self.I
        NF = 32; LA = 4
        AJ = 222
        def rd(phi):
            e, nb = phi >> 1, phi & 1
            for t in range(2):
                self.emit(Ins(f"ds_read_b64_tr_b16 {a(A_WF + 4*(phi % 8) + 2*t, 2)}, {v(AJ+nb)} offset:{e*2048 + t*256}", lds_r='S0')); self.lg(('w1', phi))
        self.ms('s0')
        NX0 = self.o['nx0']
        ops = [(0, k) for k in range(NX0, 8)] + [(1, k) for k in range(8)]
        slot_ops = [[[] for _ in range(4)] for _ in range(8)]
        oi = 0
        for k in range(8):
            n_here = 1 if k + NX0 <= 7 else 2
            for j in range(n_here):
                if oi >= len(ops): break
                half, kk = ops[oi]
                if half == 1 and kk > k: break
                for i in range(4):
                    slot_ops[k][(i + j*4)//n_here if n_here == 2 else i].append(lambda half=half, kk=kk, i=i: self.x_dma_op(half, kk, i))
                oi += 1
        rest = ops[oi:]
        self.waitvm(('x', 0, 0)); self.x_read(0, 0)
        self.ms('x0')
        I("s_barrier")
        for phi in range(LA): rd(phi)
        nread = LA
        for e in range(16):
            k = e >> 1
            if e % 2 == 0:
                if k < 7: self.waitvm(('x', 0, k+1)); self.x_read(0, k+1)
                self.waitlg(('xr', 0, k))
            first = (e == 0)
            def M(d, A, B): I(f"{MFMA} {v(d,4)}, {A}, {B}, {'0' if first else v(d,4)}")
            for s_ in range(2):
                M(J_SUM(s_), v(V_ONES, 4), xreg(s_, e)); M(J_GR(s_), xreg(s_, e), xreg(s_, e))
            for nb in range(2):
                phi = 2*e + nb
                self.waitlg(('w1', phi))
                A = a(A_WF + 4*(phi % 8), 4)
                for s_ in range(2): M(J_ACC(s_, nb), A, xreg(s_, e))
                for f_ in slot_ops[k][2*(e & 1) + nb]: f_()
                M(J_CS(nb), A, v(V_ONES, 4))
                if nread < NF: rd(nread); nread += 1
        for (half, kk) in rest: self.x_dma(half, kk)
        self.ms('j1m')
        self.x23_stage(0, 2)
        self.ms('j1x')
        I("s_nop 7")
        for s_ in range(2):
            t = self.row_stats(s_, v(J_SUM(s_)), [J_GR(s_)+r for r in range(4)])
            I(f"v_mul_f32 {v(t)}, {v(t)}, {v(V_RS+s_)}"); I(f"v_mul_f32 {v(t)}, {v(t)}, {v(V_RS+s_)}")
            I(f"v_add_f32 {v(t)}, 0x3727c5ac, {v(t)}"); I(f"v_rsq_f32 {v(t)}, {v(t)}")
            I("s_nop 0")
            I(f"v_mul_f32 {v(60+s_)}, {v(t)}, {v(V_RS+s_)}")
            gelu_consts(I, 60+s_, 88+3*s_, 89+3*s_, 90+3*s_)
        if self.o['shs']:
            I(f"v_lshrrev_b32 v8, 1, {v(V_L16)}")
            I(f"s_lshl_b32 {s(S_T0)}, {s(S_R01)}, 7"); I(f"s_add_u32 {s(S_T0)}, {s(S_T0)}, {WS_RST}")
            for s_ in range(2):
                I(f"v_mov_b32 {v(94+2*s_)}, {v(V_NMU+s_)}"); I(f"v_mov_b32 {v(95+2*s_)}, {v(V_RS+s_)}")
            I("s_mov_b64 exec, 0xffff")
            for s_ in range(2):
                I(f"buffer_store_dwordx2 {v(94+2*s_,2)}, v8, {s(S_WS,4)}, {s(S_T0)} offen offset:{s_*128} sc1"); self.vm('rst')
            I("s_mov_b64 exec, -1")
        seqs = []
        for s_ in range(2):
            for nb in range(2):
                for r in range(4):
                    q = Prog(); gelu8(q, J_ACC(s_, nb) + r, 64 + (s_*2+nb)*4 + r, V_NMU+s_, J_CS(nb)+r, 88+3*s_, 89+3*s_, 90+3*s_); seqs.append(q.items)
        self.p.extend(interleave(seqs))
        I(f"s_lshl_b32 {s(S_T0)}, {s(S_CT)}, 10"); I(f"s_add_u32 {s(S_T0)}, {s(S_T0)}, {s(S_X01)}")
        for s_ in range(2):
            for jj in range(4):
                x0 = J_ACC(s_, jj >> 1) + 2*(jj & 1)
                I(f"v_cvt_pk_bf16_f32 {v(80+s_*4+jj)}, {v(x0)}, {v(x0+1)}")
            I(f"buffer_store_dwordx4 {v(80+s_*4,4)}, {v(V_L16)}, {s(S_H,4)}, {s(S_T0)} offen offset:0 sc1" if s_ == 0 else
              f"buffer_store_dwordx4 {v(80+s_*4,4)}, {v(V_L16)}, {s(S_H,4)}, {s(S_T1)} offen offset:0 sc1"); self.vm('hst')
            if s_ == 0: I(f"s_add_u32 {s(S_T1)}, {s(S_T0)}, 16384")
        self.ms('j1s')
        self.x23_stage(2, self.o['kst'])

    def signal(self, kind, lab):
        I = self.I
        I(f"s_cmp_lg_u32 {s(S_W)}, 0"); I(f"s_cbranch_scc1 {lab}")
        I("s_mov_b64 exec, 1")
        I("v_mov_b32 v8, 1"); I("v_mov_b32 v9, 0")
        I(f"buffer_atomic_add v8, v9, {s(S_DBG,4)}, {s(S_C0)} offen offset:{ctr_off(kind)} sc1")
        I("s_mov_b64 exec, -1")
        self.p.L(lab)
    def poll_issue(self, dst, addr, kind):
        self.I(f"buffer_load_dword {v(dst)}, {v(addr)}, {s(S_DBG,4)}, 0 offen offset:{ctr_off(kind)} sc1")
    def poll_check(self, dst, addr, kind, lab):
        I = self.I
        I(f"v_cmp_gt_u32 vcc, 32, {v(dst)}"); I("s_nop 0")
        I(f"s_cbranch_vccz {lab}_ok")
        save = self.vm_out
        I(f"s_mov_b32 {s(S_SPIN)}, 20000")
        self.p.L(f"{lab}_spin")
        I(f"buffer_load_dword {v(dst)}, {v(addr)}, {s(S_DBG,4)}, 0 offen offset:{ctr_off(kind)} sc1").nowarn = True
        I("s_waitcnt vmcnt(0)")
        I(f"v_cmp_gt_u32 vcc, 32, {v(dst)}"); I("s_nop 0")
        I(f"s_cbranch_vccz {lab}_ok")
        I(f"s_sub_u32 {s(S_SPIN)}, {s(S_SPIN)}, 1"); I(f"s_cmp_lg_u32 {s(S_SPIN)}, 0"); I(f"s_cbranch_scc1 {lab}_spin")
        self.p.L(f"{lab}_ok")
        self.vm_out = save

    def h_ops(self):
        I = self.I
        ops = []
        def setup():
            I(f"v_lshrrev_b32 v0, 4, {v(V_L16)}"); I("v_and_b32 v1, 15, v0"); I("v_and_b32 v8, 48, v0")
        def addr(cg, s_):
            dl = (1, -1, 2, -2)[cg]; dst = 2 + 2*(cg & 1) + s_
            I(f"s_add_u32 {s(S_T2)}, {s(S_R01)}, {s_}"); I(f"s_lshl_b32 {s(S_T2)}, {s(S_T2)}, 4")
            I(f"v_add_u32 v6, {s(S_T2)}, v1")
            I(f"v_subrev_u32 v6, {dl}, v6") if dl > 0 else I(f"v_add_u32 v6, {-dl}, v6")
            I(f"v_ashrrev_i32 v7, 4, v6"); I(f"v_lshlrev_b32 v7, 14, v7")
            I(f"v_and_b32 v6, 15, v6"); I(f"v_add_u32 v6, v6, v8"); I(f"v_lshl_add_u32 {v(dst)}, v6, 4, v7")
        def mk(e, s_):
            def f():
                cg = e >> 2
                if e == 0 and s_ == 0: setup()
                if (e & 3) == 0: addr(cg, s_)
                I(f"s_mov_b32 {s(S_T3)}, {cg*4096}")
                I(f"buffer_load_dwordx4 {hreg(s_, e)}, {v(2 + 2*(cg & 1) + s_)}, {s(S_H,4)}, {s(S_T3)} offen offset:{(e&3)*1024} sc1"); self.vm(('h', e))
            return f
        for e in range(16):
            for s_ in range(2): ops.append(mk(e, s_))
        def mkx(s_, nb):
            def f():
                if s_ == 0 and nb == 0:
                    I("v_lshlrev_b32 v6, 10, v1"); I("v_lshrrev_b32 v7, 1, v8"); I("v_add_u32 v0, v6, v7")
                I(f"s_lshl_b32 {s(S_T2)}, {s(S_CT)}, 6"); I(f"s_add_u32 {s(S_T2)}, {s(S_T2)}, {s(S_X01)}")
                if s_ == 1: I(f"s_add_u32 {s(S_T2)}, {s(S_T2)}, 16384")
                I(f"buffer_load_dwordx2 {v(V_XR + (s_*2+nb)*2, 2)}, v0, {s(S_X,4)}, {s(S_T2)} offen offset:{nb*32}"); self.vm('xr')
            return f
        for s_ in range(2):
            for nb in range(2): ops.append(mkx(s_, nb))
        def mks(s_):
            def f():
                if s_ == 0: I("v_lshlrev_b32 v1, 3, v1")
                I(f"s_lshl_b32 {s(S_T2)}, {s(S_R23)}, 7"); I(f"s_add_u32 {s(S_T2)}, {s(S_T2)}, {WS_RST}")
                I(f"buffer_load_dwordx2 {a(A_ST23 + 2*s_, 2)}, v1, {s(S_WS,4)}, {s(S_T2)} offen offset:{s_*128} sc1"); self.vm('rsl')
            return f
        if self.o['shs']:
            for s_ in range(2): ops.append(mks(s_))
        return ops

    def qproj(self):
        I = self.I; p = self.p
        after_chunk = {0: ('K', 0), 1: ('K', 1), 2: ('V', 0), 3: ('K', 2), 4: ('V', 1), 5: ('V', 2)}
        self.late_kv = []
        if self.o['kvl']:
            for c_ in list(after_chunk)[6 - self.o['kvl']:]: self.late_kv.append(after_chunk.pop(c_))
        PH_SIG, PH_POLL, PH_H = self.o['ph']
        PH_CHK = self.o['chk']; assert PH_H > 16*PH_CHK - 6 and PH_POLL < 16*PH_CHK - 6
        qa = []
        KST = self.o['kst']
        t_ = 1
        if KST < 8:
            ks = list(range(KST, 8))
            def rd_(k): return lambda: (self.waitvm(('x', 1, k)), self.x_read(1, k))
            def wq_(k, jj):
                def f():
                    if jj == 0: self.waitlg(('xr', 1, k))
                    self.wq_dma_op(k, jj)
                return f
            seq = []
            for i, k in enumerate(ks):
                seq.append(rd_(k))
                if i >= 1: seq += [wq_(ks[i-1], jj) for jj in range(4)]
            seq += [wq_(ks[-1], jj) for jj in range(4)]
            for f in seq: qa.append((t_, f)); t_ += 1
        for i in range(8): qa.append((t_ + i, (lambda i=i: self.slice_dma_op(S_W2, 15, 'w2', 'S0', i))))
        for c_, (w_, tt_) in after_chunk.items():
            for jj in range(4): qa.append((16*(c_+1) + 10 + jj, (lambda w_=w_, tt_=tt_, jj=jj: self.kv_op(w_, tt_, jj))))
        qa.sort(key=lambda x: x[0])
        hops = self.h_ops()
        RATE = self.o['hrate']
        qb_ = [(PH_H + int(i*RATE), f) for i, f in enumerate(hops)]
        for i, (ph_, f) in enumerate(qb_):
            if i < 32: assert ph_ >= (32 if i < 16 else 64), (i, ph_)
        while qb_[-1][0] > 127: RATE *= 0.97; qb_ = [(PH_H + int(i*RATE), f) for i, f in enumerate(hops)]
        self.waitvm(('w', 0)); I("s_barrier")
        for rho in range(2*LAGQ): self.emit(self.wread(rho)); self.lg(('wq', rho >> 1))
        nread = 2*LAGQ
        for phi in range(128):
            c, e2, nb = phi >> 4, (phi >> 3) & 1, phi & 7
            e = 2*c + e2
            self.waitlg(('wq', phi))
            A = a(A_WF + 4*(phi % NRQ), 4)
            for X in range(4):
                d = v(V_QACC + (X*8+nb)*4, 4)
                I(f"{MFMA} {d}, {A}, {xreg(X, e)}, {'0' if e == 0 else d}")
                if X in (0, 2) and nread < 256:
                    if nread % 32 == 0:
                        cn = nread >> 5
                        if cn == PH_SIG: self.waitvm('hst')
                        if cn == PH_CHK and not self.o['nopoll']:
                            self.waitvm('poll')
                            I(f"s_cmp_lg_u32 {s(S_W)}, 0"); I("s_cbranch_scc1 L_p1_ok")
                            self.poll_check(V_POLL, V_POLLA, 0, "L_p1")
                            self.ms('pc')
                        self.waitvm(('w', cn))
                        I("s_barrier")
                        if cn == PH_SIG: self.signal(0, "L_sig1")
                    self.emit(self.wread(nread)); self.lg(('wq', nread >> 1)); nread += 1
                if X == 1 and qa and qa[0][0] <= phi: qa.pop(0)[1]()
                if X == 3 and qb_ and qb_[0][0] <= phi: qb_.pop(0)[1]()
            if nb < 2:
                d = v(V_CSQ + nb*4, 4)
                I(f"{MFMA} {d}, {A}, {v(V_ONES,4)}, {'0' if e == 0 else d}")
            elif nb < 6 and not self.o['shs']:
                k = nb - 2; s_ = k & 1
                d = a(A_ST23 + 4*k, 4)
                Aop = v(V_ONES, 4) if k < 2 else xreg(2+s_, e)
                I(f"{MFMA} {d}, {Aop}, {xreg(2+s_, e)}, {'0' if e == 0 else d}")
            self.ms(f'q{phi}')
            if phi == PH_POLL and not self.o['nopoll']:
                self.poll_issue(V_POLL, V_POLLA, 0); self.vm('poll')
        assert not qa and not qb_, (qa, qb_)
        self.ms('qp')

    def j2(self):
        I = self.I
        I(f"v_xor_b32 {v(229-1+0)}, 0, {v(228)}") if False else None
        I(f"v_xor_b32 v1, 32, {v(228)}")
        NF = 32; LA = 6; NR = 12
        def rd(phi):
            e, nb = phi >> 1, phi & 1
            for t in range(2):
                self.emit(Ins(f"ds_read_b64_tr_b16 {a(A_J2R + 4*(phi % NR) + 2*t, 2)}, {v(228) if nb == 0 else 'v1'} offset:{e*2048 + t*1024}", lds_r='S0'))
        self.waitvm('w2'); I("s_barrier")
        I(f"s_lshl_b32 {s(S_T0)}, {s(S_W)}, 11"); I(f"s_add_u32 {s(S_T0)}, {s(S_T0)}, {3*SLOT}")
        I(f"v_add_u32 v0, {s(S_T0)}, {v(V_L16)}")
        for b in range(2): I(f"ds_write_b128 v0, {v(V_CSQ+4*b,4)} offset:{b*1024}", lds_w=('K', 3))
        for phi in range(LA): rd(phi)
        nread = LA
        lkv = [(lambda w_=w_, t_=t_, jj=jj: self.kv_op(w_, t_, jj)) for (w_, t_) in self.late_kv for jj in range(4)]
        for e in range(16):
            if e % 2 == 0: self.waitvm(('h', e + 1))
            for nb in range(2):
                phi = 2*e + nb
                I(f"s_waitcnt lgkmcnt({min(15, 2*(nread - phi - 1))})")
                A = a(A_J2R + 4*(phi % NR), 4)
                for s_ in range(2):
                    d = a(A_J2ACC + (s_*2+nb)*4, 4)
                    I(f"{MFMA} {d}, {A}, {hreg(s_, e)}, {'0' if e == 0 else d}")
                if nread < NF: rd(nread); nread += 1
                if lkv: lkv.pop(0)()
        assert not lkv
        if self.o['shs']:
            self.waitvm('rsl')
            for s_ in range(2):
                I(f"v_accvgpr_read_b32 {v(V_NMU+2+s_)}, {a(A_ST23 + 2*s_)}"); I(f"v_accvgpr_read_b32 {v(V_RS+2+s_)}, {a(A_ST23 + 2*s_ + 1)}")
        else:
          for s_ in range(2):
            for r in range(4): I(f"v_accvgpr_read_b32 {v(208+r)}, {a(A_ST23 + 8 + 4*s_ + r)}")
            I(f"v_accvgpr_read_b32 {v(212)}, {a(A_ST23 + 4*s_)}")
            self.row_stats(2+s_, v(212), [208+r for r in range(4)], 213, 214)
        self.waitvm('xr')
        I(f"s_lshl_b32 {s(S_T0)}, {s(S_CT)}, 10"); I(f"s_add_u32 {s(S_T0)}, {s(S_T0)}, {s(S_X01)}"); I(f"s_add_u32 {s(S_T0)}, {s(S_T0)}, {WS_X1}")
        I(f"s_lshl_b32 {s(S_T1)}, {s(S_CT)}, 14"); I(f"s_lshl_b32 {s(S_T2)}, {s(S_R01)}, 7"); I(f"s_add_u32 {s(S_T1)}, {s(S_T1)}, {s(S_T2)}"); I(f"s_add_u32 {s(S_T1)}, {s(S_T1)}, {WS_STAT}")
        for s_ in range(2):
            acc, pk = 208, 216
            for j in range(8): I(f"v_accvgpr_read_b32 {v(acc+j)}, {a(A_J2ACC + s_*8 + j)}")
            if s_ == 0: I("s_waitcnt lgkmcnt(0)")
            for j in range(8):
                src = V_XR + s_*4 + (j >> 1)
                I(f"v_lshlrev_b32 v0, 16, {v(src)}") if (j & 1) == 0 else I(f"v_and_b32 v0, 0xffff0000, {v(src)}")
                I(f"v_add_f32 v0, v0, {v(V_NMU+s_)}")
                I(f"v_fma_f32 {v(acc+j)}, v0, {v(V_RS+s_)}, {v(acc+j)}")
            for jj in range(4): I(f"v_cvt_pk_bf16_f32 {v(pk+4*s_+jj)}, {v(acc+2*jj)}, {v(acc+2*jj+1)}")
            I(f"buffer_store_dwordx4 {v(pk+4*s_,4)}, {v(V_L16)}, {s(S_WS,4)}, {s(S_T0)} offen sc1"); self.vm('x1st')
            if s_ == 0: I(f"s_add_u32 {s(S_T0)}, {s(S_T0)}, 16384")
            sm, sq = 208 + 0, 209
            for jj in range(4):
                I(f"v_lshlrev_b32 v0, 16, {v(pk+4*s_+jj)}"); I(f"v_and_b32 v1, 0xffff0000, {v(pk+4*s_+jj)}")
                if jj == 0:
                    I(f"v_add_f32 {v(sm)}, v0, v1"); I(f"v_mul_f32 {v(sq)}, v0, v0")
                else:
                    I(f"v_add_f32 {v(sm)}, {v(sm)}, v0"); I(f"v_add_f32 {v(sm)}, {v(sm)}, v1"); I(f"v_fmac_f32 {v(sq)}, v0, v0")
                I(f"v_fmac_f32 {v(sq)}, v1, v1")
            for r_ in (sm, sq):
                for sw_ in ('16', '32'):
                    I(f"v_mov_b32 v0, {v(r_)}"); I("s_nop 1"); I(f"v_permlane{sw_}_swap_b32 {v(r_)}, v0"); I("s_nop 0"); I(f"v_add_f32 {v(r_)}, {v(r_)}, v0")
            I(f"v_lshrrev_b32 v0, 1, {v(V_L16)}")
            I("s_mov_b64 exec, 0xffff")
            I(f"buffer_store_dwordx2 {v(sm,2)}, v0, {s(S_WS,4)}, {s(S_T1)} offen offset:{s_*128} sc1"); self.vm('x1st')
            I("s_mov_b64 exec, -1")

    def wp_piece(self, i, store):
        if self.o['wp'] == 2: return self.wp_piece2(i, store)
        I = self.I
        I(f"s_lshl_b32 {s(S_T2)}, s2, 2"); I(f"s_add_u32 {s(S_T2)}, {s(S_T2)}, {s(S_W)}"); I(f"s_mul_i32 {s(S_T2)}, {s(S_T2)}, 6")
        I(f"s_add_u32 {s(S_T2)}, {s(S_T2)}, {i}"); I(f"s_min_u32 {s(S_T2)}, {s(S_T2)}, 5887")
        I(f"s_and_b32 {s(S_T3)}, {s(S_T2)}, 7")
        if not store:
            I(f"s_andn2_b32 {s(S_T0)}, {s(S_T2)}, 7")
            I(f"s_cmp_lt_u32 {s(S_T0)}, 1792")
            p4, po = (92, 94) if self.o['wp'] == 2 else (S_W2, S_H)
            I(f"s_cselect_b32 {s(S_WT)}, {s(p4)}, {s(po)}"); I(f"s_cselect_b32 {s(S_WT+1)}, {s(p4+1)}, {s(po+1)}")
            I(f"s_cselect_b32 {s(S_WT+2)}, {s(S_W2+2)}, {s(S_H+2)}"); I(f"s_cselect_b32 {s(S_T1)}, 0, 1792")
            I(f"s_mov_b32 {s(S_WT+3)}, 0x20000")
            I(f"s_sub_u32 {s(S_T0)}, {s(S_T0)}, {s(S_T1)}"); I(f"s_lshl_b32 {s(S_T0)}, {s(S_T0)}, 10")
            I(f"s_lshl_b32 {s(S_T3)}, {s(S_T3)}, 7"); I(f"s_add_u32 {s(S_T0)}, {s(S_T0)}, {s(S_T3)}")
            I(f"buffer_load_dwordx4 {a(self.wpr + 4*i, 4)}, v9, {s(S_WT,4)}, {s(S_T0)} offen"); self.vm('wpl')
        else:
            I(f"s_mul_i32 {s(S_T3)}, {s(S_T3)}, {92*8192 + self.o['wpad']}"); I(f"s_lshr_b32 {s(S_T2)}, {s(S_T2)}, 3")
            I(f"s_lshl_b32 {s(S_T2)}, {s(S_T2)}, 10"); I(f"s_add_u32 {s(S_T2)}, {s(S_T2)}, {s(S_T3)}"); I(f"s_add_u32 {s(S_T2)}, {s(S_T2)}, {WS_WP}")
            I(f"buffer_store_dwordx4 {a(self.wpr + 4*i, 4)}, {v(V_L16)}, {s(S_WS,4)}, {s(S_T2)} offen" + (" sc1" if self.o['wt'] & 4 else "")); self.vm('wps')
    def wp_piece2(self, i, store):
        I = self.I
        I(f"s_add_u32 {s(S_T2)}, s69, {i}"); I(f"s_min_u32 {s(S_T2)}, {s(S_T2)}, s86")
        I(f"s_and_b32 {s(S_T3)}, {s(S_T2)}, 7"); I(f"s_lshr_b32 {s(S_T2)}, {s(S_T2)}, 3")
        if not store:
            I(f"s_lshl_b32 {s(S_T2)}, {s(S_T2)}, 13"); I(f"s_lshl_b32 {s(S_T3)}, {s(S_T3)}, 7"); I(f"s_add_u32 {s(S_T2)}, {s(S_T2)}, {s(S_T3)}")
            I(f"buffer_load_dwordx4 {a(self.wpr + 4*i, 4)}, v9, {s(S_WT,4)}, {s(S_T2)} offen"); self.vm('wpl')
        else:
            I(f"s_lshl_b32 {s(S_T2)}, {s(S_T2)}, 10"); I(f"s_mul_i32 {s(S_T3)}, {s(S_T3)}, {92*8192 + self.o['wpad']}")
            I(f"s_add_u32 {s(S_T2)}, {s(S_T2)}, {s(S_T3)}"); I(f"s_add_u32 {s(S_T2)}, {s(S_T2)}, s87")
            I(f"buffer_store_dwordx4 {a(self.wpr + 4*i, 4)}, {v(V_L16)}, {s(S_WS,4)}, {s(S_T2)} offen" + (" sc1" if self.o['wt'] & 4 else "")); self.vm('wps')
    def wp_select(self):
        I = self.I
        I(f"s_lshl_b32 {s(S_T2)}, s2, 2"); I(f"s_add_u32 {s(S_T2)}, {s(S_T2)}, {s(S_W)}")
        I(f"s_mov_b32 {s(S_T3)}, {4096*1024}"); I(f"s_mov_b32 s86, 4095"); I(f"s_mov_b32 s87, {WS_WP + 224*1024}")
        I(f"s_cmp_lt_u32 {s(S_T2)}, 299")
        I(f"s_cselect_b32 {s(S_WT)}, s92, s94"); I(f"s_cselect_b32 {s(S_WT+1)}, s93, s95")
        I(f"s_cselect_b32 {s(S_WT+2)}, {1792*1024}, {s(S_T3)}"); I(f"s_cselect_b32 s86, 1791, s86"); I(f"s_cselect_b32 s87, {WS_WP}, s87")
        I(f"s_cselect_b32 {s(S_T3)}, 0, 299"); I(f"s_mov_b32 {s(S_WT+3)}, 0x20000")
        I(f"s_sub_u32 {s(S_T2)}, {s(S_T2)}, {s(S_T3)}"); I(f"s_mul_i32 s69, {s(S_T2)}, 6")
    def wp_setup(self):
        I = self.I
        I(f"v_lshrrev_b32 v6, 7, {v(V_L16)}"); I(f"v_bfe_u32 v7, {v(V_L16)}, 4, 3"); I("v_lshrrev_b32 v8, 1, v6"); I("v_lshlrev_b32 v8, 1, v8"); I("v_xor_b32 v8, v8, v7")
        I("v_lshlrev_b32 v8, 4, v8"); I("v_lshl_add_u32 v9, v6, 10, v8")
        I(f"s_mov_b32 {s(S_W2+2)}, {1792*1024}"); I(f"s_mov_b32 {s(S_H+2)}, {4096*1024}")

    def q_convert_and_first_tile(self, sched):
        I = self.I
        if self.o['wp'] == 2 and not self.o['wpl']:
            self.wp_setup(); self.wp_select()
            for i in range(6): self.wp_piece(i, False)
        vmq = self.vmq
        idx = max(max(i for i, e in enumerate(vmq) if e == ('kv', kk)) for kk in (('K', 0), ('K', 1), ('V', 0)))
        I(f"s_waitcnt vmcnt({len(vmq) - 1 - idx}) lgkmcnt(0)")
        I("s_barrier")
        for f in range(8): self.emit(kread(0, f))
        for X in range(4): I(f"v_mul_f32 {v(V_RS+X)}, {s(S_SCALE)}, {v(V_RS+X)}")
        CS = 208
        for h in range(2):
            for k in range(2):
                ep = 2*h + k
                I(f"s_xor_b32 {s(S_T0)}, {s(S_W)}, {ep}"); I(f"s_lshl_b32 {s(S_T0)}, {s(S_T0)}, 11"); I(f"s_add_u32 {s(S_T0)}, {s(S_T0)}, {3*SLOT}")
                I(f"v_add_u32 v{k}, {s(S_T0)}, {v(V_L16)}")
                for b in range(2): I(f"ds_read_b128 {v(CS + (k*2+b)*4, 4)}, v{k} offset:{b*1024}", lds_r=('K', 3))
            I("s_waitcnt lgkmcnt(0)")
            for X in range(4):
                pr = lambda base: v(base + (X & ~1), 2)
                hi = X & 1
                for k in range(2):
                    ep = 2*h + k
                    for b in range(2):
                        base = V_QACC + (X*8 + 2*ep + b)*4
                        for r in range(0, 4, 2):
                            I(f"v_pk_fma_f32 {v(base+r,2)}, {v(CS+(k*2+b)*4+r,2)}, {pr(V_NMU)}, {v(base+r,2)} op_sel:[0,{hi},0] op_sel_hi:[1,{hi},1]")
                        for r in range(0, 4, 2):
                            I(f"v_pk_mul_f32 {v(base+r,2)}, {v(base+r,2)}, {pr(V_RS)} op_sel:[0,{hi}] op_sel_hi:[1,{hi}]")
                        for jj in range(2):
                            I(f"v_cvt_pk_bf16_f32 {v(Qreg(X, ep) + 2*b + jj)}, {v(base+2*jj)}, {v(base+2*jj+1)}")
        I("s_waitcnt lgkmcnt(0)")
        zi = 0
        for z in range(4): I(f"v_mov_b32 v{z}, 0")
        for g in range(32):
            X, kb2, s_ = g >> 3, (g >> 2) & 1, g & 3
            d = v(Sreg(0, X, kb2), 4)
            I(f"{MFMA} {d}, {a(A_KF + (kb2*4+s_)*4, 4)}, {v(Qreg(X, s_), 4)}, {'0' if s_ == 0 else d}")
            if not self.o['mz']:
                for z in range(4):
                    I(f"v_accvgpr_write_b32 {a(A_O + zi)}, 0"); zi += 1
            elif g % 4 == 3:
                I(f"v_mfma_f32_32x32x16_bf16 {a(A_O + 16*(g >> 2), 16)}, v[0:3], v[0:3], 0")
        if KA.LSUM: I(f"v_mfma_f32_32x32x16_bf16 {a(KA.A_L, 16)}, v[0:3], v[0:3], 0")
        for f in range(8): self.emit(kread(1, f))
        if not KA.LSUM:
            for X in range(4): I(f"v_mov_b32 {v(V_L+X)}, 0")
        I("s_nop 3")
        for X in range(4):
            mx, t2 = V_TMP, V_TMP+1
            S0 = Sreg(0, X)
            I(f"v_max3_f32 {v(mx)}, {v(S0)}, {v(S0+1)}, {v(S0+2)}")
            I(f"v_max3_f32 {v(mx)}, {v(mx)}, {v(S0+3)}, {v(S0+4)}")
            I(f"v_max3_f32 {v(mx)}, {v(mx)}, {v(S0+5)}, {v(S0+6)}")
            I(f"v_max_f32 {v(mx)}, {v(mx)}, {v(S0+7)}")
            for sw in ('16', '32'):
                I(f"v_mov_b32 {v(t2)}, {v(mx)}")
                I("s_nop 1")
                I(f"v_permlane{sw}_swap_b32 {v(mx)}, {v(t2)}")
                I("s_nop 0")
                I(f"v_max_f32 {v(mx)}, {v(mx)}, {v(t2)}")
            for r in range(8): I(f"v_sub_f32 {v(S0+r)}, {v(S0+r)}, {v(mx)}")
            for r in range(4): I(f"v_sub_f32 {v(V_NEGM+X*4+r)}, 0, {v(mx)}")
        for g in range(self.G0, NG):
            self.gap_valu(-NG + g, sched)
        I(f"s_waitcnt vmcnt({6 if self.o['wp'] == 2 and not self.o['wpl'] else 0}) lgkmcnt(0)")
        I("s_barrier")
        self.signal(1, "L_sig2")
        if self.o['wp'] == 2 and self.o['wpl']:
            self.wp_setup(); self.wp_select()
            for i in range(6): self.wp_piece(i, False)
        I("v_and_b32 v1, 63, v0") if False else None

    W3SLOT = [('K', 0), ('V', 0), ('K', 1), ('V', 1), ('K', 2), ('V', 2), ('K', 3), ('V', 3)]
    def w3_dma_one(self, c, jj):
        reg, slot = self.W3SLOT[c]
        self.I(f"s_add_u32 {s(S_T0)}, {s(S_WOFF)}, {(64*c + 4*jj)*3584 - jj*1024}")
        self.I(f"buffer_load_dwordx4 {v(V_D3+(jj&1))}, {s(S_W1,4)}, {s(S_T0)} offen offset:{jj*1024} lds", lds_w=(reg, slot))
    def emit_dma(self, which, tile, jj):
        if tile >= 32:
            c = 2*(tile - 32) + (0 if which == 'K' else 1)
            self.w3_dma_one(c, jj); self.vm(('w3', c)); return
        super().emit_dma(which, tile, jj)
        if self.tail: self.vm(('t', tile))
    def j3_setup(self):
        I = self.I
        I(f"s_load_dwordx2 {s(S_W1,2)}, s[0:1], {ARG_W3}")
        if self.o['wp'] == 1: I(f"s_load_dwordx2 {s(S_W2,2)}, s[0:1], {ARG_W4}"); I(f"s_load_dwordx2 {s(S_H,2)}, s[0:1], {ARG_WO}")
        I(f"v_lshrrev_b32 v1, 4, {v(V_L16)}"); I("v_and_b32 v2, 15, v1"); I("v_lshrrev_b32 v5, 4, v1")
        I("v_mul_u32_u24 v9, 3584, v5")
        for pj in range(2):
            I(f"v_add_u32 v8, {4*pj}, v5"); I("v_lshlrev_b32 v8, 1, v8"); I("v_xor_b32 v8, v8, v2"); I("v_min_u32 v8, 13, v8"); I("v_lshlrev_b32 v8, 4, v8")
            I(f"v_add_u32 {v(V_D3+pj)}, v9, v8")
        I(f"v_mov_b32 {v(V_POLLA2)}, {s(S_C0)}")
        I("s_waitcnt lgkmcnt(0)")
        I(f"s_mul_i32 {s(S_T0)}, {s(S_CT)}, 224")
        I(f"s_add_u32 {s(S_W1)}, {s(S_W1)}, {s(S_T0)}"); I(f"s_addc_u32 {s(S_W1+1)}, {s(S_W1+1)}, 0")
        I(f"s_sub_u32 {s(S_W1+2)}, {512*3584}, {s(S_T0)}"); I(f"s_mov_b32 {s(S_W1+3)}, 0x20000")
        I(f"s_mul_i32 {s(S_WOFF)}, {s(S_W)}, {16*3584}")
        self.poll_issue(V_POLL2, V_POLLA2, 1); self.vm('poll2')
        if self.o['pf3']:
            I("v_lshrrev_b32 v2, 2, v1"); I("v_mul_u32_u24 v2, 3584, v2"); I("v_and_b32 v5, 3, v1"); I("v_min_u32 v5, 1, v5"); I("v_lshl_add_u32 v2, v5, 7, v2")
            I(f"s_lshl_b32 {s(S_T0)}, {s(S_QB)}, 2"); I(f"s_add_u32 {s(S_T0)}, {s(S_T0)}, {s(S_W)}"); I(f"s_mul_i32 {s(S_T0)}, {s(S_T0)}, {16*3584}")
            I(f"buffer_load_dword v140, v2, {s(S_W1,4)}, {s(S_T0)} offen"); self.vm('pf3')
            I(f"buffer_load_dword v141, v2, {s(S_W1,4)}, {s(S_T0)} offen offset:92"); self.vm('pf3')
        if self.o['cpf']: self.code_prefetch("L_j3", "L_final_kernel_end", "L_pc2", 2, 142, 2)
        if self.o['wp'] == 1: self.wp_setup()
        if self.o['pfw']:
            I(f"s_load_dwordx2 {s(S_W2,2)}, s[0:1], {ARG_WO}"); I(f"s_load_dwordx2 {s(S_H,2)}, s[0:1], {ARG_W4}")
            I(f"s_lshl_b32 {s(S_T0)}, s2, 2"); I(f"s_add_u32 {s(S_T0)}, {s(S_T0)}, {s(S_W)}")
            I("v_and_b32 v2, 31, v1"); I("v_lshlrev_b32 v2, 7, v2"); I("v_min_u32 v5, 13, v1"); I("v_lshlrev_b32 v5, 7, v5")
            I("s_waitcnt lgkmcnt(0)")
            I(f"s_mov_b32 {s(S_W2+2)}, {4096*1024}"); I(f"s_mov_b32 {s(S_W2+3)}, 0x20000"); I(f"s_mov_b32 {s(S_H+2)}, {1792*1024}"); I(f"s_mov_b32 {s(S_H+3)}, 0x20000")
            I(f"s_lshl_b32 {s(S_T1)}, {s(S_T0)}, 12"); I(f"s_mul_i32 {s(S_T0)}, {s(S_T0)}, {14*128}")
            I(f"buffer_load_dword v140, v2, {s(S_W2,4)}, {s(S_T1)} offen"); self.vm('pfw')
            I(f"buffer_load_dword v141, v5, {s(S_H,4)}, {s(S_T0)} offen"); self.vm('pfw')

    @staticmethod
    def x1reg(s_, e):
        if not KA.LSUM: return a(192 + (e*2 + s_)*4, 4) if e < 8 else v(16 + ((e-8)*2 + s_)*4, 4)
        return a(208 + (e*2 + s_)*4, 4) if e < 6 else v(16 + ((e-6)*2 + s_)*4, 4)
    def x1_op(self, s_, e):
        I = self.I
        I(f"s_add_u32 {s(S_T3)}, {s(S_X01)}, {WS_X1 + s_*16384 + (e & ~3)*1024}")
        I(f"buffer_load_dwordx4 {self.x1reg(s_, e)}, {v(V_L16)}, {s(S_WS,4)}, {s(S_T3)} offen offset:{(e&3)*1024} sc1"); self.vm(('x1', e))
    def st_op(self, k, s_):
        I = self.I
        if k == 0 and s_ == 0:
            I(f"v_lshrrev_b32 v1, 4, {v(V_L16)}"); I("v_and_b32 v2, 15, v1"); I("v_lshrrev_b32 v5, 4, v1")
            I("v_lshlrev_b32 v2, 3, v2"); I("v_lshl_add_u32 v2, v5, 16, v2")
        I(f"s_lshl_b32 {s(S_T2)}, {s(S_R01)}, 7"); I(f"s_add_u32 {s(S_T2)}, {s(S_T2)}, {WS_STAT + k*16384}")
        I(f"buffer_load_dwordx2 {v(208 + (s_*4+k)*2, 2)}, v2, {s(S_WS,4)}, {s(S_T2)} offen offset:{s_*128} sc1"); self.vm('st')

    def o_epilogue_items(self):
        q = []
        A = lambda t: q.append(Ins(t))
        for X in range(4):
            l, t2 = V_L + X, V_TMP + X
            if KA.LSUM: A(f"v_accvgpr_read_b32 {v(l)}, {a(KA.A_L + 4*X)}")
            else:
                for sw in ('16', '32'):
                    A(f"v_mov_b32 {v(t2)}, {v(l)}"); A("s_nop 1"); A(f"v_permlane{sw}_swap_b32 {v(l)}, {v(t2)}"); A("s_nop 0"); A(f"v_add_f32 {v(l)}, {v(l)}, {v(t2)}")
        for X in range(4): A(f"v_rcp_f32 {v(V_L + X)}, {v(V_L + X)}")
        stage = 96 if KA.LSUM else 80; n = 0; NS = 2 if KA.LSUM else 4
        for X in range(4):
            OST = 131072 + self.o['opad']
            A(f"s_lshl_b32 {s(S_OOFF)}, {s(S_HEAD)}, 12"); A(f"s_add_u32 {s(S_OOFF)}, {s(S_OOFF)}, {WS_O + (X & 1)*OST}")
            A(f"s_mul_i32 {s(S_C1)}, {s(S_R01 if X < 2 else S_R23)}, {OST}"); A(f"s_add_u32 {s(S_OOFF)}, {s(S_OOFF)}, {s(S_C1)}")
            for e in range(4):
                f = stage + (n % NS)*12; n += 1
                for j in range(8): A(f"v_accvgpr_read_b32 {v(f+j)}, {a(Oreg(X, 2*e + (j >> 2)) + (j & 3))}")
                for j in range(8): A(f"v_mul_f32 {v(f+j)}, {v(f+j)}, {v(V_L+X)}")
                for jj in range(4): A(f"v_cvt_pk_bf16_f32 {v(f+8+jj)}, {v(f+2*jj)}, {v(f+2*jj+1)}")
                q.append(('vm', f"buffer_store_dwordx4 {v(f+8,4)}, {v(V_L16)}, {s(S_WS,4)}, {s(S_OOFF)} offen offset:{e*1024}" + (" sc1" if self.o['wt'] & 1 else ""), 'ost'))
        return q

    def j3(self):
        I = self.I; p = self.p
        for c in range(7): I(f"v_subrev_u32 {v(V_A3K+c)}, {LDS_V}, {v(V_AV+c)}")
        I(f"s_lshl_b32 {s(S_T0)}, {s(S_W)}, 6")
        for c in range(2):
            I(f"v_xor_b32 {v(140+c)}, {s(S_T0)}, {v(V_AV+c)}"); I(f"v_subrev_u32 {v(142+c)}, {LDS_V}, {v(140+c)}")
        for k in range(4): I(f"v_mov_b32 {v(V_ONES+k)}, 0x3f803f80")
        ACC = lambda s_, cb: 144 + (s_*7 + cb)*4
        CSA = lambda c: 200 + 4*c
        blks = []
        for e in range(16):
            c = e >> 1; reg, slot = self.W3SLOT[c]; off = slot*SLOT + (e & 1)*8192
            for cb in range(7): blks.append((e, (V_AV if reg == 'V' else V_A3K) + cb, cb, False, off, (reg, slot)))
            for cb in range(2): blks.append((e, (140 if reg == 'V' else 142) + cb, cb, True, off, (reg, slot)))
        LA, NR = 9, 16
        vops = []
        for c in (6, 7):
            for jj in range(4):
                def f(c=c, jj=jj):
                    reg, slot = self.W3SLOT[c]
                    I(f"s_add_u32 m0, {s(S_M0K if reg == 'K' else S_M0V)}, {slot*SLOT}")
                    self.w3_dma_one(c, jj); self.vm(('w3', c))
                vops.append(f)
        for e in range(6 if KA.LSUM else 8, 16):
            for s_ in range(2): vops.append(lambda s_=s_, e=e: self.x1_op(s_, e))
        for k in range(4):
            for s_ in range(2): vops.append(lambda k=k, s_=s_: self.st_op(k, s_))
        side = self.o_epilogue_items()
        side.append(('wait', 'st'))
        for s_ in range(2):
            b = 208 + s_*8
            for j in range(2):
                side += [Ins(f"v_add_f32 {v(b+j)}, {v(b+j)}, {v(b+2+j)}"), Ins(f"v_add_f32 {v(b+4+j)}, {v(b+4+j)}, {v(b+6+j)}"), Ins(f"v_add_f32 {v(b+j)}, {v(b+j)}, {v(b+4+j)}")]
                for sw_ in ('16', '32'):
                    side += [Ins(f"v_mov_b32 v0, {v(b+j)}"), Ins("s_nop 1"), Ins(f"v_permlane{sw_}_swap_b32 {v(b+j)}, v0"), Ins("s_nop 0"), Ins(f"v_add_f32 {v(b+j)}, {v(b+j)}, v0")]
            side += [Ins(f"v_mul_f32 {v(b)}, 0xbb000000, {v(b)}"), Ins(f"v_mul_f32 {v(b+1)}, 0x3b000000, {v(b+1)}"),
                     Ins(f"v_fma_f32 {v(b+1)}, -{v(b)}, {v(b)}, {v(b+1)}"), Ins(f"v_max_f32 {v(b+1)}, 0, {v(b+1)}"),
                     Ins(f"v_add_f32 {v(b+1)}, 0x3727c5ac, {v(b+1)}"), Ins(f"v_rsq_f32 {v(b+1)}, {v(b+1)}")]
            q = Prog(); q.I("s_nop 0"); gelu_consts(q.I, b+1, b+2, b+3, b+4); side += q.items
        def drain(n):
            k = 0
            while side and k < n:
                it = side.pop(0)
                if isinstance(it, Ins):
                    self.emit(it); k += 0 if it.op.startswith('s_') else 1
                elif it[0] == 'vm': I(it[1]); self.vm(it[2]); k += 1
                else: self.waitvm(it[1])
        def issue_read(n):
            e, ar, cb, iscs, off, region = blks[n]
            c = e >> 1
            if n == 0 or (blks[n-1][0] >> 1) != c:
                if c in (0, 4, 6):
                    self.waitvm(('w3', {0: 3, 4: 5, 6: 7}[c])); I("s_barrier")
            r = A_WF + (n % NR)*4
            for t in range(2): I(f"ds_read_b64_tr_b16 {a(r+2*t,2)}, {v(ar)} offset:{off + t*4096}", lds_r=region)
        for n in range(LA): issue_read(n)
        nread = LA; nm = 0; nwp = 0; nside0 = len(side)
        for n, (e, ar, cb, iscs, off, region) in enumerate(blks):
            if (n == 0 or blks[n-1][0] != e): self.ms(f'e{e}')
            if (n == 0 or blks[n-1][0] != e) and (e & 1) == 0: self.waitvm(('x1', e + 1)); self.ms(f'w{e}')
            if n % 3 == 0: I(f"s_waitcnt lgkmcnt({max(0, 2*(nread - n - 3))})")
            A = a(A_WF + (n % NR)*4, 4)
            ms_ = [(CSA(cb), v(V_ONES, 4))] if iscs else [(ACC(s_, cb), self.x1reg(s_, e)) for s_ in range(2)]
            for i_, (d, B) in enumerate(ms_):
                I(f"{MFMA} {v(d,4)}, {A}, {B}, {'0' if e == 0 else v(d,4)}"); nm += 1
                if i_ == 0 and nread < len(blks): issue_read(nread); nread += 1
                elif vops and nm % 2 == 0: vops.pop(0)()
                elif self.o['wp'] == 1 and len(side) < nside0 - 110 and not vops and nm % 4 == 2 and nwp < 6:
                    assert not any(isinstance(it, Ins) and 'accvgpr_read' in it.text and int(it.text.split(', a')[1]) < 32 for it in side)
                    self.wp_piece(nwp, False); nwp += 1
                drain(self.o['j3v'] if nm > 4 else 0)
        assert not vops
        drain(10000)
        self.ms('j3m')
        I(f"s_lshl_b32 {s(S_T0)}, {s(S_W)}, 11"); I(f"s_add_u32 {s(S_T0)}, {s(S_T0)}, {LDS_S0}")
        I(f"v_add_u32 v0, {s(S_T0)}, {v(V_L16)}"); I(f"v_add_u32 v1, {LDS_S0}, {v(V_L16)}")
        for c in range(2): I(f"ds_write_b128 v0, {v(CSA(c),4)} offset:{c*1024}", lds_w='S0')
        I("s_waitcnt lgkmcnt(0)"); I("s_barrier")
        CS = 16
        for cb in range(7): I(f"ds_read_b128 {v(CS+cb*4,4)}, v1 offset:{cb*1024}", lds_r='S0')
        if self.o['wp'] == 1:
            assert nwp == 6
            self.waitvm('wpl')
            for i in range(6): self.wp_piece(i, True)
        I(f"s_mul_i32 {s(S_OOFF)}, {s(S_R01)}, {56*1024}"); I(f"s_add_u32 {s(S_OOFF)}, {s(S_OOFF)}, {WS_H2}")
        I(f"s_mul_i32 {s(S_T3)}, {s(S_CT)}, 7")
        for k, dst in ((0, S_T0), (1, S_T1)):
            I(f"s_add_u32 {s(S_T2)}, {s(S_T3)}, {k}"); I(f"s_lshr_b32 {s(dst)}, {s(S_T2)}, 1"); I(f"s_lshl_b32 {s(dst)}, {s(dst)}, 10")
            I(f"s_and_b32 {s(S_T2)}, {s(S_T2)}, 1"); I(f"s_lshl_b32 {s(S_T2)}, {s(S_T2)}, 3"); I(f"s_add_u32 {s(dst)}, {s(dst)}, {s(S_T2)}"); I(f"s_add_u32 {s(dst)}, {s(dst)}, {s(S_OOFF)}")
        I("s_waitcnt lgkmcnt(0)")
        for s_ in range(2):
            b = 208 + s_*8
            T0 = 48 + s_*28
            for half in (range(0, 4), range(4, 7)):
                seqs = []
                for cb in half:
                    for r_ in range(4):
                        q = Prog(); gelu8(q, ACC(s_, cb) + r_, T0 + cb*4 + r_, b, CS+cb*4+r_, b+2, b+3, b+4); seqs.append(q.items)
                p.extend(interleave(seqs))
                for cb in half:
                    x = ACC(s_, cb); o = 104 + (s_*7 + cb)*2
                    I(f"v_cvt_pk_bf16_f32 {v(o)}, {v(x)}, {v(x+1)}"); I(f"v_cvt_pk_bf16_f32 {v(o+1)}, {v(x+2)}, {v(x+3)}")
            sc = " sc1" if self.o['wt'] & 2 else ""
            O_ = lambda cb: 104 + (s_*7 + cb)*2
            I(f"s_bitcmp1_b32 {s(S_CT)}, 0"); I(f"s_cbranch_scc1 L_h2odd{s_}")
            for m in range(3): I(f"buffer_store_dwordx4 {v(O_(2*m),4)}, {v(V_L16)}, {s(S_WS,4)}, {s(S_T0)} offen offset:{m*1024}{sc}")
            I(f"buffer_store_dwordx2 {v(O_(6),2)}, {v(V_L16)}, {s(S_WS,4)}, {s(S_T0)} offen offset:3072{sc}")
            I(f"s_branch L_h2done{s_}")
            p.L(f"L_h2odd{s_}")
            I(f"buffer_store_dwordx2 {v(O_(0),2)}, {v(V_L16)}, {s(S_WS,4)}, {s(S_T0)} offen{sc}")
            for m in range(3): I(f"buffer_store_dwordx4 {v(O_(2*m+1),4)}, {v(V_L16)}, {s(S_WS,4)}, {s(S_T1)} offen offset:{m*1024}{sc}")
            p.L(f"L_h2done{s_}")
            if s_ == 0:
                I(f"s_add_u32 {s(S_T0)}, {s(S_T0)}, {56*1024}"); I(f"s_add_u32 {s(S_T1)}, {s(S_T1)}, {56*1024}")

    def gen(self, name="a_kernel"):
        p = self.p; I = self.I
        p.raw(kernel_header(name))
        sched = self.build_valu()
        n0 = len(p.items)
        self.prologue_setup()
        self.j1()
        self.ms('j1')
        self.qproj()
        self.j2()
        self.ms('j2')
        self.q_convert_and_first_tile(sched)
        self.ms('ft')
        pro, npad = fix_hazards(p.items[n0:], name='pro')
        p.items[n0:] = pro
        self.I(f"s_mov_b32 {s(S_CNT)}, 7")
        p.raw(".p2align 6")
        p.L("L_attn_loop")
        loop_start = len(p.items)
        replay_at_entry = list(self.replay)
        for T in range(4):
            self.step(2*T, sched, dma_k=T+3)
            self.step(2*T+1, sched, dma_v=T+3, barrier=True, vmw=8)
        self.I(f"s_sub_u32 {s(S_CNT)}, {s(S_CNT)}, 1")
        self.I(f"s_cmp_lg_u32 {s(S_CNT)}, 0")
        self.I("s_cbranch_scc1 L_attn_loop")
        loop_end = len(p.items)
        ent = [(n, k, ins.text) for (n, k, ins, kind) in replay_at_entry]
        ext = [(n - 8, k, ins.text) for (n, k, ins, kind) in self.replay]
        assert ent == ext
        self.replay = [(n - 8 + 56, k, ins, kind) for (n, k, ins, kind) in self.replay]
        tail_start = len(p.items)
        self.vmq = [('t', 30)]*8; self.vm_out = 8; self.tail = True
        self.j3_setup()
        if self.o['wp'] == 2:
            for i in range(6): self.extra.setdefault((56, 2 + 4*i), []).append(lambda i=i: self.wp_piece(i, True))
        xo = [(s_, e) for e in range(6 if KA.LSUM else 8) for s_ in range(2)]
        for i_, (s_, e) in enumerate(xo):
            self.extra.setdefault((58 + i_ // 4, 34 + 4*(i_ % 4)), []).append(lambda s_=s_, e=e: self.x1_op(s_, e))
        def chk2():
            self.waitvm('poll2')
            I(f"s_cmp_lg_u32 {s(S_W)}, 0"); I("s_cbranch_scc1 L_p2_ok")
            self.poll_check(V_POLL2, V_POLLA2, 1, "L_p2")
        self.extra.setdefault((57, 62), []).append(chk2)
        for T in range(28, 32):
            dk = T + 3
            lastT = (T == 31)
            need = {28: ('cpf' if self.o['cpf'] else 'pfw' if self.o['pfw'] else 'pf3' if self.o['pf3'] else 'poll2'), 29: ('t', 31), 30: ('w3', 1), 31: None}[T]
            self.step(2*T, sched, dma_k=dk)
            self.step(2*T+1, sched, dma_v=dk, barrier=not lastT, vmw=(lambda need=need: min(self.wait_for(need), self.vm_out)), last=lastT)
        self.ms('loop')
        I("s_waitcnt lgkmcnt(0)")
        p.L("L_j3")
        self.j3()
        tail, npad2 = fix_hazards(p.items[tail_start:], name='tail', verbose=True)
        p.items[tail_start:] = tail
        p.L("L_a_end")
        self.I("s_endpgm")
        for (tr, lab, back) in self.tramps:
            p.L(tr); self.I(f"s_call_b64 {s(S_RET,2)}, {lab}"); self.I(f"s_branch {back}")
        for key, (lab, items) in self.rare.items(): p.extend(items)
        ins = lambda seq: [i for i in seq if isinstance(i, Ins) and not i.nowarn]
        body = ins(p.items[loop_start:loop_end])
        def strip_spin(seq):
            out = []; skip = False
            for i in seq:
                if isinstance(i, Label) and i.name.endswith('_spin'): skip = True; continue
                if isinstance(i, Label) and i.name.endswith('_ok'): skip = False; continue
                if isinstance(i, Ins) and not skip: out.append(i)
            return out
        trace = strip_spin(p.items[n0:loop_start]) + body + body + strip_spin(p.items[loop_end:loop_end + len(tail) + 2])
        e1 = check_hazards(trace, name); e2 = check_waitcnt(trace, name)
        self.stats = dict(pro=len(ins(pro)), loop=len(body), tail=len(ins(tail)), npad=npad, npad2=npad2, rare=len(self.rare))
        return p.text(), kernel_desc(name, 512, 96, 256), e1 + e2

if __name__ == "__main__":
    g = AGen(); t, d, errs = g.gen()
    print(g.stats)
    for e in errs[:40]: print(e)
    print(len(errs), "errors")
```

```python
import re
from asmgen import *
from layout import *
import k_attn16 as KA
from k_attn16 import *
from k_gemm import gelu_ops, f2u, GC0, GC1, interleave

LDS_S0 = 131072
LDS_BYTES_A = 163840
S_X, S_WS = S_XN, S_O
S_W1, S_W2, S_H, S_DBG = 44, 48, 52, 56
S_PAR, S_CT, S_R01 = 41, 42, 43
S_R23, S_X01, S_X23, S_T2, S_T3, S_M0S, S_SPIN, S_C0, S_C1 = 60, 61, 62, 63, 64, 65, 66, 67, 68
S_WT = 88
V_ONES = 10
V_XR = 2
V_CSQ = 218
V_NMU, V_RS = 230, 234
V_POLL, V_POLLA = 226, 227
V_POLL2, V_POLLA2 = 138, 139
V_D3 = 128
V_A3K = 130
A_J2ACC, A_J2R = 192, 208
A_ST23 = 176
NRQ, LAGQ = 12, 6
def xreg(X, e):
    if e < 8: return a((e*4 + X)*4, 4)
    if e < 12: return a(192 + ((e-8)*4 + X)*4, 4)
    return v(144 + ((e-12)*4 + X)*4, 4)
def hreg(s_, e): return a((e*2 + s_)*4, 4)
J_ACC = lambda s_, nb: 16 + (s_*2 + nb)*4
J_CS = lambda nb: 32 + nb*4
J_SUM = lambda s_: 40 + 4*s_
J_GR = lambda s_: 48 + 4*s_
def ctr_off(kind): return 32*kind

def gelu8(q, x, t, nmu, cs, P0, P1, IR):
    q.I(f"v_fma_f32 {v(x)}, {v(nmu)}, {v(cs)}, {v(x)}")
    q.I(f"v_mul_f32 {v(t)}, {v(x)}, {v(x)}")
    q.I(f"v_fma_f32 {v(t)}, {v(t)}, {v(P1)}, {v(P0)}")
    q.I(f"v_mul_f32 {v(t)}, {v(t)}, {v(x)}")
    q.I(f"v_exp_f32 {v(t)}, {v(t)}")
    q.I(f"v_fma_f32 {v(t)}, {v(t)}, {v(IR)}, {v(IR)}")
    q.I(f"v_rcp_f32 {v(t)}, {v(t)}")
    q.I(f"v_mul_f32 {v(x)}, {v(x)}, {v(t)}")
def bc(r): return v(r & ~1, 2), r & 1
def pk(op, d, *srcs):
    t = []; lo = []; hi = []
    for x in srcs:
        if isinstance(x, tuple): assert x[1] % 2 == 0; tx, sel = bc(x[1]); t.append(tx); lo.append(sel); hi.append(sel)
        else:
            assert x % 2 == 0; t.append(v(x, 2)); lo.append(0); hi.append(1)
    assert d % 2 == 0
    return f"{op} {v(d,2)}, " + ", ".join(t) + f" op_sel:[{','.join(map(str,lo))}] op_sel_hi:[{','.join(map(str,hi))}]"
def gelu_pk(q, x, t, nmu, cs, P0, P1, IR):
    q.I(pk("v_pk_fma_f32", x, ('b', nmu), cs, x))
    q.I(pk("v_pk_mul_f32", t, x, x))
    q.I(pk("v_pk_fma_f32", t, t, ('b', P1), ('b', P0)))
    q.I(pk("v_pk_mul_f32", t, t, x))
    q.I(f"v_exp_f32 {v(t)}, {v(t)}"); q.I(f"v_exp_f32 {v(t+1)}, {v(t+1)}")
    q.I(pk("v_pk_fma_f32", t, t, ('b', IR), ('b', IR)))
    q.I(f"v_rcp_f32 {v(t)}, {v(t)}"); q.I(f"v_rcp_f32 {v(t+1)}, {v(t+1)}")
    q.I(pk("v_pk_mul_f32", x, x, t))
def gelu_consts(I, r, P0, P1, IR):
    I(f"v_mul_f32 {v(P1)}, {v(r)}, {v(r)}"); I(f"v_rcp_f32 {v(IR)}, {v(r)}")
    I(f"v_mul_f32 {v(P1)}, {v(P1)}, {v(r)}"); I(f"v_mul_f32 {v(P0)}, 0x{f2u(GC0):x}, {v(r)}"); I(f"v_mul_f32 {v(P1)}, 0x{f2u(GC1):x}, {v(P1)}")

class AGen(AttnGen):
    def __init__(self, opts=None):
        opts = dict(opts or {}); opts.setdefault('lsum', 0)
        super().__init__(stamps=False, opts=opts)
        for k_, v_ in dict(j3=1, j3v=1, xmap=1, hrate=1.3, nx0=4, chk=5, mz=1, pfq=1, pfx=0, pf3=0, cpf=1, opad=1024, pfw=0, wp=2, wpl=1, kst=4, kvl=3, wt=7, shs=1, wpad=1024, nopoll=0, pk=3, vr=2, ph=(1, 66, 76), st=('j1', 'qp', 'j2', 'ft', 'loop', 'epi')).items(): self.o.setdefault(k_, v_)
        self.vmq = []; self.vm_out = 0; self.lgq = []; self.tail = False; self.wpr = 208 if self.o['wp'] == 2 else 0
    def ms(self, name):
        if name in self.o['st']: mid_stamp(self.I, self.o['st'].index(name))
    def vm(self, tag, n=1): self.vmq += [tag]*n
    def wait_for(self, tag):
        idx = max(i for i, e in enumerate(self.vmq) if e == tag)
        return len(self.vmq) - 1 - idx
    def waitvm(self, tag):
        n = self.wait_for(tag)
        if n < self.vm_out: self.I(f"s_waitcnt vmcnt({n})")
    def emit(self, ins):
        if ins.kind == 'vmem':
            if self.vm_out >= 62: self.p.add(Ins("s_waitcnt vmcnt(54)")); self.vm_out = 54
            self.vm_out += 1
        if ins.op == 's_waitcnt':
            m = re.search(r'vmcnt\((\d+)\)', ins.text)
            if m: self.vm_out = min(self.vm_out, int(m.group(1)))
        self.p.add(ins); return ins

    def prologue_setup(self):
        I = self.I
        I("s_cmp_ge_u32 s2, 256")
        I("s_cbranch_scc1 L_a_end")
        I(f"s_load_dwordx2 {s(S_X,2)}, s[0:1], {ARG_X}")
        I(f"s_load_dwordx2 {s(S_W1,2)}, s[0:1], {ARG_W1}")
        I(f"s_load_dwordx2 {s(S_WQ,2)}, s[0:1], {ARG_WQ}")
        I(f"s_load_dwordx2 {s(S_K,2)}, s[0:1], {ARG_K}")
        I(f"s_load_dwordx2 {s(S_V,2)}, s[0:1], {ARG_V}")
        I(f"s_load_dwordx2 {s(S_W2,2)}, s[0:1], {ARG_W2}")
        I(f"s_load_dwordx2 {s(S_WS,2)}, s[0:1], {ARG_WS}")
        I(f"s_load_dwordx2 {s(S_DBG,2)}, s[0:1], {ARG_DBG}")
        if self.o['wp'] == 2: I(f"s_load_dwordx2 s[92:93], s[0:1], {ARG_W4}"); I(f"s_load_dwordx2 s[94:95], s[0:1], {ARG_WO}")
        I(f"v_lshrrev_b32 v1, 6, v0")
        I(f"s_and_b32 {s(S_T0)}, s2, 7")
        I(f"v_readfirstlane_b32 {s(S_W)}, v1")
        I(f"s_lshr_b32 {s(S_T1)}, s2, 3")
        I(f"s_and_b32 {s(S_HEAD)}, {s(S_T1)}, 3")
        I(f"s_lshl_b32 {s(S_T0)}, {s(S_T0)}, 2")
        I(f"s_add_u32 {s(S_HEAD)}, {s(S_HEAD)}, {s(S_T0)}")
        I(f"s_lshr_b32 {s(S_QB)}, s2, 5")
        if self.o['xmap']:
            I(f"s_bfe_u32 {s(S_PAR)}, {s(S_HEAD)}, 0x10002"); I(f"s_lshr_b32 {s(S_CT)}, {s(S_HEAD)}, 3"); I(f"s_lshl_b32 {s(S_CT)}, {s(S_CT)}, 2")
            I(f"s_and_b32 {s(S_T0)}, {s(S_HEAD)}, 3"); I(f"s_or_b32 {s(S_CT)}, {s(S_CT)}, {s(S_T0)}")
        else:
            I(f"s_and_b32 {s(S_PAR)}, {s(S_HEAD)}, 1"); I(f"s_lshr_b32 {s(S_CT)}, {s(S_HEAD)}, 1")
        I(f"s_lshl_b32 {s(S_T0)}, {s(S_QB)}, 4"); I(f"s_lshl_b32 {s(S_T1)}, {s(S_W)}, 2"); I(f"s_add_u32 {s(S_T0)}, {s(S_T0)}, {s(S_T1)}")
        I(f"s_lshl_b32 {s(S_T1)}, {s(S_PAR)}, 1"); I(f"s_add_u32 {s(S_R01)}, {s(S_T0)}, {s(S_T1)}")
        I(f"s_add_u32 {s(S_R23)}, {s(S_T0)}, 2"); I(f"s_sub_u32 {s(S_R23)}, {s(S_R23)}, {s(S_T1)}")
        I(f"s_lshl_b32 {s(S_X01)}, {s(S_R01)}, 14"); I(f"s_lshl_b32 {s(S_X23)}, {s(S_R23)}, 14")
        I("v_and_b32 v1, 63, v0")
        I(f"v_lshlrev_b32 {v(V_L16)}, 4, v1")
        I("v_and_b32 v2, 15, v1"); I("v_lshrrev_b32 v5, 4, v1")
        I("v_lshrrev_b32 v8, 3, v1"); I("v_and_b32 v9, 7, v1"); I("v_xor_b32 v9, v9, v8"); I("v_lshlrev_b32 v9, 4, v9"); I("v_lshl_add_u32 v3, v8, 10, v9")
        I("v_lshrrev_b32 v8, 2, v1"); I("v_lshlrev_b32 v8, 10, v8"); I("v_and_b32 v9, 3, v1")
        I("v_lshrrev_b32 v4, 5, v1"); I("v_lshlrev_b32 v4, 1, v4"); I("v_xor_b32 v4, v4, v9"); I("v_lshl_add_u32 v6, v4, 4, v8")
        I("v_bfe_u32 v4, v1, 4, 1"); I("v_lshlrev_b32 v4, 1, v4"); I("v_xor_b32 v4, v4, v9"); I(f"v_lshl_add_u32 {v(15)}, v4, 4, v8")
        I("s_waitcnt lgkmcnt(0)")
        def fin(S_, size):
            I(f"s_mov_b32 {s(S_+2)}, {size}"); I(f"s_mov_b32 {s(S_+3)}, 0x20000")
        fin(S_X, "0x200000")
        I(f"s_lshl_b32 {s(S_T0)}, {s(S_HEAD)}, 8")
        I(f"s_add_u32 {s(S_WQ)}, {s(S_WQ)}, {s(S_T0)}"); I(f"s_addc_u32 {s(S_WQ+1)}, {s(S_WQ+1)}, 0")
        I(f"s_sub_u32 {s(S_WQ+2)}, 0x400000, {s(S_T0)}"); I(f"s_mov_b32 {s(S_WQ+3)}, 0x20000")
        I(f"s_lshl_b32 {s(S_T0)}, {s(S_CT)}, 6")
        for S_ in (S_W1, S_W2):
            I(f"s_add_u32 {s(S_)}, {s(S_)}, {s(S_T0)}"); I(f"s_addc_u32 {s(S_+1)}, {s(S_+1)}, 0")
            I(f"s_sub_u32 {s(S_+2)}, 0x80000, {s(S_T0)}"); I(f"s_mov_b32 {s(S_+3)}, 0x20000")
        I(f"s_lshl_b32 {s(S_M0S)}, {s(S_W)}, 13"); I(f"s_add_u32 {s(S_M0S)}, {s(S_M0S)}, {LDS_S0}")
        self.slice_dma(S_W1, 6, 'w1', 'S0')
        I(f"s_lshl_b32 {s(S_T0)}, {s(S_W)}, 12")
        I(f"s_mov_b32 {s(S_M0K)}, {s(S_T0)}")
        I(f"s_add_u32 {s(S_M0V)}, {s(S_T0)}, {LDS_V}")
        for k in range(self.o['nx0']): self.x_dma(0, k)
        if self.o['pfq']:
            I("v_bfe_u32 v4, v1, 1, 4"); I("v_lshlrev_b32 v4, 13, v4"); I("v_and_b32 v7, 1, v1"); I("v_lshl_add_u32 v4, v7, 7, v4")
            I(f"s_lshl_b32 {s(S_T0)}, {s(S_QB)}, 2"); I(f"s_add_u32 {s(S_T0)}, {s(S_T0)}, {s(S_W)}"); I(f"s_lshl_b32 {s(S_T0)}, {s(S_T0)}, 17")
            I(f"buffer_load_dword {v(V_POLL)}, v4, {s(S_WQ,4)}, {s(S_T0)} offen"); self.vm('pf')
        if self.o['pfx']:
            I("v_lshrrev_b32 v4, 3, v1"); I("v_lshlrev_b32 v4, 10, v4"); I("v_and_b32 v7, 7, v1"); I("v_lshl_add_u32 v4, v7, 7, v4")
            I(f"s_and_b32 {s(S_T0)}, {s(S_HEAD)}, 3"); I(f"s_lshl_b32 {s(S_T0)}, {s(S_T0)}, 13"); I(f"s_add_u32 {s(S_T0)}, {s(S_T0)}, {s(S_X23)}")
            I(f"buffer_load_dword {v(225)}, v4, {s(S_X,4)}, {s(S_T0)} offen"); self.vm('pf')
        if self.o['cpf']: self.code_prefetch("a_kernel", "L_final_kernel_end", "L_pc1", 4, 224, 6)
        I("v_and_b32 v1, 63, v0")
        I("v_xor_b32 v4, v5, v2"); I("v_lshlrev_b32 v4, 4, v4"); I("v_lshl_add_u32 v4, v2, 8, v4")
        I(f"s_lshl_b32 {s(S_T2)}, {s(S_W)}, 6"); I(f"v_xor_b32 v4, {s(S_T2)}, v4")
        for s_ in range(4): I(f"v_xor_b32 {v(V_AK+s_)}, {s_ << 6}, v4")
        I("v_lshrrev_b32 v8, 2, v1"); I("v_and_b32 v8, 3, v8")
        I("v_lshl_add_u32 v7, v5, 2, v8")
        I("v_and_b32 v9, 3, v1")
        I("v_and_b32 v4, 7, v7")
        I("v_lshlrev_b32 v10, 8, v7")
        I("v_lshl_add_u32 v11, v4, 5, v10"); I("v_lshl_add_u32 v11, v9, 3, v11")
        I(f"v_add_u32 v11, {LDS_V}, v11")
        for db in range(8): I(f"v_xor_b32 {v(V_AV+db)}, {db << 5}, v11")
        I("v_lshl_add_u32 v10, v5, 3, v8")
        I("v_lshlrev_b32 v12, 1, v4"); I("v_xor_b32 v12, v12, v9"); I("v_lshlrev_b32 v12, 4, v12"); I("v_lshl_add_u32 v12, v10, 8, v12")
        I(f"v_xor_b32 v12, {s(S_T2)}, v12")
        for e in range(4):
            I(f"v_xor_b32 {v(V_AW+e)}, {e << 6}, v12")
            I(f"v_add_u32 {v(V_AWV+e)}, {LDS_V}, {v(V_AW+e)}")
        I("v_and_b32 v12, 1, v5"); I("v_lshlrev_b32 v12, 5, v12"); I("v_lshl_add_u32 v12, v9, 3, v12"); I(f"v_add_u32 v12, {LDS_S0}, v12")
        I(f"v_lshl_add_u32 {v(222)}, v10, 6, v12"); I(f"v_xor_b32 {v(223)}, 32, {v(222)}")
        I(f"v_lshl_add_u32 {v(228)}, v7, 6, v12")
        for jj in range(4):
            I(f"v_add_u32 v8, {4*jj}, v5"); I("v_xor_b32 v8, v8, v2"); I("v_lshlrev_b32 v8, 4, v8")
            I(f"v_lshl_add_u32 {v(V_DK+jj)}, v5, 8, v8")
        for pj in range(2):
            I(f"v_add_u32 v8, {4*pj}, v5"); I("v_lshlrev_b32 v8, 1, v8"); I("v_xor_b32 v8, v8, v2"); I("v_lshlrev_b32 v8, 4, v8")
            I(f"v_lshl_add_u32 {v(V_DV+pj)}, v5, 8, v8")
            I(f"v_lshl_add_u32 {v(V_DW+pj)}, v5, 13, v8")
        I(f"s_lshl_b32 {s(S_T0)}, {s(S_HEAD)}, 19")
        for S_ in (S_K, S_V):
            I(f"s_add_u32 {s(S_)}, {s(S_)}, {s(S_T0)}"); I(f"s_addc_u32 {s(S_+1)}, {s(S_+1)}, 0")
            fin(S_, "0x80000")
        I(f"s_add_u32 {s(S_H)}, {s(S_WS)}, {WS_H}"); I(f"s_addc_u32 {s(S_H+1)}, {s(S_WS+1)}, 0"); fin(S_H, "0x200000")
        fin(S_WS, hex(44*MB)); fin(S_DBG, "0x100")
        I(f"s_lshl_b32 {s(S_T0)}, {s(S_W)}, 12")
        I(f"s_mov_b32 {s(S_KOFF)}, {s(S_T0)}")
        I(f"s_mov_b32 {s(S_VOFF)}, {s(S_T0)}")
        I(f"s_lshl_b32 {s(S_WOFF)}, {s(S_W)}, 17")
        I(f"s_mov_b32 {s(S_THR)}, {'0x41500000' if KA.LSUM else '0x46000000'}")
        I(f"v_mov_b32 {v(V_THR)}, {s(S_THR)}")
        I(f"s_mov_b32 {s(S_SCALE)}, 0x3e0293ee")
        I("v_min_u32 v4, 2, v1"); I(f"v_add_u32 v4, {s(S_QB)}, v4"); I("v_max_u32 v4, 1, v4"); I("v_min_u32 v4, 8, v4"); I("v_subrev_u32 v4, 1, v4")
        I("v_and_b32 v8, 3, v4"); I("v_lshlrev_b32 v8, 6, v8"); I("v_lshrrev_b32 v4, 2, v4"); I(f"v_lshl_add_u32 {v(V_POLLA)}, v4, 2, v8")
        I(f"s_and_b32 {s(S_C0)}, {s(S_QB)}, 3"); I(f"s_lshl_b32 {s(S_C0)}, {s(S_C0)}, 6"); I(f"s_lshr_b32 {s(S_C1)}, {s(S_QB)}, 2"); I(f"s_lshl_b32 {s(S_C1)}, {s(S_C1)}, 2")
        I(f"s_add_u32 {s(S_C0)}, {s(S_C0)}, {s(S_C1)}")
        for k in range(4): I(f"v_mov_b32 {v(V_ONES+k)}, 0x3f803f80")
        I("v_and_b32 v8, 7, v2"); I("v_xor_b32 v8, v8, v5"); I("v_lshlrev_b32 v8, 4, v8"); I("v_lshl_add_u32 v8, v2, 7, v8")
        I(f"v_add_u32 v4, {s(S_M0K)}, v8"); I("v_xor_b32 v5, 64, v4"); I(f"v_add_u32 v6, {LDS_V}, v4"); I(f"v_add_u32 v7, {LDS_V}, v5")

    def x_dma_op(self, half, k, i):
        I = self.I
        reg, slot = self.WSLOT[k]
        s_, j = i >> 1, i & 1
        imm = s_*2048 + j*1024
        I(f"s_add_u32 m0, {s(S_M0K if reg == 'K' else S_M0V)}, {slot*SLOT}")
        I(f"s_add_u32 {s(S_T0)}, {s(S_X01 if half == 0 else S_X23)}, {s_*16384 + j*8192 + k*128 - imm}")
        I(f"buffer_load_dwordx4 v3, {s(S_X,4)}, {s(S_T0)} offen offset:{imm} lds", lds_w=(reg, slot, 'x')); self.vm(('x', half, k))
    def x_dma(self, half, k):
        for i in range(4): self.x_dma_op(half, k, i)
    def x_read(self, half, k):
        reg, slot = self.WSLOT[k]
        for e2 in range(2):
            for s_ in range(2):
                ar = (4 if reg == 'K' else 6) + e2
                self.I(f"ds_read_b128 {xreg(2*half + s_, 2*k + e2)}, {v(ar)} offset:{slot*SLOT + s_*2048}", lds_r=(reg, slot, 'xr')); self.lg(('xr', half, k))
    def x23_stage(self, k0, k1):
        for k in range(k0, k1):
            self.waitvm(('x', 1, k)); self.x_read(1, k)
            if k > k0: self.waitlg(('xr', 1, k-1)); self.wq_dma(k-1)
        self.waitlg(('xr', 1, k1-1)); self.wq_dma(k1-1)
    def lg(self, tag): self.lgq.append(tag)
    def waitlg(self, tag):
        idx = max(i for i, e in enumerate(self.lgq) if e == tag)
        self.I(f"s_waitcnt lgkmcnt({min(15, len(self.lgq) - 1 - idx)})")

    def code_prefetch(self, lo, hi, lab, vt, dst, nper):
        I = self.I
        I(f"s_getpc_b64 {s(S_WT,2)}")
        self.p.L(lab)
        I(f"s_add_u32 {s(S_WT)}, {s(S_WT)}, {lo} - {lab}") ; I(f"s_addc_u32 {s(S_WT+1)}, {s(S_WT+1)}, {'0' if True else ''}") if not lo.startswith('a_kernel') else None
        if lo.startswith('a_kernel'):
            self.p.items.pop()
            I(f"s_sub_u32 {s(S_WT)}, {s(S_WT)}, {lab} - {lo}"); I(f"s_subb_u32 {s(S_WT+1)}, {s(S_WT+1)}, 0")
        I(f"s_lshr_b32 {s(S_T0)}, s2, 3"); I(f"s_lshl_b32 {s(S_T0)}, {s(S_T0)}, 2"); I(f"s_add_u32 {s(S_T0)}, {s(S_T0)}, {s(S_W)}"); I(f"s_mul_i32 {s(S_T0)}, {s(S_T0)}, {nper}")
        I(f"v_lshrrev_b32 {v(vt)}, 4, {v(V_L16)}"); I(f"v_min_u32 {v(vt)}, {nper - 1}, {v(vt)}"); I(f"v_add_u32 {v(vt)}, {s(S_T0)}, {v(vt)}")
        I(f"v_min_u32 {v(vt)}, (({hi} - {lo}) >> 7) - 1, {v(vt)}"); I(f"v_lshlrev_b32 {v(vt)}, 7, {v(vt)}")
        I(f"global_load_dword {v(dst)}, {v(vt)}, {s(S_WT,2)}"); self.vm('cpf')

    def slice_dma_op(self, srd, vo, tag, region, i):
        I = self.I
        h, jj = i >> 2, i & 3
        I(f"s_add_u32 m0, {s(S_M0S)}, {h*4096}")
        I(f"s_lshl_b32 {s(S_T0)}, {s(S_W)}, 17")
        I(f"s_add_u32 {s(S_T0)}, {s(S_T0)}, {(4*h + jj)*16384 - jj*1024}")
        I(f"buffer_load_dwordx4 {v(vo)}, {s(srd,4)}, {s(S_T0)} offen offset:{jj*1024} lds", lds_w=region); self.vm(tag)
    def slice_dma(self, srd, vo, tag, region):
        for i in range(8): self.slice_dma_op(srd, vo, tag, region, i)
    def kv_op(self, which, tile, jj):
        base = S_M0K if which == 'K' else S_M0V
        self.I(f"s_add_u32 m0, {s(base)}, {(tile & 3)*SLOT}")
        self.I("s_nop 0")
        self.emit_dma(which, tile, jj); self.vm(('kv', (which, tile)))
        if jj == 3:
            off = S_KOFF if which == 'K' else S_VOFF
            self.I(f"s_add_u32 {s(off)}, {s(off)}, {SLOT}")

    def wq_dma_op(self, c, jj):
        reg, slot = self.WSLOT[c]
        base = S_M0K if reg == 'K' else S_M0V
        self.I(f"s_add_u32 m0, {s(base)}, {slot*SLOT}")
        self.I(f"s_add_u32 {s(S_T0)}, {s(S_WOFF)}, {(64*c + 4*jj)*8192 - jj*1024}")
        self.I(f"buffer_load_dwordx4 {v(V_DW+(jj>>1))}, {s(S_WQ,4)}, {s(S_T0)} offen offset:{jj*1024} lds", lds_w=(reg, slot)); self.vm(('w', c))
    def wq_dma(self, c):
        for jj in range(4): self.wq_dma_op(c, jj)
    def wread(self, rho):
        phi, t = rho >> 1, rho & 1
        c, e2, nb = phi >> 4, (phi >> 3) & 1, phi & 7
        ep, b = nb >> 1, nb & 1
        reg, slot = self.WSLOT[c]
        ar = (V_AW if reg == 'K' else V_AWV) + ep
        return Ins(f"ds_read_b64_tr_b16 {a(A_WF + 4*(phi % NRQ) + 2*t, 2)}, {v(ar)} offset:{slot*SLOT + e2*8192 + t*1024 + 8*b}", lds_r=(reg, slot))

    def row_stats(self, s_, sum_txt, gr_regs, t=8, t2=9):
        I = self.I
        I(f"v_mov_b32 {v(t)}, 0")
        for r in range(4):
            I(f"s_mov_b32 vcc_lo, 0x{((1 | (1 << 20)) << r):x}"); I(f"s_mov_b32 vcc_hi, 0x{(((1 << 8) | (1 << 28)) << r) & 0xffffffff:x}")
            I(f"v_cndmask_b32 {v(t)}, {v(t)}, {v(gr_regs[r])}, vcc")
        for sw in ('16', '32'):
            I(f"v_mov_b32 {v(t2)}, {v(t)}"); I("s_nop 1"); I(f"v_permlane{sw}_swap_b32 {v(t)}, {v(t2)}"); I("s_nop 0"); I(f"v_add_f32 {v(t)}, {v(t)}, {v(t2)}")
        nm, rs = V_NMU + s_, V_RS + s_
        I(f"v_mul_f32 {v(nm)}, 0xbb000000, {sum_txt}")
        I(f"v_mul_f32 {v(t)}, 0x3b000000, {v(t)}")
        I(f"v_fma_f32 {v(t)}, -{v(nm)}, {v(nm)}, {v(t)}")
        I(f"v_max_f32 {v(t)}, 0, {v(t)}")
        I(f"v_add_f32 {v(t2)}, 0x3727c5ac, {v(t)}")
        I(f"v_rsq_f32 {v(rs)}, {v(t2)}")
        return t

    def j1(self):
        I = self.I
        NF = 32; LA = 4
        AJ = 222
        def rd(phi):
            e, nb = phi >> 1, phi & 1
            for t in range(2):
                self.emit(Ins(f"ds_read_b64_tr_b16 {a(A_WF + 4*(phi % 8) + 2*t, 2)}, {v(AJ+nb)} offset:{e*2048 + t*256}", lds_r='S0')); self.lg(('w1', phi))
        self.ms('s0')
        NX0 = self.o['nx0']
        ops = [(0, k) for k in range(NX0, 8)] + [(1, k) for k in range(8)]
        slot_ops = [[[] for _ in range(4)] for _ in range(8)]
        oi = 0
        for k in range(8):
            n_here = 1 if k + NX0 <= 7 else 2
            for j in range(n_here):
                if oi >= len(ops): break
                half, kk = ops[oi]
                if half == 1 and kk > k: break
                for i in range(4):
                    slot_ops[k][(i + j*4)//n_here if n_here == 2 else i].append(lambda half=half, kk=kk, i=i: self.x_dma_op(half, kk, i))
                oi += 1
        rest = ops[oi:]
        self.waitvm(('x', 0, 0)); self.x_read(0, 0)
        self.ms('x0')
        I("s_barrier")
        for phi in range(LA): rd(phi)
        nread = LA
        for e in range(16):
            k = e >> 1
            if e % 2 == 0:
                if k < 7: self.waitvm(('x', 0, k+1)); self.x_read(0, k+1)
                self.waitlg(('xr', 0, k))
            first = (e == 0)
            def M(d, A, B): I(f"{MFMA} {v(d,4)}, {A}, {B}, {'0' if first else v(d,4)}")
            for s_ in range(2):
                M(J_SUM(s_), v(V_ONES, 4), xreg(s_, e)); M(J_GR(s_), xreg(s_, e), xreg(s_, e))
            for nb in range(2):
                phi = 2*e + nb
                self.waitlg(('w1', phi))
                A = a(A_WF + 4*(phi % 8), 4)
                for s_ in range(2): M(J_ACC(s_, nb), A, xreg(s_, e))
                for f_ in slot_ops[k][2*(e & 1) + nb]: f_()
                M(J_CS(nb), A, v(V_ONES, 4))
                if nread < NF: rd(nread); nread += 1
        for (half, kk) in rest: self.x_dma(half, kk)
        self.ms('j1m')
        self.x23_stage(0, 2)
        self.ms('j1x')
        J1C = (lambda s_: ((88, 90, 92), (56, 58, 62))[s_]) if self.o['pk'] & 1 else (lambda s_: (88+3*s_, 89+3*s_, 90+3*s_))
        assert self.o['shs'] or not (self.o['pk'] & 1)
        I("s_nop 7")
        for s_ in range(2):
            t = self.row_stats(s_, v(J_SUM(s_)), [J_GR(s_)+r for r in range(4)])
            I(f"v_mul_f32 {v(t)}, {v(t)}, {v(V_RS+s_)}"); I(f"v_mul_f32 {v(t)}, {v(t)}, {v(V_RS+s_)}")
            I(f"v_add_f32 {v(t)}, 0x3727c5ac, {v(t)}"); I(f"v_rsq_f32 {v(t)}, {v(t)}")
            I("s_nop 0")
            I(f"v_mul_f32 {v(60+s_)}, {v(t)}, {v(V_RS+s_)}")
            gelu_consts(I, 60+s_, *J1C(s_))
        if self.o['shs']:
            I(f"v_lshrrev_b32 v8, 1, {v(V_L16)}")
            I(f"s_lshl_b32 {s(S_T0)}, {s(S_R01)}, 7"); I(f"s_add_u32 {s(S_T0)}, {s(S_T0)}, {WS_RST}")
            for s_ in range(2):
                I(f"v_mov_b32 {v(94+2*s_)}, {v(V_NMU+s_)}"); I(f"v_mov_b32 {v(95+2*s_)}, {v(V_RS+s_)}")
            I("s_mov_b64 exec, 0xffff")
            for s_ in range(2):
                I(f"buffer_store_dwordx2 {v(94+2*s_,2)}, v8, {s(S_WS,4)}, {s(S_T0)} offen offset:{s_*128} sc1"); self.vm('rst')
            I("s_mov_b64 exec, -1")
        seqs = []
        for s_ in range(2):
            for nb in range(2):
                for r in range(0, 4, 2 if self.o['pk'] & 1 else 1):
                    q = Prog(); (gelu_pk if self.o['pk'] & 1 else gelu8)(q, J_ACC(s_, nb) + r, 64 + (s_*2+nb)*4 + r, (94+2*s_ if self.o['pk'] & 1 else V_NMU+s_), J_CS(nb)+r, *J1C(s_)); seqs.append(q.items)
        self.p.extend(interleave(seqs))
        I(f"s_lshl_b32 {s(S_T0)}, {s(S_CT)}, 10"); I(f"s_add_u32 {s(S_T0)}, {s(S_T0)}, {s(S_X01)}")
        for s_ in range(2):
            for jj in range(4):
                x0 = J_ACC(s_, jj >> 1) + 2*(jj & 1)
                I(f"v_cvt_pk_bf16_f32 {v(80+s_*4+jj)}, {v(x0)}, {v(x0+1)}")
            I(f"buffer_store_dwordx4 {v(80+s_*4,4)}, {v(V_L16)}, {s(S_H,4)}, {s(S_T0)} offen offset:0 sc1" if s_ == 0 else
              f"buffer_store_dwordx4 {v(80+s_*4,4)}, {v(V_L16)}, {s(S_H,4)}, {s(S_T1)} offen offset:0 sc1"); self.vm('hst')
            if s_ == 0: I(f"s_add_u32 {s(S_T1)}, {s(S_T0)}, 16384")
        self.ms('j1s')
        self.x23_stage(2, self.o['kst'])

    def signal(self, kind, lab):
        I = self.I
        I(f"s_cmp_lg_u32 {s(S_W)}, 0"); I(f"s_cbranch_scc1 {lab}")
        I("s_mov_b64 exec, 1")
        I("v_mov_b32 v8, 1"); I("v_mov_b32 v9, 0")
        I(f"buffer_atomic_add v8, v9, {s(S_DBG,4)}, {s(S_C0)} offen offset:{ctr_off(kind)} sc1")
        I("s_mov_b64 exec, -1")
        self.p.L(lab)
    def poll_issue(self, dst, addr, kind):
        self.I(f"buffer_load_dword {v(dst)}, {v(addr)}, {s(S_DBG,4)}, 0 offen offset:{ctr_off(kind)} sc1")
    def poll_check(self, dst, addr, kind, lab):
        I = self.I
        I(f"v_cmp_gt_u32 vcc, 32, {v(dst)}"); I("s_nop 0")
        I(f"s_cbranch_vccz {lab}_ok")
        save = self.vm_out
        I(f"s_mov_b32 {s(S_SPIN)}, 20000")
        self.p.L(f"{lab}_spin")
        I(f"buffer_load_dword {v(dst)}, {v(addr)}, {s(S_DBG,4)}, 0 offen offset:{ctr_off(kind)} sc1").nowarn = True
        I("s_waitcnt vmcnt(0)")
        I(f"v_cmp_gt_u32 vcc, 32, {v(dst)}"); I("s_nop 0")
        I(f"s_cbranch_vccz {lab}_ok")
        I(f"s_sub_u32 {s(S_SPIN)}, {s(S_SPIN)}, 1"); I(f"s_cmp_lg_u32 {s(S_SPIN)}, 0"); I(f"s_cbranch_scc1 {lab}_spin")
        self.p.L(f"{lab}_ok")
        self.vm_out = save

    def h_ops(self):
        I = self.I
        ops = []
        def setup():
            I(f"v_lshrrev_b32 v0, 4, {v(V_L16)}"); I("v_and_b32 v1, 15, v0"); I("v_and_b32 v8, 48, v0")
        def addr(cg, s_):
            dl = (1, -1, 2, -2)[cg]; dst = 2 + 2*(cg & 1) + s_
            I(f"s_add_u32 {s(S_T2)}, {s(S_R01)}, {s_}"); I(f"s_lshl_b32 {s(S_T2)}, {s(S_T2)}, 4")
            I(f"v_add_u32 v6, {s(S_T2)}, v1")
            I(f"v_subrev_u32 v6, {dl}, v6") if dl > 0 else I(f"v_add_u32 v6, {-dl}, v6")
            I(f"v_ashrrev_i32 v7, 4, v6"); I(f"v_lshlrev_b32 v7, 14, v7")
            I(f"v_and_b32 v6, 15, v6"); I(f"v_add_u32 v6, v6, v8"); I(f"v_lshl_add_u32 {v(dst)}, v6, 4, v7")
        def mk(e, s_):
            def f():
                cg = e >> 2
                if e == 0 and s_ == 0: setup()
                if (e & 3) == 0: addr(cg, s_)
                I(f"s_mov_b32 {s(S_T3)}, {cg*4096}")
                I(f"buffer_load_dwordx4 {hreg(s_, e)}, {v(2 + 2*(cg & 1) + s_)}, {s(S_H,4)}, {s(S_T3)} offen offset:{(e&3)*1024} sc1"); self.vm(('h', e))
            return f
        for e in range(16):
            for s_ in range(2): ops.append(mk(e, s_))
        def mkx(s_, nb):
            def f():
                if s_ == 0 and nb == 0:
                    I("v_lshlrev_b32 v6, 10, v1"); I("v_lshrrev_b32 v7, 1, v8"); I("v_add_u32 v0, v6, v7")
                I(f"s_lshl_b32 {s(S_T2)}, {s(S_CT)}, 6"); I(f"s_add_u32 {s(S_T2)}, {s(S_T2)}, {s(S_X01)}")
                if s_ == 1: I(f"s_add_u32 {s(S_T2)}, {s(S_T2)}, 16384")
                I(f"buffer_load_dwordx2 {v(V_XR + (s_*2+nb)*2, 2)}, v0, {s(S_X,4)}, {s(S_T2)} offen offset:{nb*32}"); self.vm('xr')
            return f
        for s_ in range(2):
            for nb in range(2): ops.append(mkx(s_, nb))
        def mks(s_):
            def f():
                if s_ == 0: I("v_lshlrev_b32 v1, 3, v1")
                I(f"s_lshl_b32 {s(S_T2)}, {s(S_R23)}, 7"); I(f"s_add_u32 {s(S_T2)}, {s(S_T2)}, {WS_RST}")
                I(f"buffer_load_dwordx2 {a(A_ST23 + 2*s_, 2)}, v1, {s(S_WS,4)}, {s(S_T2)} offen offset:{s_*128} sc1"); self.vm('rsl')
            return f
        if self.o['shs']:
            for s_ in range(2): ops.append(mks(s_))
        return ops

    def qproj(self):
        I = self.I; p = self.p
        after_chunk = {0: ('K', 0), 1: ('K', 1), 2: ('V', 0), 3: ('K', 2), 4: ('V', 1), 5: ('V', 2)}
        self.late_kv = []
        if self.o['kvl']:
            for c_ in list(after_chunk)[6 - self.o['kvl']:]: self.late_kv.append(after_chunk.pop(c_))
        PH_SIG, PH_POLL, PH_H = self.o['ph']
        PH_CHK = self.o['chk']; assert PH_H > 16*PH_CHK - 6 and PH_POLL < 16*PH_CHK - 6
        qa = []
        KST = self.o['kst']
        t_ = 1
        if KST < 8:
            ks = list(range(KST, 8))
            def rd_(k): return lambda: (self.waitvm(('x', 1, k)), self.x_read(1, k))
            def wq_(k, jj):
                def f():
                    if jj == 0: self.waitlg(('xr', 1, k))
                    self.wq_dma_op(k, jj)
                return f
            seq = []
            for i, k in enumerate(ks):
                seq.append(rd_(k))
                if i >= 1: seq += [wq_(ks[i-1], jj) for jj in range(4)]
            seq += [wq_(ks[-1], jj) for jj in range(4)]
            for f in seq: qa.append((t_, f)); t_ += 1
        for i in range(8): qa.append((t_ + i, (lambda i=i: self.slice_dma_op(S_W2, 15, 'w2', 'S0', i))))
        for c_, (w_, tt_) in after_chunk.items():
            for jj in range(4): qa.append((16*(c_+1) + 10 + jj, (lambda w_=w_, tt_=tt_, jj=jj: self.kv_op(w_, tt_, jj))))
        qa.sort(key=lambda x: x[0])
        hops = self.h_ops()
        RATE = self.o['hrate']
        qb_ = [(PH_H + int(i*RATE), f) for i, f in enumerate(hops)]
        for i, (ph_, f) in enumerate(qb_):
            if i < 32: assert ph_ >= (32 if i < 16 else 64), (i, ph_)
        while qb_[-1][0] > 127: RATE *= 0.97; qb_ = [(PH_H + int(i*RATE), f) for i, f in enumerate(hops)]
        self.waitvm(('w', 0)); I("s_barrier")
        for rho in range(2*LAGQ): self.emit(self.wread(rho)); self.lg(('wq', rho >> 1))
        nread = 2*LAGQ
        for phi in range(128):
            c, e2, nb = phi >> 4, (phi >> 3) & 1, phi & 7
            e = 2*c + e2
            self.waitlg(('wq', phi))
            A = a(A_WF + 4*(phi % NRQ), 4)
            for X in range(4):
                d = v(V_QACC + (X*8+nb)*4, 4)
                I(f"{MFMA} {d}, {A}, {xreg(X, e)}, {'0' if e == 0 else d}")
                if X in (0, 2) and nread < 256:
                    if nread % 32 == 0:
                        cn = nread >> 5
                        if cn == PH_SIG: self.waitvm('hst')
                        if cn == PH_CHK and not self.o['nopoll']:
                            self.waitvm('poll')
                            I(f"s_cmp_lg_u32 {s(S_W)}, 0"); I("s_cbranch_scc1 L_p1_ok")
                            self.poll_check(V_POLL, V_POLLA, 0, "L_p1")
                            self.ms('pc')
                        self.waitvm(('w', cn))
                        I("s_barrier")
                        if cn == PH_SIG: self.signal(0, "L_sig1")
                    self.emit(self.wread(nread)); self.lg(('wq', nread >> 1)); nread += 1
                if X == 1 and qa and qa[0][0] <= phi: qa.pop(0)[1]()
                if X == 3 and qb_ and qb_[0][0] <= phi: qb_.pop(0)[1]()
            if nb < 2:
                d = v(V_CSQ + nb*4, 4)
                I(f"{MFMA} {d}, {A}, {v(V_ONES,4)}, {'0' if e == 0 else d}")
            elif nb < 6 and not self.o['shs']:
                k = nb - 2; s_ = k & 1
                d = a(A_ST23 + 4*k, 4)
                Aop = v(V_ONES, 4) if k < 2 else xreg(2+s_, e)
                I(f"{MFMA} {d}, {Aop}, {xreg(2+s_, e)}, {'0' if e == 0 else d}")
            self.ms(f'q{phi}')
            if phi == PH_POLL and not self.o['nopoll']:
                self.poll_issue(V_POLL, V_POLLA, 0); self.vm('poll')
        assert not qa and not qb_, (qa, qb_)
        self.ms('qp')

    def j2(self):
        I = self.I
        I(f"v_xor_b32 {v(229-1+0)}, 0, {v(228)}") if False else None
        I(f"v_xor_b32 v1, 32, {v(228)}")
        NF = 32; LA = 6; NR = 12
        def rd(phi):
            e, nb = phi >> 1, phi & 1
            for t in range(2):
                self.emit(Ins(f"ds_read_b64_tr_b16 {a(A_J2R + 4*(phi % NR) + 2*t, 2)}, {v(228) if nb == 0 else 'v1'} offset:{e*2048 + t*1024}", lds_r='S0'))
        self.waitvm('w2'); I("s_barrier")
        I(f"s_lshl_b32 {s(S_T0)}, {s(S_W)}, 11"); I(f"s_add_u32 {s(S_T0)}, {s(S_T0)}, {3*SLOT}")
        I(f"v_add_u32 v0, {s(S_T0)}, {v(V_L16)}")
        for b in range(2): I(f"ds_write_b128 v0, {v(V_CSQ+4*b,4)} offset:{b*1024}", lds_w=('K', 3))
        for phi in range(LA): rd(phi)
        nread = LA
        lkv = [(lambda w_=w_, t_=t_, jj=jj: self.kv_op(w_, t_, jj)) for (w_, t_) in self.late_kv for jj in range(4)]
        for e in range(16):
            if e % 2 == 0: self.waitvm(('h', e + 1))
            for nb in range(2):
                phi = 2*e + nb
                I(f"s_waitcnt lgkmcnt({min(15, 2*(nread - phi - 1))})")
                A = a(A_J2R + 4*(phi % NR), 4)
                for s_ in range(2):
                    d = a(A_J2ACC + (s_*2+nb)*4, 4)
                    I(f"{MFMA} {d}, {A}, {hreg(s_, e)}, {'0' if e == 0 else d}")
                if nread < NF: rd(nread); nread += 1
                if lkv: lkv.pop(0)()
        assert not lkv
        if self.o['shs']:
            self.waitvm('rsl')
            for s_ in range(2):
                I(f"v_accvgpr_read_b32 {v(V_NMU+2+s_)}, {a(A_ST23 + 2*s_)}"); I(f"v_accvgpr_read_b32 {v(V_RS+2+s_)}, {a(A_ST23 + 2*s_ + 1)}")
        else:
          for s_ in range(2):
            for r in range(4): I(f"v_accvgpr_read_b32 {v(208+r)}, {a(A_ST23 + 8 + 4*s_ + r)}")
            I(f"v_accvgpr_read_b32 {v(212)}, {a(A_ST23 + 4*s_)}")
            self.row_stats(2+s_, v(212), [208+r for r in range(4)], 213, 214)
        self.waitvm('xr')
        I(f"s_lshl_b32 {s(S_T0)}, {s(S_CT)}, 10"); I(f"s_add_u32 {s(S_T0)}, {s(S_T0)}, {s(S_X01)}"); I(f"s_add_u32 {s(S_T0)}, {s(S_T0)}, {WS_X1}")
        I(f"s_lshl_b32 {s(S_T1)}, {s(S_CT)}, 14"); I(f"s_lshl_b32 {s(S_T2)}, {s(S_R01)}, 7"); I(f"s_add_u32 {s(S_T1)}, {s(S_T1)}, {s(S_T2)}"); I(f"s_add_u32 {s(S_T1)}, {s(S_T1)}, {WS_STAT}")
        for s_ in range(2):
            acc, pk = 208, 216
            for j in range(8): I(f"v_accvgpr_read_b32 {v(acc+j)}, {a(A_J2ACC + s_*8 + j)}")
            if s_ == 0: I("s_waitcnt lgkmcnt(0)")
            for j in range(8):
                src = V_XR + s_*4 + (j >> 1)
                I(f"v_lshlrev_b32 v0, 16, {v(src)}") if (j & 1) == 0 else I(f"v_and_b32 v0, 0xffff0000, {v(src)}")
                I(f"v_add_f32 v0, v0, {v(V_NMU+s_)}")
                I(f"v_fma_f32 {v(acc+j)}, v0, {v(V_RS+s_)}, {v(acc+j)}")
            for jj in range(4): I(f"v_cvt_pk_bf16_f32 {v(pk+4*s_+jj)}, {v(acc+2*jj)}, {v(acc+2*jj+1)}")
            I(f"buffer_store_dwordx4 {v(pk+4*s_,4)}, {v(V_L16)}, {s(S_WS,4)}, {s(S_T0)} offen sc1"); self.vm('x1st')
            if s_ == 0: I(f"s_add_u32 {s(S_T0)}, {s(S_T0)}, 16384")
            sm, sq = 208 + 0, 209
            for jj in range(4):
                I(f"v_lshlrev_b32 v0, 16, {v(pk+4*s_+jj)}"); I(f"v_and_b32 v1, 0xffff0000, {v(pk+4*s_+jj)}")
                if jj == 0:
                    I(f"v_add_f32 {v(sm)}, v0, v1"); I(f"v_mul_f32 {v(sq)}, v0, v0")
                else:
                    I(f"v_add_f32 {v(sm)}, {v(sm)}, v0"); I(f"v_add_f32 {v(sm)}, {v(sm)}, v1"); I(f"v_fmac_f32 {v(sq)}, v0, v0")
                I(f"v_fmac_f32 {v(sq)}, v1, v1")
            for r_ in (sm, sq):
                for sw_ in ('16', '32'):
                    I(f"v_mov_b32 v0, {v(r_)}"); I("s_nop 1"); I(f"v_permlane{sw_}_swap_b32 {v(r_)}, v0"); I("s_nop 0"); I(f"v_add_f32 {v(r_)}, {v(r_)}, v0")
            I(f"v_lshrrev_b32 v0, 1, {v(V_L16)}")
            I("s_mov_b64 exec, 0xffff")
            I(f"buffer_store_dwordx2 {v(sm,2)}, v0, {s(S_WS,4)}, {s(S_T1)} offen offset:{s_*128} sc1"); self.vm('x1st')
            I("s_mov_b64 exec, -1")

    def wp_piece(self, i, store):
        if self.o['wp'] == 2: return self.wp_piece2(i, store)
        I = self.I
        I(f"s_lshl_b32 {s(S_T2)}, s2, 2"); I(f"s_add_u32 {s(S_T2)}, {s(S_T2)}, {s(S_W)}"); I(f"s_mul_i32 {s(S_T2)}, {s(S_T2)}, 6")
        I(f"s_add_u32 {s(S_T2)}, {s(S_T2)}, {i}"); I(f"s_min_u32 {s(S_T2)}, {s(S_T2)}, 5887")
        I(f"s_and_b32 {s(S_T3)}, {s(S_T2)}, 7")
        if not store:
            I(f"s_andn2_b32 {s(S_T0)}, {s(S_T2)}, 7")
            I(f"s_cmp_lt_u32 {s(S_T0)}, 1792")
            p4, po = (92, 94) if self.o['wp'] == 2 else (S_W2, S_H)
            I(f"s_cselect_b32 {s(S_WT)}, {s(p4)}, {s(po)}"); I(f"s_cselect_b32 {s(S_WT+1)}, {s(p4+1)}, {s(po+1)}")
            I(f"s_cselect_b32 {s(S_WT+2)}, {s(S_W2+2)}, {s(S_H+2)}"); I(f"s_cselect_b32 {s(S_T1)}, 0, 1792")
            I(f"s_mov_b32 {s(S_WT+3)}, 0x20000")
            I(f"s_sub_u32 {s(S_T0)}, {s(S_T0)}, {s(S_T1)}"); I(f"s_lshl_b32 {s(S_T0)}, {s(S_T0)}, 10")
            I(f"s_lshl_b32 {s(S_T3)}, {s(S_T3)}, 7"); I(f"s_add_u32 {s(S_T0)}, {s(S_T0)}, {s(S_T3)}")
            I(f"buffer_load_dwordx4 {a(self.wpr + 4*i, 4)}, v9, {s(S_WT,4)}, {s(S_T0)} offen"); self.vm('wpl')
        else:
            I(f"s_mul_i32 {s(S_T3)}, {s(S_T3)}, {92*8192 + self.o['wpad']}"); I(f"s_lshr_b32 {s(S_T2)}, {s(S_T2)}, 3")
            I(f"s_lshl_b32 {s(S_T2)}, {s(S_T2)}, 10"); I(f"s_add_u32 {s(S_T2)}, {s(S_T2)}, {s(S_T3)}"); I(f"s_add_u32 {s(S_T2)}, {s(S_T2)}, {WS_WP}")
            I(f"buffer_store_dwordx4 {a(self.wpr + 4*i, 4)}, {v(V_L16)}, {s(S_WS,4)}, {s(S_T2)} offen" + (" sc1" if self.o['wt'] & 4 else "")); self.vm('wps')
    def wp_piece2(self, i, store):
        I = self.I
        I(f"s_add_u32 {s(S_T2)}, s69, {i}"); I(f"s_min_u32 {s(S_T2)}, {s(S_T2)}, s86")
        I(f"s_and_b32 {s(S_T3)}, {s(S_T2)}, 7"); I(f"s_lshr_b32 {s(S_T2)}, {s(S_T2)}, 3")
        if not store:
            I(f"s_lshl_b32 {s(S_T2)}, {s(S_T2)}, 13"); I(f"s_lshl_b32 {s(S_T3)}, {s(S_T3)}, 7"); I(f"s_add_u32 {s(S_T2)}, {s(S_T2)}, {s(S_T3)}")
            I(f"buffer_load_dwordx4 {a(self.wpr + 4*i, 4)}, v9, {s(S_WT,4)}, {s(S_T2)} offen"); self.vm('wpl')
        else:
            I(f"s_lshl_b32 {s(S_T2)}, {s(S_T2)}, 10"); I(f"s_mul_i32 {s(S_T3)}, {s(S_T3)}, {92*8192 + self.o['wpad']}")
            I(f"s_add_u32 {s(S_T2)}, {s(S_T2)}, {s(S_T3)}"); I(f"s_add_u32 {s(S_T2)}, {s(S_T2)}, s87")
            I(f"buffer_store_dwordx4 {a(self.wpr + 4*i, 4)}, {v(V_L16)}, {s(S_WS,4)}, {s(S_T2)} offen" + (" sc1" if self.o['wt'] & 4 else "")); self.vm('wps')
    def wp_select(self):
        I = self.I
        I(f"s_lshl_b32 {s(S_T2)}, s2, 2"); I(f"s_add_u32 {s(S_T2)}, {s(S_T2)}, {s(S_W)}")
        I(f"s_mov_b32 {s(S_T3)}, {4096*1024}"); I(f"s_mov_b32 s86, 4095"); I(f"s_mov_b32 s87, {WS_WP + 224*1024}")
        I(f"s_cmp_lt_u32 {s(S_T2)}, 299")
        I(f"s_cselect_b32 {s(S_WT)}, s92, s94"); I(f"s_cselect_b32 {s(S_WT+1)}, s93, s95")
        I(f"s_cselect_b32 {s(S_WT+2)}, {1792*1024}, {s(S_T3)}"); I(f"s_cselect_b32 s86, 1791, s86"); I(f"s_cselect_b32 s87, {WS_WP}, s87")
        I(f"s_cselect_b32 {s(S_T3)}, 0, 299"); I(f"s_mov_b32 {s(S_WT+3)}, 0x20000")
        I(f"s_sub_u32 {s(S_T2)}, {s(S_T2)}, {s(S_T3)}"); I(f"s_mul_i32 s69, {s(S_T2)}, 6")
    def wp_setup(self):
        I = self.I
        I(f"v_lshrrev_b32 v6, 7, {v(V_L16)}"); I(f"v_bfe_u32 v7, {v(V_L16)}, 4, 3"); I("v_lshrrev_b32 v8, 1, v6"); I("v_lshlrev_b32 v8, 1, v8"); I("v_xor_b32 v8, v8, v7")
        I("v_lshlrev_b32 v8, 4, v8"); I("v_lshl_add_u32 v9, v6, 10, v8")
        I(f"s_mov_b32 {s(S_W2+2)}, {1792*1024}"); I(f"s_mov_b32 {s(S_H+2)}, {4096*1024}")

    def q_convert_and_first_tile(self, sched):
        I = self.I
        if self.o['wp'] == 2 and not self.o['wpl']:
            self.wp_setup(); self.wp_select()
            for i in range(6): self.wp_piece(i, False)
        vmq = self.vmq
        idx = max(max(i for i, e in enumerate(vmq) if e == ('kv', kk)) for kk in (('K', 0), ('K', 1), ('V', 0)))
        I(f"s_waitcnt vmcnt({len(vmq) - 1 - idx}) lgkmcnt(0)")
        I("s_barrier")
        for f in range(8): self.emit(kread(0, f))
        for X in range(4): I(f"v_mul_f32 {v(V_RS+X)}, {s(S_SCALE)}, {v(V_RS+X)}")
        CS = 208
        for h in range(2):
            for k in range(2):
                ep = 2*h + k
                I(f"s_xor_b32 {s(S_T0)}, {s(S_W)}, {ep}"); I(f"s_lshl_b32 {s(S_T0)}, {s(S_T0)}, 11"); I(f"s_add_u32 {s(S_T0)}, {s(S_T0)}, {3*SLOT}")
                I(f"v_add_u32 v{k}, {s(S_T0)}, {v(V_L16)}")
                for b in range(2): I(f"ds_read_b128 {v(CS + (k*2+b)*4, 4)}, v{k} offset:{b*1024}", lds_r=('K', 3))
            I("s_waitcnt lgkmcnt(0)")
            for X in range(4):
                pr = lambda base: v(base + (X & ~1), 2)
                hi = X & 1
                for k in range(2):
                    ep = 2*h + k
                    for b in range(2):
                        base = V_QACC + (X*8 + 2*ep + b)*4
                        for r in range(0, 4, 2):
                            I(f"v_pk_fma_f32 {v(base+r,2)}, {v(CS+(k*2+b)*4+r,2)}, {pr(V_NMU)}, {v(base+r,2)} op_sel:[0,{hi},0] op_sel_hi:[1,{hi},1]")
                        for r in range(0, 4, 2):
                            I(f"v_pk_mul_f32 {v(base+r,2)}, {v(base+r,2)}, {pr(V_RS)} op_sel:[0,{hi}] op_sel_hi:[1,{hi}]")
                        for jj in range(2):
                            I(f"v_cvt_pk_bf16_f32 {v(Qreg(X, ep) + 2*b + jj)}, {v(base+2*jj)}, {v(base+2*jj+1)}")
        I("s_waitcnt lgkmcnt(0)")
        zi = 0
        for z in range(4): I(f"v_mov_b32 v{z}, 0")
        for g in range(32):
            X, kb2, s_ = g >> 3, (g >> 2) & 1, g & 3
            d = v(Sreg(0, X, kb2), 4)
            I(f"{MFMA} {d}, {a(A_KF + (kb2*4+s_)*4, 4)}, {v(Qreg(X, s_), 4)}, {'0' if s_ == 0 else d}")
            if not self.o['mz']:
                for z in range(4):
                    I(f"v_accvgpr_write_b32 {a(A_O + zi)}, 0"); zi += 1
            elif g % 4 == 3:
                I(f"v_mfma_f32_32x32x16_bf16 {a(A_O + 16*(g >> 2), 16)}, v[0:3], v[0:3], 0")
        if KA.LSUM: I(f"v_mfma_f32_32x32x16_bf16 {a(KA.A_L, 16)}, v[0:3], v[0:3], 0")
        for f in range(8): self.emit(kread(1, f))
        if not KA.LSUM:
            for X in range(4): I(f"v_mov_b32 {v(V_L+X)}, 0")
        I("s_nop 3")
        for X in range(4):
            mx, t2 = V_TMP, V_TMP+1
            S0 = Sreg(0, X)
            I(f"v_max3_f32 {v(mx)}, {v(S0)}, {v(S0+1)}, {v(S0+2)}")
            I(f"v_max3_f32 {v(mx)}, {v(mx)}, {v(S0+3)}, {v(S0+4)}")
            I(f"v_max3_f32 {v(mx)}, {v(mx)}, {v(S0+5)}, {v(S0+6)}")
            I(f"v_max_f32 {v(mx)}, {v(mx)}, {v(S0+7)}")
            for sw in ('16', '32'):
                I(f"v_mov_b32 {v(t2)}, {v(mx)}")
                I("s_nop 1")
                I(f"v_permlane{sw}_swap_b32 {v(mx)}, {v(t2)}")
                I("s_nop 0")
                I(f"v_max_f32 {v(mx)}, {v(mx)}, {v(t2)}")
            for r in range(8): I(f"v_sub_f32 {v(S0+r)}, {v(S0+r)}, {v(mx)}")
            for r in range(4): I(f"v_sub_f32 {v(V_NEGM+X*4+r)}, 0, {v(mx)}")
        for g in range(self.G0, NG):
            self.gap_valu(-NG + g, sched)
        I(f"s_waitcnt vmcnt({6 if self.o['wp'] == 2 and not self.o['wpl'] else 0}) lgkmcnt(0)")
        I("s_barrier")
        self.signal(1, "L_sig2")
        if self.o['wp'] == 2 and self.o['wpl']:
            self.wp_setup(); self.wp_select()
            for i in range(6): self.wp_piece(i, False)
        I("v_and_b32 v1, 63, v0") if False else None

    W3SLOT = [('K', 0), ('V', 0), ('K', 1), ('V', 1), ('K', 2), ('V', 2), ('K', 3), ('V', 3)]
    def w3_dma_one(self, c, jj):
        reg, slot = self.W3SLOT[c]
        self.I(f"s_add_u32 {s(S_T0)}, {s(S_WOFF)}, {(64*c + 4*jj)*3584 - jj*1024}")
        self.I(f"buffer_load_dwordx4 {v(V_D3+(jj&1))}, {s(S_W1,4)}, {s(S_T0)} offen offset:{jj*1024} lds", lds_w=(reg, slot))
    def emit_dma(self, which, tile, jj):
        if tile >= 32:
            c = 2*(tile - 32) + (0 if which == 'K' else 1)
            self.w3_dma_one(c, jj); self.vm(('w3', c)); return
        super().emit_dma(which, tile, jj)
        if self.tail: self.vm(('t', tile))
    def j3_setup(self):
        I = self.I
        I(f"s_load_dwordx2 {s(S_W1,2)}, s[0:1], {ARG_W3}")
        if self.o['wp'] == 1: I(f"s_load_dwordx2 {s(S_W2,2)}, s[0:1], {ARG_W4}"); I(f"s_load_dwordx2 {s(S_H,2)}, s[0:1], {ARG_WO}")
        I(f"v_lshrrev_b32 v1, 4, {v(V_L16)}"); I("v_and_b32 v2, 15, v1"); I("v_lshrrev_b32 v5, 4, v1")
        I("v_mul_u32_u24 v9, 3584, v5")
        for pj in range(2):
            I(f"v_add_u32 v8, {4*pj}, v5"); I("v_lshlrev_b32 v8, 1, v8"); I("v_xor_b32 v8, v8, v2"); I("v_min_u32 v8, 13, v8"); I("v_lshlrev_b32 v8, 4, v8")
            I(f"v_add_u32 {v(V_D3+pj)}, v9, v8")
        I(f"v_mov_b32 {v(V_POLLA2)}, {s(S_C0)}")
        I("s_waitcnt lgkmcnt(0)")
        I(f"s_mul_i32 {s(S_T0)}, {s(S_CT)}, 224")
        I(f"s_add_u32 {s(S_W1)}, {s(S_W1)}, {s(S_T0)}"); I(f"s_addc_u32 {s(S_W1+1)}, {s(S_W1+1)}, 0")
        I(f"s_sub_u32 {s(S_W1+2)}, {512*3584}, {s(S_T0)}"); I(f"s_mov_b32 {s(S_W1+3)}, 0x20000")
        I(f"s_mul_i32 {s(S_WOFF)}, {s(S_W)}, {16*3584}")
        self.poll_issue(V_POLL2, V_POLLA2, 1); self.vm('poll2')
        if self.o['pf3']:
            I("v_lshrrev_b32 v2, 2, v1"); I("v_mul_u32_u24 v2, 3584, v2"); I("v_and_b32 v5, 3, v1"); I("v_min_u32 v5, 1, v5"); I("v_lshl_add_u32 v2, v5, 7, v2")
            I(f"s_lshl_b32 {s(S_T0)}, {s(S_QB)}, 2"); I(f"s_add_u32 {s(S_T0)}, {s(S_T0)}, {s(S_W)}"); I(f"s_mul_i32 {s(S_T0)}, {s(S_T0)}, {16*3584}")
            I(f"buffer_load_dword v140, v2, {s(S_W1,4)}, {s(S_T0)} offen"); self.vm('pf3')
            I(f"buffer_load_dword v141, v2, {s(S_W1,4)}, {s(S_T0)} offen offset:92"); self.vm('pf3')
        if self.o['cpf']: self.code_prefetch("L_j3", "L_final_kernel_end", "L_pc2", 2, 142, 2)
        if self.o['wp'] == 1: self.wp_setup()
        if self.o['pfw']:
            I(f"s_load_dwordx2 {s(S_W2,2)}, s[0:1], {ARG_WO}"); I(f"s_load_dwordx2 {s(S_H,2)}, s[0:1], {ARG_W4}")
            I(f"s_lshl_b32 {s(S_T0)}, s2, 2"); I(f"s_add_u32 {s(S_T0)}, {s(S_T0)}, {s(S_W)}")
            I("v_and_b32 v2, 31, v1"); I("v_lshlrev_b32 v2, 7, v2"); I("v_min_u32 v5, 13, v1"); I("v_lshlrev_b32 v5, 7, v5")
            I("s_waitcnt lgkmcnt(0)")
            I(f"s_mov_b32 {s(S_W2+2)}, {4096*1024}"); I(f"s_mov_b32 {s(S_W2+3)}, 0x20000"); I(f"s_mov_b32 {s(S_H+2)}, {1792*1024}"); I(f"s_mov_b32 {s(S_H+3)}, 0x20000")
            I(f"s_lshl_b32 {s(S_T1)}, {s(S_T0)}, 12"); I(f"s_mul_i32 {s(S_T0)}, {s(S_T0)}, {14*128}")
            I(f"buffer_load_dword v140, v2, {s(S_W2,4)}, {s(S_T1)} offen"); self.vm('pfw')
            I(f"buffer_load_dword v141, v5, {s(S_H,4)}, {s(S_T0)} offen"); self.vm('pfw')

    @staticmethod
    def x1reg(s_, e):
        if not KA.LSUM: return a(192 + (e*2 + s_)*4, 4) if e < 8 else v(16 + ((e-8)*2 + s_)*4, 4)
        return a(208 + (e*2 + s_)*4, 4) if e < 6 else v(16 + ((e-6)*2 + s_)*4, 4)
    def x1_op(self, s_, e):
        I = self.I
        I(f"s_add_u32 {s(S_T3)}, {s(S_X01)}, {WS_X1 + s_*16384 + (e & ~3)*1024}")
        I(f"buffer_load_dwordx4 {self.x1reg(s_, e)}, {v(V_L16)}, {s(S_WS,4)}, {s(S_T3)} offen offset:{(e&3)*1024} sc1"); self.vm(('x1', e))
    def st_op(self, k, s_):
        I = self.I
        if k == 0 and s_ == 0:
            I(f"v_lshrrev_b32 v1, 4, {v(V_L16)}"); I("v_and_b32 v2, 15, v1"); I("v_lshrrev_b32 v5, 4, v1")
            I("v_lshlrev_b32 v2, 3, v2"); I("v_lshl_add_u32 v2, v5, 16, v2")
        I(f"s_lshl_b32 {s(S_T2)}, {s(S_R01)}, 7"); I(f"s_add_u32 {s(S_T2)}, {s(S_T2)}, {WS_STAT + k*16384}")
        I(f"buffer_load_dwordx2 {v(208 + (s_*4+k)*2, 2)}, v2, {s(S_WS,4)}, {s(S_T2)} offen offset:{s_*128} sc1"); self.vm('st')

    def o_epilogue_items(self):
        q = []
        A = lambda t: q.append(Ins(t))
        for X in range(4):
            l, t2 = V_L + X, V_TMP + X
            if KA.LSUM: A(f"v_accvgpr_read_b32 {v(l)}, {a(KA.A_L + 4*X)}")
            else:
                for sw in ('16', '32'):
                    A(f"v_mov_b32 {v(t2)}, {v(l)}"); A("s_nop 1"); A(f"v_permlane{sw}_swap_b32 {v(l)}, {v(t2)}"); A("s_nop 0"); A(f"v_add_f32 {v(l)}, {v(l)}, {v(t2)}")
        for X in range(4): A(f"v_rcp_f32 {v(V_L + X)}, {v(V_L + X)}")
        stage = 96 if KA.LSUM else 80; n = 0; NS = 2 if KA.LSUM else 4
        for X in range(4):
            OST = 131072 + self.o['opad']
            A(f"s_lshl_b32 {s(S_OOFF)}, {s(S_HEAD)}, 12"); A(f"s_add_u32 {s(S_OOFF)}, {s(S_OOFF)}, {WS_O + (X & 1)*OST}")
            A(f"s_mul_i32 {s(S_C1)}, {s(S_R01 if X < 2 else S_R23)}, {OST}"); A(f"s_add_u32 {s(S_OOFF)}, {s(S_OOFF)}, {s(S_C1)}")
            for e in range(4):
                f = stage + (n % NS)*12; n += 1
                for j in range(8): A(f"v_accvgpr_read_b32 {v(f+j)}, {a(Oreg(X, 2*e + (j >> 2)) + (j & 3))}")
                if self.o['pk'] & 4:
                    for j in range(0, 8, 2): A(pk("v_pk_mul_f32", f+j, f+j, ('b', V_L+X)))
                else:
                    for j in range(8): A(f"v_mul_f32 {v(f+j)}, {v(f+j)}, {v(V_L+X)}")
                for jj in range(4): A(f"v_cvt_pk_bf16_f32 {v(f+8+jj)}, {v(f+2*jj)}, {v(f+2*jj+1)}")
                q.append(('vm', f"buffer_store_dwordx4 {v(f+8,4)}, {v(V_L16)}, {s(S_WS,4)}, {s(S_OOFF)} offen offset:{e*1024}" + (" sc1" if self.o['wt'] & 1 else ""), 'ost'))
        return q

    def j3(self):
        I = self.I; p = self.p
        for c in range(7): I(f"v_subrev_u32 {v(V_A3K+c)}, {LDS_V}, {v(V_AV+c)}")
        I(f"s_lshl_b32 {s(S_T0)}, {s(S_W)}, 6")
        for c in range(2):
            I(f"v_xor_b32 {v(140+c)}, {s(S_T0)}, {v(V_AV+c)}"); I(f"v_subrev_u32 {v(142+c)}, {LDS_V}, {v(140+c)}")
        for k in range(4): I(f"v_mov_b32 {v(V_ONES+k)}, 0x3f803f80")
        ACC = lambda s_, cb: 144 + (s_*7 + cb)*4
        CSA = lambda c: 200 + 4*c
        blks = []
        for e in range(16):
            c = e >> 1; reg, slot = self.W3SLOT[c]; off = slot*SLOT + (e & 1)*8192
            for cb in range(7): blks.append((e, (V_AV if reg == 'V' else V_A3K) + cb, cb, False, off, (reg, slot)))
            for cb in range(2): blks.append((e, (140 if reg == 'V' else 142) + cb, cb, True, off, (reg, slot)))
        LA, NR = self.o.get('la', 9), 16
        P1O = 6 if self.o['pk'] & 2 else 3
        vops = []
        for c in (6, 7):
            for jj in range(4):
                def f(c=c, jj=jj):
                    reg, slot = self.W3SLOT[c]
                    I(f"s_add_u32 m0, {s(S_M0K if reg == 'K' else S_M0V)}, {slot*SLOT}")
                    self.w3_dma_one(c, jj); self.vm(('w3', c))
                vops.append(f)
        for e in range(6 if KA.LSUM else 8, 16):
            for s_ in range(2): vops.append(lambda s_=s_, e=e: self.x1_op(s_, e))
        for k in range(4):
            for s_ in range(2): vops.append(lambda k=k, s_=s_: self.st_op(k, s_))
        side = self.o_epilogue_items()
        side.append(('wait', 'st'))
        for s_ in range(2):
            b = 208 + s_*8
            for j in range(2):
                side += [Ins(f"v_add_f32 {v(b+j)}, {v(b+j)}, {v(b+2+j)}"), Ins(f"v_add_f32 {v(b+4+j)}, {v(b+4+j)}, {v(b+6+j)}"), Ins(f"v_add_f32 {v(b+j)}, {v(b+j)}, {v(b+4+j)}")]
                for sw_ in ('16', '32'):
                    side += [Ins(f"v_mov_b32 v0, {v(b+j)}"), Ins("s_nop 1"), Ins(f"v_permlane{sw_}_swap_b32 {v(b+j)}, v0"), Ins("s_nop 0"), Ins(f"v_add_f32 {v(b+j)}, {v(b+j)}, v0")]
            side += [Ins(f"v_mul_f32 {v(b)}, 0xbb000000, {v(b)}"), Ins(f"v_mul_f32 {v(b+1)}, 0x3b000000, {v(b+1)}"),
                     Ins(f"v_fma_f32 {v(b+1)}, -{v(b)}, {v(b)}, {v(b+1)}"), Ins(f"v_max_f32 {v(b+1)}, 0, {v(b+1)}"),
                     Ins(f"v_add_f32 {v(b+1)}, 0x3727c5ac, {v(b+1)}"), Ins(f"v_rsq_f32 {v(b+1)}, {v(b+1)}")]
            q = Prog(); q.I("s_nop 0"); gelu_consts(q.I, b+1, b+2, b+P1O, b+4); side += q.items
        def drain(n):
            k = 0
            while side and k < n:
                it = side.pop(0)
                if isinstance(it, Ins):
                    self.emit(it); k += 0 if it.op.startswith('s_') else 1
                elif it[0] == 'vm': I(it[1]); self.vm(it[2]); k += 1
                else: self.waitvm(it[1])
        def issue_read(n):
            e, ar, cb, iscs, off, region = blks[n]
            c = e >> 1
            if n == 0 or (blks[n-1][0] >> 1) != c:
                if c in (0, 4, 6):
                    self.waitvm(('w3', {0: 3, 4: 5, 6: 7}[c])); I("s_barrier")
            r = A_WF + (n % NR)*4
            for t in range(2): I(f"ds_read_b64_tr_b16 {a(r+2*t,2)}, {v(ar)} offset:{off + t*4096}", lds_r=region)
        for n in range(LA): issue_read(n)
        nread = LA; nm = 0; nwp = 0; nside0 = len(side)
        for n, (e, ar, cb, iscs, off, region) in enumerate(blks):
            if (n == 0 or blks[n-1][0] != e): self.ms(f'e{e}')
            if (n == 0 or blks[n-1][0] != e) and (e & 1) == 0: self.waitvm(('x1', e + 1)); self.ms(f'w{e}')
            if n % 3 == 0: I(f"s_waitcnt lgkmcnt({max(0, 2*(nread - n - 3))})")
            A = a(A_WF + (n % NR)*4, 4)
            ms_ = [(CSA(cb), v(V_ONES, 4))] if iscs else [(ACC(s_, cb), self.x1reg(s_, e)) for s_ in range(2)]
            for i_, (d, B) in enumerate(ms_):
                I(f"{MFMA} {v(d,4)}, {A}, {B}, {'0' if e == 0 else v(d,4)}"); nm += 1
                if i_ == 0 and nread < len(blks): issue_read(nread); nread += 1
                elif vops and nm % 2 == 0 and (nm // 2) % self.o['vr'] == 0: vops.pop(0)()
                elif self.o['wp'] == 1 and len(side) < nside0 - 110 and not vops and nm % 4 == 2 and nwp < 6:
                    assert not any(isinstance(it, Ins) and 'accvgpr_read' in it.text and int(it.text.split(', a')[1]) < 32 for it in side)
                    self.wp_piece(nwp, False); nwp += 1
                drain(self.o['j3v'] if nm > 4 else 0)
        assert not vops
        drain(10000)
        self.ms('j3m')
        I(f"s_lshl_b32 {s(S_T0)}, {s(S_W)}, 11"); I(f"s_add_u32 {s(S_T0)}, {s(S_T0)}, {LDS_S0}")
        I(f"v_add_u32 v0, {s(S_T0)}, {v(V_L16)}"); I(f"v_add_u32 v1, {LDS_S0}, {v(V_L16)}")
        for c in range(2): I(f"ds_write_b128 v0, {v(CSA(c),4)} offset:{c*1024}", lds_w='S0')
        I("s_waitcnt lgkmcnt(0)"); I("s_barrier")
        CS = 16
        for cb in range(7): I(f"ds_read_b128 {v(CS+cb*4,4)}, v1 offset:{cb*1024}", lds_r='S0')
        if self.o['wp'] == 1:
            assert nwp == 6
            self.waitvm('wpl')
            for i in range(6): self.wp_piece(i, True)
        I(f"s_mul_i32 {s(S_OOFF)}, {s(S_R01)}, {56*1024}"); I(f"s_add_u32 {s(S_OOFF)}, {s(S_OOFF)}, {WS_H2}")
        I(f"s_mul_i32 {s(S_T3)}, {s(S_CT)}, 7")
        for k, dst in ((0, S_T0), (1, S_T1)):
            I(f"s_add_u32 {s(S_T2)}, {s(S_T3)}, {k}"); I(f"s_lshr_b32 {s(dst)}, {s(S_T2)}, 1"); I(f"s_lshl_b32 {s(dst)}, {s(dst)}, 10")
            I(f"s_and_b32 {s(S_T2)}, {s(S_T2)}, 1"); I(f"s_lshl_b32 {s(S_T2)}, {s(S_T2)}, 3"); I(f"s_add_u32 {s(dst)}, {s(dst)}, {s(S_T2)}"); I(f"s_add_u32 {s(dst)}, {s(dst)}, {s(S_OOFF)}")
        I("s_waitcnt lgkmcnt(0)")
        for s_ in range(2):
            b = 208 + s_*8
            T0 = 48 + s_*28
            for half in (range(0, 4), range(4, 7)):
                seqs = []
                for cb in half:
                    for r_ in range(0, 4, 2 if self.o['pk'] & 2 else 1):
                        q = Prog(); (gelu_pk if self.o['pk'] & 2 else gelu8)(q, ACC(s_, cb) + r_, T0 + cb*4 + r_, b, CS+cb*4+r_, b+2, b+P1O, b+4); seqs.append(q.items)
                p.extend(interleave(seqs))
                for cb in half:
                    x = ACC(s_, cb); o = 104 + (s_*7 + cb)*2
                    I(f"v_cvt_pk_bf16_f32 {v(o)}, {v(x)}, {v(x+1)}"); I(f"v_cvt_pk_bf16_f32 {v(o+1)}, {v(x+2)}, {v(x+3)}")
            sc = " sc1" if self.o['wt'] & 2 else ""
            O_ = lambda cb: 104 + (s_*7 + cb)*2
            I(f"s_bitcmp1_b32 {s(S_CT)}, 0"); I(f"s_cbranch_scc1 L_h2odd{s_}")
            for m in range(3): I(f"buffer_store_dwordx4 {v(O_(2*m),4)}, {v(V_L16)}, {s(S_WS,4)}, {s(S_T0)} offen offset:{m*1024}{sc}")
            I(f"buffer_store_dwordx2 {v(O_(6),2)}, {v(V_L16)}, {s(S_WS,4)}, {s(S_T0)} offen offset:3072{sc}")
            I(f"s_branch L_h2done{s_}")
            p.L(f"L_h2odd{s_}")
            I(f"buffer_store_dwordx2 {v(O_(0),2)}, {v(V_L16)}, {s(S_WS,4)}, {s(S_T0)} offen{sc}")
            for m in range(3): I(f"buffer_store_dwordx4 {v(O_(2*m+1),4)}, {v(V_L16)}, {s(S_WS,4)}, {s(S_T1)} offen offset:{m*1024}{sc}")
            p.L(f"L_h2done{s_}")
            if s_ == 0:
                I(f"s_add_u32 {s(S_T0)}, {s(S_T0)}, {56*1024}"); I(f"s_add_u32 {s(S_T1)}, {s(S_T1)}, {56*1024}")

    def gen(self, name="a_kernel"):
        p = self.p; I = self.I
        p.raw(kernel_header(name))
        sched = self.build_valu()
        n0 = len(p.items)
        self.prologue_setup()
        self.j1()
        self.ms('j1')
        self.qproj()
        self.j2()
        self.ms('j2')
        self.q_convert_and_first_tile(sched)
        self.ms('ft')
        pro, npad = fix_hazards(p.items[n0:], name='pro')
        p.items[n0:] = pro
        self.I(f"s_mov_b32 {s(S_CNT)}, 7")
        p.raw(".p2align 6")
        p.L("L_attn_loop")
        loop_start = len(p.items)
        replay_at_entry = list(self.replay)
        for T in range(4):
            self.step(2*T, sched, dma_k=T+3)
            self.step(2*T+1, sched, dma_v=T+3, barrier=True, vmw=8)
        self.I(f"s_sub_u32 {s(S_CNT)}, {s(S_CNT)}, 1")
        self.I(f"s_cmp_lg_u32 {s(S_CNT)}, 0")
        self.I("s_cbranch_scc1 L_attn_loop")
        loop_end = len(p.items)
        ent = [(n, k, ins.text) for (n, k, ins, kind) in replay_at_entry]
        ext = [(n - 8, k, ins.text) for (n, k, ins, kind) in self.replay]
        assert ent == ext
        self.replay = [(n - 8 + 56, k, ins, kind) for (n, k, ins, kind) in self.replay]
        tail_start = len(p.items)
        self.vmq = [('t', 30)]*8; self.vm_out = 8; self.tail = True
        self.j3_setup()
        if self.o['wp'] == 2:
            for i in range(6): self.extra.setdefault((56, 2 + 4*i), []).append(lambda i=i: self.wp_piece(i, True))
        xo = [(s_, e) for e in range(6 if KA.LSUM else 8) for s_ in range(2)]
        for i_, (s_, e) in enumerate(xo):
            self.extra.setdefault((58 + i_ // 4, 34 + 4*(i_ % 4)), []).append(lambda s_=s_, e=e: self.x1_op(s_, e))
        def chk2():
            self.waitvm('poll2')
            I(f"s_cmp_lg_u32 {s(S_W)}, 0"); I("s_cbranch_scc1 L_p2_ok")
            self.poll_check(V_POLL2, V_POLLA2, 1, "L_p2")
        self.extra.setdefault((57, 62), []).append(chk2)
        for T in range(28, 32):
            dk = T + 3
            lastT = (T == 31)
            need = {28: ('cpf' if self.o['cpf'] else 'pfw' if self.o['pfw'] else 'pf3' if self.o['pf3'] else 'poll2'), 29: ('t', 31), 30: ('w3', 1), 31: None}[T]
            self.step(2*T, sched, dma_k=dk)
            self.step(2*T+1, sched, dma_v=dk, barrier=not lastT, vmw=(lambda need=need: min(self.wait_for(need), self.vm_out)), last=lastT)
        self.ms('loop')
        I("s_waitcnt lgkmcnt(0)")
        p.L("L_j3")
        self.j3()
        tail, npad2 = fix_hazards(p.items[tail_start:], name='tail', verbose=True)
        p.items[tail_start:] = tail
        p.L("L_a_end")
        self.I("s_endpgm")
        for (tr, lab, back) in self.tramps:
            p.L(tr); self.I(f"s_call_b64 {s(S_RET,2)}, {lab}"); self.I(f"s_branch {back}")
        for key, (lab, items) in self.rare.items(): p.extend(items)
        ins = lambda seq: [i for i in seq if isinstance(i, Ins) and not i.nowarn]
        body = ins(p.items[loop_start:loop_end])
        def strip_spin(seq):
            out = []; skip = False
            for i in seq:
                if isinstance(i, Label) and i.name.endswith('_spin'): skip = True; continue
                if isinstance(i, Label) and i.name.endswith('_ok'): skip = False; continue
                if isinstance(i, Ins) and not skip: out.append(i)
            return out
        trace = strip_spin(p.items[n0:loop_start]) + body + body + strip_spin(p.items[loop_end:loop_end + len(tail) + 2])
        e1 = check_hazards(trace, name); e2 = check_waitcnt(trace, name)
        self.stats = dict(pro=len(ins(pro)), loop=len(body), tail=len(ins(tail)), npad=npad, npad2=npad2, rare=len(self.rare))
        return p.text(), kernel_desc(name, 512, 96, 256), e1 + e2

if __name__ == "__main__":
    g = AGen(); t, d, errs = g.gen()
    print(g.stats)
    for e in errs[:40]: print(e)
    print(len(errs), "errors")
```
